```python
import torch

def _softmax(x, axis=-1):
    return torch.softmax(x, dim=axis)
def _gelu(x):
    return torch.nn.functional.gelu(x, approximate="tanh")
def _silu(x):
    return torch.nn.functional.silu(x)
def _sigmoid(x):
    return torch.sigmoid(x)
def _layernorm(x, axis=-1, eps=1e-5):
    m = x.mean(dim=axis, keepdim=True)
    v = x.var(dim=axis, keepdim=True, unbiased=False)
    return (x - m) / torch.sqrt(v + eps)
def _scatter_add(tgt, idx, src, axis=0):
    return tgt.clone().index_add_(axis, idx, src)
def _segment_sum(src, seg, n):
    out = torch.zeros((n,) + src.shape[1:], dtype=src.dtype)
    return out.index_add_(0, seg, src)
def _pad(x, pw):
    flat = tuple(v for pair in reversed(pw) for v in pair)
    return torch.nn.functional.pad(x, flat)

kernel_name = 'parallel_sum__gqa_block_cached__glu_gated_reglu__decode'

def setup_inputs():

    _w = (lambda a: (lambda t: t.to(torch.bfloat16) if t.is_floating_point() else t)(torch.as_tensor(a)))
    def _A_setup():
        B, Sq, D = 4, 1, 640
        Hq, Hkv, Sk, Dh = 32, 32, 8192, 128
        assert Hq % Hkv == 0, (Hq, Hkv)
        return {
            "x": _w((lambda *s: torch.randn(*s, dtype=torch.bfloat16) * 0.05)(B, Sq, D)),
            "k_cache": _w((lambda *s: torch.randn(*s, dtype=torch.bfloat16) * 1.6)(B, Hkv, Sk, Dh)),
            "v_cache": _w((lambda *s: torch.randn(*s, dtype=torch.bfloat16) * 0.8)(B, Hkv, Sk, Dh)),
            "wq": _w((lambda *s: torch.randn(*s, dtype=torch.bfloat16) * 1.6)(D, Hq * Dh) * (D ** -0.5)),
            "wo": _w((lambda *s: torch.randn(*s, dtype=torch.bfloat16) * 0.8)(Hq * Dh, D) * ((Hq * Dh) ** -0.5)),
        }
    _A_in = _A_setup()

    def _B_setup():
        B, S, D, F = 4, 1, 640, 1728
        return {
            "x": _w((lambda *s: torch.randn(*s, dtype=torch.bfloat16) * 0.05)(B, S, D)),
            "W_gate": _w((lambda *s: torch.randn(*s, dtype=torch.bfloat16) * 0.4)(D, F) * (2.0 / D) ** 0.5),
            "W_up": _w((lambda *s: torch.randn(*s, dtype=torch.bfloat16) * 0.4)(D, F) * (2.0 / D) ** 0.5),
            "W_down": _w((lambda *s: torch.randn(*s, dtype=torch.bfloat16) * 0.4)(F, D) * (1.0 / F) ** 0.5),
        }
    _B_in = _B_setup()

    return {
        "A_x": _A_in["x"],
        "A_k_cache": _A_in["k_cache"],
        "A_v_cache": _A_in["v_cache"],
        "A_wq": _A_in["wq"],
        "A_wo": _A_in["wo"],
        "B_x": _B_in["x"],
        "B_W_gate": _B_in["W_gate"],
        "B_W_up": _B_in["W_up"],
        "B_W_down": _B_in["W_down"],
    }

def reference(A_x, A_k_cache, A_v_cache, A_wq, A_wo, B_x, B_W_gate, B_W_up, B_W_down):
    def _A_ref(x, k_cache, v_cache, wq, wo):
        B, Sq, D = x.shape
        Hq, Dh = 32, 128
        Hkv = k_cache.shape[1]
        rep = Hq // Hkv
        q = (lambda x, *d: x.permute(*d))((x @ wq).reshape(B, Sq, Hq, Dh), 0, 2, 1, 3)
        k = (lambda x, n, axis: torch.repeat_interleave(x, n, dim=axis))(k_cache, rep, axis=1)
        v = (lambda x, n, axis: torch.repeat_interleave(x, n, dim=axis))(v_cache, rep, axis=1)
        scores = torch.einsum("bhqd,bhkd->bhqk", q, k) * (Dh ** -0.5)
        p = _softmax(scores, axis=-1)
        o = torch.einsum("bhqk,bhkd->bhqd", p, v)
        return (lambda x, *d: x.permute(*d))(o, 0, 2, 1, 3).reshape(B, Sq, Hq * Dh) @ wo

    def _B_ref(x, W_gate, W_up, W_down):
        gate = torch.einsum("bsd,df->bsf", x, W_gate)
        up = torch.einsum("bsd,df->bsf", x, W_up)
        gate = gate * (lambda x, dt: x.to(dt))(gate > 0, gate.dtype)
        h = gate * up
        return torch.einsum("bsf,fd->bsd", h, W_down)

    x = A_x
    xn = _layernorm(x, axis=-1)
    return x + _A_ref(xn, A_k_cache, A_v_cache, A_wq, A_wo) + _B_ref(xn, B_W_gate, B_W_up, B_W_down)
```

```python
import sys

NAME = "parallel_sum__gqa_block_cached__glu_gated_reglu__decode"

HEADER = """; Fused LN -> {GQA decode attention, ReGLU FFN} -> residual sum.  Generated by gen_kernel.py (hand-designed schedule).
; @launch grid=(256,1,1) block=(512,1,1) lds=%d
.amdgcn_target "amdgcn-amd-amdhsa--gfx950"
.text
.globl %s_kernel
.p2align 8
.type %s_kernel,@function
%s_kernel:
"""

FOOTER = """.section .rodata,"a"
.p2align 6
.amdhsa_kernel %s_kernel
  .amdhsa_next_free_vgpr 256
  .amdhsa_next_free_sgpr 102
  .amdhsa_accum_offset 256
  .amdhsa_group_segment_fixed_size 0
  .amdhsa_kernarg_size 96
  .amdhsa_user_sgpr_count 2
  .amdhsa_user_sgpr_kernarg_segment_ptr 1
  .amdhsa_system_sgpr_workgroup_id_x 1
.end_amdhsa_kernel
"""

L_QP = 0
L_ST = 2048
L_OP = 2560
L_YP = 4608
LDS_SIZE = 4608 + 4 * 2560

WS_E = 0
WS_ST = 4096
WS_Y = 65536
WS_DBG = 0x180000
WS_SIZE = 0x200000

TAG_A = 1664525
TAG_C = 1013904223
LOG2E = 0x3FB8AA3B
SCALE = 0x3DB504F3
SPIN = 20000


def gen(NPRE=2, stamps=False, kpol="nt", wpol="", dump=False):
    L = []
    A = L.append

    def nop(n):
        assert 1 <= n <= 16
        A(f"s_nop {n-1}")

    def stamp(idx):
        if not stamps:
            return
        A("s_memrealtime s[90:91]")
        A("s_waitcnt lgkmcnt(0)")
        A(f"v_mov_b32 v60, s90")
        A(f"v_mov_b32 v61, s91")
        A(f"s_mov_b32 s92, exec_lo")
        A(f"s_mov_b32 s93, exec_hi")
        A("s_mov_b64 exec, 1")
        A(f"buffer_store_dwordx2 v[60:61], off, s[84:87], s88 offset:{idx*8}")
        A("s_mov_b32 exec_lo, s92")
        A("s_mov_b32 exec_hi, s93")

    A("s_cmp_ge_u32 s2, 256")
    A("s_cbranch_scc1 L_end")
    A("s_load_dwordx16 s[4:19], s[0:1], 0")
    A("s_load_dwordx8 s[20:27], s[0:1], 64")
    A("v_lshrrev_b32 v1, 6, v0")
    A("v_and_b32 v0, 63, v0")
    A("v_readfirstlane_b32 s3, v1")
    A("s_and_b32 s32, s2, 7")
    A("s_lshr_b32 s35, s2, 3")
    A("s_lshr_b32 s36, s35, 3")
    A("s_and_b32 s37, s35, 7")
    A("s_lshr_b32 s28, s37, 1")
    A("s_and_b32 s38, s37, 1")
    A("s_lshl_b32 s39, s36, 3")
    A("s_add_u32 s29, s32, s39")
    A("s_lshl_b32 s39, s28, 5")
    A("s_add_u32 s39, s39, s29")
    A("s_lshl_b32 s39, s39, 1")
    A("s_add_u32 s30, s39, s38")
    A("s_lshl_b32 s33, s36, 1")
    A("s_add_u32 s33, s33, s38")
    A("s_lshl_b32 s31, s33, 3")
    A("s_add_u32 s31, s31, s32")
    A("v_and_b32 v2, 15, v0")
    A("v_lshrrev_b32 v3, 4, v0")
    A("v_and_b32 v8, 1, v2")
    A("v_lshlrev_b32 v8, 4, v8")
    A("v_mov_b32 v9, 0xffff")
    A("v_lshlrev_b32 v9, v8, v9")
    A("v_lshrrev_b32 v10, 1, v2")
    for r in range(4):
        A(f"v_cmp_eq_u32 vcc, {r}, v10")
        nop(2)
        A(f"v_cndmask_b32 v{4+r}, 0, v9, vcc")
    A("s_waitcnt lgkmcnt(0)")
    if stamps:
        A("s_mov_b32 s84, s26")
        A("s_and_b32 s85, s27, 0xffff")
        A(f"s_mov_b32 s86, {WS_SIZE}")
        A("s_mov_b32 s87, 0x20000")
        A("s_lshl_b32 s88, s2, 3")
        A("s_add_u32 s88, s88, s3")
        A("s_lshl_b32 s88, s88, 7")
        A(f"s_add_u32 s88, s88, {WS_DBG}")
    stamp(0)
    A("s_cmp_ge_u32 s3, 4")
    A("s_cbranch_scc1 L_service")

    RING = 128
    Q = 12
    S = 16
    SC = 32
    AR = 64
    D = 80
    T = 84
    A("s_lshl_b32 s35, s30, 20")
    A("s_lshr_b32 s36, s30, 12")
    A("s_add_u32 s40, s6, s35")
    A("s_addc_u32 s41, s7, s36")
    A("s_and_b32 s41, s41, 0xffff")
    A("s_mov_b32 s42, 0x100000")
    A("s_mov_b32 s43, 0x20000")
    A("s_add_u32 s44, s8, s35")
    A("s_addc_u32 s45, s9, s36")
    A("s_and_b32 s45, s45, 0xffff")
    A("s_lshl_b32 s35, s3, 12")
    A("v_lshlrev_b32 v11, 4, v0")
    A("v_add_u32 v11, s35, v11")
    A("s_mov_b32 s46, 0")

    def issue_group(slot):
        for i in range(4):
            r = RING + (slot * 4 + i) * 4
            A(f"buffer_load_dwordx4 v[{r}:{r+3}], v11, s[40:43], s46 offen offset:{i*1024} {kpol}")
        A("s_add_u32 s46, s46, 0x4000")

    for g in range(NPRE):
        issue_group(g)
    A("s_barrier")
    for g in range(NPRE, 8):
        issue_group(g)
    A("s_mov_b32 s48, 0xaaaaaaaa")
    A("s_mov_b32 s49, 0xaaaaaaaa")
    A("s_mov_b32 s50, 0xcccccccc")
    A("s_mov_b32 s51, 0xcccccccc")
    A(f"s_mov_b32 s52, {hex(SCALE)}")
    A(f"s_mov_b32 s53, {hex(LOG2E)}")
    A("v_lshlrev_b32 v10, 5, v2")
    for r in range(4):
        A(f"v_mov_b32 v{D+r}, 0")
    stamp(1)
    A("s_barrier")
    stamp(2)
    for vv in range(4):
        A(f"ds_read_b128 v[{16+vv*8}:{19+vv*8}], v10 offset:{L_QP+vv*512}")
        A(f"ds_read_b128 v[{20+vv*8}:{23+vv*8}], v10 offset:{L_QP+vv*512+16}")
    A("s_waitcnt lgkmcnt(0)")
    for e in range(8):
        A(f"v_add_f32 v{16+e}, v{16+e}, v{24+e}")
        A(f"v_add_f32 v{32+e}, v{32+e}, v{40+e}")
    for e in range(8):
        A(f"v_add_f32 v{16+e}, v{16+e}, v{32+e}")
    for r in range(4):
        A(f"v_cvt_pk_bf16_f32 v{Q+r}, v{16+2*r}, v{17+2*r}")
    A("s_mov_b32 s47, 0")
    nop(2)

    A("L_ktrip:")
    A("s_cmp_lg_u32 s47, 7")
    A("s_cbranch_scc1 L_knosw")
    A("s_mov_b32 s40, s44")
    A("s_mov_b32 s41, s45")
    A("s_mov_b32 s46, 0")
    A("L_knosw:")
    for half in range(2):
        for gg in range(4):
            slot = 4 * half + gg
            A("s_waitcnt vmcnt(28)")
            for r in range(4):
                for i in range(4):
                    src = RING + (slot * 4 + i) * 4 + r
                    d = S + 4 * gg + i
                    c = "0" if r == 0 else f"v{d}"
                    A(f"v_dot2_f32_bf16 v{d}, v{src}, v{Q+r}, {c}")
            issue_group(slot)
        for j in range(8):
            A(f"v_add_f32_dpp v{S+j}, v{S+j}, v{S+j} row_ror:8 row_mask:0xf bank_mask:0x3")
        for j in range(8):
            A(f"v_add_f32_dpp v{S+j}, v{S+j+8}, v{S+j+8} row_ror:8 row_mask:0xf bank_mask:0xc")
        for j in range(4):
            A(f"v_add_f32_dpp v{S+j}, v{S+j}, v{S+j} row_half_mirror row_mask:0xf bank_mask:0x5")
        for j in range(4):
            A(f"v_add_f32_dpp v{S+j}, v{S+j+4}, v{S+j+4} row_half_mirror row_mask:0xf bank_mask:0xa")
        A(f"v_cndmask_b32_e64 v{T+0}, v{S+2}, v{S+0}, s[50:51]")
        A(f"v_cndmask_b32_e64 v{T+2}, v{S+0}, v{S+2}, s[50:51]")
        A(f"v_cndmask_b32_e64 v{T+1}, v{S+3}, v{S+1}, s[50:51]")
        A(f"v_cndmask_b32_e64 v{T+3}, v{S+1}, v{S+3}, s[50:51]")
        nop(1)
        A(f"v_add_f32_dpp v{T+2}, v{T+0}, v{T+2} quad_perm:[2,3,0,1] row_mask:0xf bank_mask:0xf")
        A(f"v_add_f32_dpp v{T+3}, v{T+1}, v{T+3} quad_perm:[2,3,0,1] row_mask:0xf bank_mask:0xf")
        A(f"v_cndmask_b32_e64 v{T+0}, v{T+3}, v{T+2}, s[48:49]")
        A(f"v_cndmask_b32_e64 v{T+1}, v{T+2}, v{T+3}, s[48:49]")
        nop(2)
        A(f"v_add_f32_dpp v{T+1}, v{T+0}, v{T+1} quad_perm:[1,0,3,2] row_mask:0xf bank_mask:0xf")
        A(f"v_cvt_pk_bf16_f32 v{T+1}, v{T+1}, v{T+1}")
        A(f"v_lshlrev_b32 v{T+1}, 16, v{T+1}")
        A(f"v_mul_f32 v{T+1}, s52, v{T+1}")
        A(f"v_cvt_pk_bf16_f32 v{T+1}, v{T+1}, v{T+1}")
        if half == 0:
            A(f"v_lshlrev_b32 v{T+4}, 16, v{T+1}")
        else:
            for kk in range(14):
                A(f"v_mov_b32 v{SC+kk}, v{SC+kk+2}")
            A(f"v_mov_b32 v{SC+14}, v{T+4}")
            A(f"v_lshlrev_b32 v{SC+15}, 16, v{T+1}")
    A("s_add_u32 s47, s47, 1")
    A("s_cmp_lt_u32 s47, 8")
    A("s_cbranch_scc1 L_ktrip")
    stamp(3)

    def allreduce(op, reg, tmp):
        for sh in (8, 4, 2, 1):
            nop(2)
            A(f"{op}_dpp v{reg}, v{reg}, v{reg} row_ror:{sh} row_mask:0xf bank_mask:0xf")
        A(f"v_mov_b32 v{tmp}, v{reg}")
        nop(2)
        A(f"v_permlane16_swap_b32 v{reg}, v{tmp}")
        nop(1)
        A(f"{op} v{reg}, v{reg}, v{tmp}")
        A(f"v_mov_b32 v{tmp}, v{reg}")
        nop(2)
        A(f"v_permlane32_swap_b32 v{reg}, v{tmp}")
        nop(1)
        A(f"{op} v{reg}, v{reg}, v{tmp}")

    M = T
    A(f"v_max3_f32 v{M}, v{SC}, v{SC+1}, v{SC+2}")
    for kk in range(3, 15, 2):
        A(f"v_max3_f32 v{M}, v{M}, v{SC+kk}, v{SC+kk+1}")
    A(f"v_max_f32 v{M}, v{M}, v{SC+15}")
    allreduce("v_max_f32", M, T + 2)
    for kk in range(16):
        A(f"v_sub_f32 v{SC+kk}, v{SC+kk}, v{M}")
    for kk in range(16):
        A(f"v_mul_f32 v{SC+kk}, s53, v{SC+kk}")
    for kk in range(16):
        A(f"v_exp_f32 v{SC+kk}, v{SC+kk}")
    nop(1)
    LS = T + 1
    A(f"v_add_f32 v{LS}, v{SC}, v{SC+1}")
    for kk in range(2, 16):
        A(f"v_add_f32 v{LS}, v{LS}, v{SC+kk}")
    for kk in range(16):
        A(f"v_cvt_pk_bf16_f32 v{SC+kk}, v{SC+kk}, v{SC+kk}")
    allreduce("v_add_f32", LS, T + 2)
    A("s_lshl_b32 s35, s3, 3")
    A(f"v_mov_b32 v{T+3}, s35")
    A(f"ds_write_b64 v{T+3}, v[{M}:{M+1}] offset:{L_ST}")
    A("s_waitcnt lgkmcnt(0)")
    A("s_barrier")
    stamp(4)

    A("s_mov_b32 s47, 0")
    A("L_vtrip:")
    for slot in range(8):
        for i in range(4):
            n = slot * 4 + i
            pr = SC + (n >> 4)
            j = n & 15
            for r in range(4):
                A(f"v_and_b32_dpp v{AR+4*i+r}, v{pr}, v{4+r} row_newbcast:{j} row_mask:0xf bank_mask:0xf")
        if slot == 7:
            for kk in range(14):
                A(f"v_mov_b32 v{SC+kk}, v{SC+kk+2}")
        A("s_waitcnt vmcnt(28)")
        for i in range(4):
            src = RING + (slot * 4 + i) * 4
            A(f"v_mfma_f32_16x16x32_bf16 v[{D}:{D+3}], v[{AR+4*i}:{AR+4*i+3}], v[{src}:{src+3}], v[{D}:{D+3}]")
        issue_group(slot)
    A("s_add_u32 s47, s47, 1")
    A("s_cmp_lt_u32 s47, 8")
    A("s_cbranch_scc1 L_vtrip")
    stamp(5)
    A("s_lshl_b32 s35, s3, 9")
    A("v_lshlrev_b32 v8, 4, v3")
    A("v_add3_u32 v8, v8, v10, s35")
    A("s_mov_b32 exec_hi, 0")
    nop(4)
    A(f"ds_write_b128 v8, v[{D}:{D+3}] offset:{L_OP}")
    A("s_waitcnt lgkmcnt(0)")
    A("s_barrier")
    A("s_endpgm")

    A("L_service:")
    X1 = 12
    X2 = 22
    VE = 25
    VXR = 26
    VW = 27
    DQ = 28
    Y = 32
    AR = 52
    G = 64
    T = 80
    BUF = 96
    A("s_sub_u32 s34, s3, 4")
    def srd(base, ptr, size):
        A(f"s_mov_b32 s{base}, s{ptr}")
        A(f"s_and_b32 s{base+1}, s{ptr+1}, 0xffff")
        A(f"s_mov_b32 s{base+2}, {size}")
        A(f"s_mov_b32 s{base+3}, 0x20000")
    A("s_mul_i32 s35, s28, 1280")
    A("s_add_u32 s40, s4, s35")
    A("s_addc_u32 s41, s5, 0")
    A("s_and_b32 s41, s41, 0xffff")
    A("s_mov_b32 s42, 1280")
    A("s_mov_b32 s43, 0x20000")
    srd(44, 10, 640 * 8192)
    srd(64, 26, WS_SIZE)
    A("v_lshlrev_b32 v8, 1, v0")
    A("v_lshrrev_b32 v9, 3, v2")
    A("v_lshlrev_b32 v9, 5, v9")
    A("v_lshl_add_u32 v9, v3, 3, v9")
    A("v_and_b32 v10, 7, v2")
    A("v_add_u32 v9, v9, v10")
    A("s_mul_i32 s35, s34, 160")
    A("v_add_u32 v9, s35, v9")
    A("v_lshlrev_b32 v9, 1, v9")
    for u in range(3):
        A(f"buffer_load_ushort v{X2+u}, v9, s[40:43], 0 offen offset:{u*128}")
    for i in range(10):
        A(f"buffer_load_ushort v{X1+i}, v8, s[40:43], 0 offen offset:{i*128}")
    A("s_lshl_b32 s36, s28, 7")
    A(f"buffer_load_dword v{VE}, off, s[64:67], s36 offset:{WS_E} sc1")
    A("s_lshl_b32 s36, s31, 5")
    A("v_lshlrev_b32 v10, 2, v0")
    A(f"buffer_load_dword v{VXR}, v10, s[40:43], s36 offen")
    A("v_lshlrev_b32 v10, 16, v3")
    A("v_lshl_add_u32 v10, v2, 4, v10")
    A(f"s_mul_i32 s35, s34, {160*8192}")
    A("s_lshl_b32 s36, s29, 8")
    A("s_add_u32 s35, s35, s36")
    for n in range(40):
        r = BUF + 4 * n
        A(f"buffer_load_dwordx4 v[{r}:{r+3}], v10, s[44:47], s35 offen {wpol}")
        if n != 39:
            A(f"s_add_u32 s35, s35, {8192 * (25 if (n & 7) == 7 else 1)}")
    A("s_barrier")
    srd(48, 16, 640 * 3456)
    srd(52, 18, 640 * 3456)
    srd(56, 20, 1728 * 1280)
    srd(60, 12, 4096 * 1280)
    srd(68, 22, 4 * 1280)
    A("v_mul_u32_u24 v27, 1280, v3")
    A("v_lshl_add_u32 v27, v2, 4, v27")
    for r in range(20):
        A(f"v_mov_b32 v{Y+r}, 0")
    for r in range(4):
        A(f"v_mov_b32 v{DQ+r}, 0")
    A("s_waitcnt vmcnt(40)")
    stamp(1)
    for i in range(10):
        A(f"v_lshlrev_b32 v{X1+i}, 16, v{X1+i}")
    for u in range(3):
        A(f"v_lshlrev_b32 v{X2+u}, 16, v{X2+u}")
    A(f"v_readfirstlane_b32 s72, v{VE}")
    A(f"v_add_f32 v{T}, v{X1}, v{X1+1}")
    for i in range(2, 10):
        A(f"v_add_f32 v{T}, v{T}, v{X1+i}")
    allreduce("v_add_f32", T, T + 1)
    A(f"s_mul_i32 s72, s72, {TAG_A}")
    A(f"s_add_u32 s72, s72, {TAG_C}")
    A(f"v_mul_f32 v{T}, 0x3acccccd, v{T}")
    A(f"v_sub_f32 v{T+2}, v{X1}, v{T}")
    A(f"v_mul_f32 v{T+1}, v{T+2}, v{T+2}")
    for i in range(1, 10):
        A(f"v_sub_f32 v{T+2}, v{X1+i}, v{T}")
        A(f"v_fma_f32 v{T+1}, v{T+2}, v{T+2}, v{T+1}")
    allreduce("v_add_f32", T + 1, T + 2)
    A(f"v_mul_f32 v{T+1}, 0x3acccccd, v{T+1}")
    A(f"v_cvt_pk_bf16_f32 v{T}, v{T}, v{T}")
    A(f"v_cvt_pk_bf16_f32 v{T+1}, v{T+1}, v{T+1}")
    A(f"v_lshlrev_b32 v{T}, 16, v{T}")
    A(f"v_lshlrev_b32 v{T+1}, 16, v{T+1}")
    A(f"v_add_f32 v{T+1}, 0x3727c5ac, v{T+1}")
    A(f"v_cvt_pk_bf16_f32 v{T+1}, v{T+1}, v{T+1}")
    A(f"v_lshlrev_b32 v{T+1}, 16, v{T+1}")
    A(f"v_sqrt_f32 v{T+1}, v{T+1}")
    nop(1)
    A(f"v_cvt_pk_bf16_f32 v{T+1}, v{T+1}, v{T+1}")
    A(f"v_lshlrev_b32 v{T+1}, 16, v{T+1}")
    A(f"v_rcp_f32 v{T+2}, v{T+1}")
    nop(1)

    def normalize(regs):
        for r in regs:
            A(f"v_sub_f32 v{r}, v{r}, v{T}")
        for r in regs:
            A(f"v_cvt_pk_bf16_f32 v{r}, v{r}, v{r}")
        for r in regs:
            A(f"v_lshlrev_b32 v{r}, 16, v{r}")
        for k, r in enumerate(regs):
            A(f"v_mul_f32 v{T+3+k}, v{r}, v{T+2}")
        for k, r in enumerate(regs):
            A(f"v_fma_f32 v{r}, -v{T+3+k}, v{T+1}, v{r}")
        for k, r in enumerate(regs):
            A(f"v_fma_f32 v{r}, v{r}, v{T+2}, v{T+3+k}")
        for r in regs:
            A(f"v_cvt_pk_bf16_f32 v{r}, v{r}, v{r}")

    normalize([X2, X2 + 1, X2 + 2])
    nop(2)
    def mkA(setidx, preg, j):
        for r in range(4):
            A(f"v_and_b32_dpp v{AR+4*setidx+r}, v{preg}, v{4+r} row_newbcast:{j} row_mask:0xf bank_mask:0xf")

    mkA(0, X2, 0)
    for n in range(40):
        if n + 1 < 40:
            mkA((n + 1) & 1, X2 + ((n + 1) >> 4), (n + 1) & 15)
        else:
            nop(2)
        if (n & 3) == 0:
            A(f"s_waitcnt vmcnt({36 - n})")
        b = BUF + 4 * n
        a = AR + 4 * (n & 1)
        A(f"v_mfma_f32_16x16x32_bf16 v[{DQ}:{DQ+3}], v[{a}:{a+3}], v[{b}:{b+3}], v[{DQ}:{DQ+3}]")
    A("v_lshlrev_b32 v8, 5, v2")
    A("v_lshl_add_u32 v8, v3, 4, v8")
    A("s_lshl_b32 s35, s34, 9")
    A("v_add_u32 v9, s35, v8")
    A("s_mov_b32 exec_hi, 0")
    nop(5)
    A(f"ds_write_b128 v9, v[{DQ}:{DQ+3}] offset:{L_QP}")
    A("s_waitcnt lgkmcnt(0)")
    A("s_mov_b64 exec, -1")
    A("s_barrier")
    stamp(2)
    normalize([X1 + i for i in range(10)])

    A("s_mul_i32 s35, s32, 27")
    A("s_lshl_b32 s36, s33, 2")
    A("s_mul_i32 s37, s33, 3")
    A("s_add_u32 s37, s37, 3")
    A("s_cmp_lt_u32 s33, 3")
    A("s_cselect_b32 s36, s36, s37")
    A("s_cselect_b32 s38, 4, 3")
    A("s_add_u32 s35, s35, s36")
    A("s_add_u32 s35, s35, s34")
    A("s_cmp_ge_u32 s34, s38")
    A("s_cbranch_scc1 L_noffn")
    GW = BUF
    UW = BUF + 40
    DW = BUF + 80
    A("v_mul_u32_u24 v9, 3456, v0")
    A("s_lshl_b32 s36, s35, 4")
    A("v_add_u32 v9, s36, v9")
    A("s_mov_b32 s37, 0")
    for i in range(10):
        A(f"buffer_load_dwordx4 v[{GW+4*i}:{GW+4*i+3}], v9, s[48:51], s37 offen {wpol}")
        A(f"buffer_load_dwordx4 v[{UW+4*i}:{UW+4*i+3}], v9, s[52:55], s37 offen {wpol}")
        if i != 9:
            A(f"s_add_u32 s37, s37, {64*3456}")
    A(f"s_mul_i32 s37, s35, {8*1280}")
    for kap in range(2):
        for t in range(5):
            r = DW + 4 * (kap * 5 + t)
            A(f"buffer_load_dwordx4 v[{r}:{r+3}], v{VW}, s[56:59], s37 offen offset:{t*256} {wpol}")
        if kap == 0:
            A(f"s_add_u32 s37, s37, {4*1280}")
    for i in range(10):
        A(f"v_and_b32 v{T}, 0xffff, v{X1+i}")
        A(f"v_and_b32 v{T+1}, 0xffff0000, v{X1+i}")
        A(f"s_waitcnt vmcnt({10 + 2*(9-i)})")
        for r in range(4):
            c0 = "0" if i == 0 else f"v{G+2*r}"
            c1 = "0" if i == 0 else f"v{G+2*r+1}"
            A(f"v_dot2_f32_bf16 v{G+2*r}, v{GW+4*i+r}, v{T}, {c0}")
            A(f"v_dot2_f32_bf16 v{G+2*r+1}, v{GW+4*i+r}, v{T+1}, {c1}")
        for r in range(4):
            c0 = "0" if i == 0 else f"v{G+8+2*r}"
            c1 = "0" if i == 0 else f"v{G+8+2*r+1}"
            A(f"v_dot2_f32_bf16 v{G+8+2*r}, v{UW+4*i+r}, v{T}, {c0}")
            A(f"v_dot2_f32_bf16 v{G+8+2*r+1}, v{UW+4*i+r}, v{T+1}, {c1}")
        nop(3)
    for base in (G, G + 8):
        for e in (0, 1, 4, 5):
            A(f"v_permlane32_swap_b32 v{base+e}, v{base+e+2}")
    nop(1)
    for base in (G, G + 8):
        for e in (0, 1, 4, 5):
            A(f"v_add_f32 v{base+e}, v{base+e}, v{base+e+2}")
    nop(2)
    for base in (G, G + 8):
        for e in (0, 4):
            A(f"v_permlane16_swap_b32 v{base+e}, v{base+e+1}")
    nop(1)
    for base in (G, G + 8):
        for e in (0, 4):
            A(f"v_add_f32 v{base+e}, v{base+e}, v{base+e+1}")
    nop(2)
    for base in (G, G + 8):
        A(f"v_add_f32_dpp v{base}, v{base}, v{base} row_ror:8 row_mask:0xf bank_mask:0x3")
    nop(1)
    for base in (G, G + 8):
        A(f"v_add_f32_dpp v{base}, v{base+4}, v{base+4} row_ror:8 row_mask:0xf bank_mask:0xc")
    for dpp in ("row_half_mirror", "quad_perm:[1,0,3,2]", "quad_perm:[2,3,0,1]"):
        nop(2)
        for base in (G, G + 8):
            A(f"v_add_f32_dpp v{base}, v{base}, v{base} {dpp} row_mask:0xf bank_mask:0xf")
    nop(1)
    A(f"v_cvt_pk_bf16_f32 v{G}, v{G}, v{G}")
    A(f"v_cvt_pk_bf16_f32 v{G+8}, v{G+8}, v{G+8}")
    A(f"v_lshlrev_b32 v{G}, 16, v{G}")
    A(f"v_lshlrev_b32 v{G+8}, 16, v{G+8}")
    A(f"v_max_f32 v{G}, 0, v{G}")
    A(f"v_mul_f32 v{G}, v{G}, v{G+8}")
    A(f"v_cvt_pk_bf16_f32 v{G}, v{G}, v{G}")
    A("s_waitcnt vmcnt(0)")
    nop(2)
    mkA(0, G, 0)
    mkA(1, G, 8)
    nop(2)
    for kap in range(2):
        for t in range(5):
            b = DW + 4 * (kap * 5 + t)
            a = AR + 4 * kap
            A(f"v_mfma_f32_16x16x32_bf16 v[{Y+4*t}:{Y+4*t+3}], v[{a}:{a+3}], v[{b}:{b+3}], v[{Y+4*t}:{Y+4*t+3}]")
        if kap == 0:
            nop(2)
    A("L_noffn:")
    A("s_lshl_b32 s35, s29, 7")
    A("s_lshl_b32 s36, s34, 5")
    A("s_add_u32 s35, s35, s36")
    A("s_mul_i32 s35, s35, 1280")
    for kap in range(8):
        for t in range(5):
            r = BUF + 4 * (kap * 5 + t)
            A(f"buffer_load_dwordx4 v[{r}:{r+3}], v{VW}, s[60:63], s35 offen offset:{t*256} {wpol}")
        if kap != 7:
            A(f"s_add_u32 s35, s35, {4*1280}")
    stamp(3)
    A("s_barrier")
    A("v_mov_b32 v8, 0")
    A(f"ds_read_b128 v[{T}:{T+3}], v8 offset:{L_ST}")
    A(f"ds_read_b128 v[{T+4}:{T+7}], v8 offset:{L_ST+16}")
    A(f"s_mov_b32 s73, {hex(LOG2E)}")
    A("s_waitcnt lgkmcnt(0)")
    A(f"v_max3_f32 v{T+8}, v{T}, v{T+2}, v{T+4}")
    A(f"v_max_f32 v{T+8}, v{T+8}, v{T+6}")
    for w in range(4):
        A(f"v_sub_f32 v{G+w}, v{T+2*w}, v{T+8}")
    for w in range(4):
        A(f"v_mul_f32 v{G+w}, s73, v{G+w}")
    for w in range(4):
        A(f"v_exp_f32 v{G+w}, v{G+w}")
    nop(1)
    A(f"v_mul_f32 v{T+10}, v{G}, v{T+1}")
    for w in range(1, 4):
        A(f"v_fma_f32 v{T+10}, v{G+w}, v{T+2*w+1}, v{T+10}")
    A(f"v_mov_b32 v{T+9}, s72")
    A(f"v_mov_b32 v{T+11}, s72")
    A("s_lshl_b32 s35, s30, 7")
    A(f"s_add_u32 s35, s35, {WS_ST}")
    A("s_cmp_lg_u32 s34, 0")
    A("s_cbranch_scc1 L_nopub")
    A("s_mov_b64 exec, 1")
    A(f"buffer_store_dwordx4 v[{T+8}:{T+11}], off, s[64:67], s35 sc1")
    A("s_mov_b64 exec, -1")
    A("L_nopub:")
    A("s_xor_b32 s35, s35, 128")
    A(f"s_mov_b32 s36, {SPIN}")
    A("L_poll1:")
    A(f"buffer_load_dwordx4 v[{T+12}:{T+15}], off, s[64:67], s35 sc1")
    A("s_waitcnt vmcnt(0)")
    A(f"v_cmp_ne_u32 vcc, s72, v{T+13}")
    A(f"v_cmp_ne_u32_e64 s[74:75], s72, v{T+15}")
    nop(2)
    A("s_or_b64 s[74:75], vcc, s[74:75]")
    A("s_cbranch_scc0 L_poll1_done")
    A("s_sub_u32 s36, s36, 1")
    A("s_cmp_lg_u32 s36, 0")
    A("s_cbranch_scc1 L_poll1")
    A("L_poll1_done:")
    A(f"v_max_f32 v{G+4}, v{T+8}, v{T+12}")
    A(f"v_sub_f32 v{G+5}, v{T+8}, v{G+4}")
    A(f"v_sub_f32 v{G+6}, v{T+12}, v{G+4}")
    A(f"v_mul_f32 v{G+5}, s73, v{G+5}")
    A(f"v_mul_f32 v{G+6}, s73, v{G+6}")
    A(f"v_exp_f32 v{G+5}, v{G+5}")
    A(f"v_exp_f32 v{G+6}, v{G+6}")
    nop(1)
    A(f"v_mul_f32 v{G+7}, v{G+5}, v{T+10}")
    A(f"v_fma_f32 v{G+7}, v{G+6}, v{T+14}, v{G+7}")
    A(f"v_rcp_f32 v{G+6}, v{G+7}")
    nop(1)
    A(f"v_fma_f32 v{G+4}, -v{G+7}, v{G+6}, 1.0")
    A(f"v_fma_f32 v{G+6}, v{G+4}, v{G+6}, v{G+6}")
    A(f"v_mul_f32 v{G+5}, v{G+5}, v{G+6}")
    for w in range(4):
        A(f"v_mul_f32 v{G+w}, v{G+w}, v{G+5}")
    A("v_and_b32 v9, 7, v2")
    A("v_lshl_add_u32 v9, v9, 2, v3")
    A("s_lshl_b32 s35, s34, 5")
    A("v_add_u32 v9, s35, v9")
    A("v_lshlrev_b32 v9, 2, v9")
    A("v_lshlrev_b32 v8, 5, v2")
    A("v_lshl_add_u32 v8, v3, 4, v8")
    A("s_mul_i32 s35, s34, 2560")
    A("v_add_u32 v8, s35, v8")
    A("s_lshl_b32 s35, s34, 6")
    A("v_add_u32 v10, s35, v0")
    A("s_lshl_b32 s35, s34, 4")
    A("s_add_u32 s35, s35, 256")
    A("v_add_u32 v11, s35, v2")
    A(f"v_lshlrev_b32 v{T+12}, 3, v10")
    A(f"v_lshlrev_b32 v{T+13}, 3, v11")
    for (src, dst) in ((10, T + 14), (11, T + 15)):
        A(f"v_lshrrev_b32 v{dst}, 3, v{src}")
        A(f"v_lshlrev_b32 v{dst}, 13, v{dst}")
        A(f"v_and_b32 v{src}, 7, v{src}")
        A(f"v_lshl_add_u32 v{dst}, v{src}, 4, v{dst}")
    A("v_cmp_gt_u32 vcc, 16, v0")
    A(f"v_mov_b32 v10, 0x7ffffff0")
    nop(1)
    A(f"v_cndmask_b32 v{T+15}, v10, v{T+15}, vcc")
    A(f"s_mul_i32 s76, s28, {40*8192}")
    A(f"s_add_u32 s76, s76, {WS_Y}")
    A("s_lshl_b32 s77, s31, 7")
    A("s_add_u32 s77, s77, s76")
    stamp(4)
    A("s_barrier")
    stamp(5)
    for w in range(4):
        A(f"ds_read_b32 v{T+w}, v9 offset:{L_OP+w*512}")
    A("s_waitcnt lgkmcnt(0)")
    A(f"v_mul_f32 v{T}, v{T}, v{G}")
    for w in range(1, 4):
        A(f"v_fma_f32 v{T}, v{T+w}, v{G+w}, v{T}")
    A(f"v_cvt_pk_bf16_f32 v{T}, v{T}, v{T}")
    nop(2)
    mkA(0, T, 0)
    for kap in range(8):
        if kap + 1 < 8:
            mkA((kap + 1) & 1, T, kap + 1)
        else:
            nop(2)
        a = AR + 4 * (kap & 1)
        for t in range(5):
            b = BUF + 4 * (kap * 5 + t)
            A(f"v_mfma_f32_16x16x32_bf16 v[{Y+4*t}:{Y+4*t+3}], v[{a}:{a+3}], v[{b}:{b+3}], v[{Y+4*t}:{Y+4*t+3}]")
    A("s_mov_b32 exec_hi, 0")
    nop(5)
    for t in range(5):
        A(f"ds_write_b128 v8, v[{Y+4*t}:{Y+4*t+3}] offset:{L_YP+t*512}")
    A("s_mov_b64 exec, -1")
    A("s_waitcnt lgkmcnt(0)")
    A("s_barrier")
    for vv in range(4):
        A(f"ds_read_b64 v[{G+2*vv}:{G+2*vv+1}], v{T+12} offset:{L_YP+vv*2560}")
        A(f"ds_read_b64 v[{G+8+2*vv}:{G+8+2*vv+1}], v{T+13} offset:{L_YP+vv*2560}")
    A(f"v_mov_b32 v{T+1}, s72")
    A(f"v_mov_b32 v{T+3}, s72")
    A(f"v_mov_b32 v{T+5}, s72")
    A(f"v_mov_b32 v{T+7}, s72")
    A("s_waitcnt lgkmcnt(0)")
    for (base, dst) in ((G, T), (G + 8, T + 4)):
        A(f"v_add_f32 v{base}, v{base}, v{base+2}")
        A(f"v_add_f32 v{base+1}, v{base+1}, v{base+3}")
        A(f"v_add_f32 v{base+4}, v{base+4}, v{base+6}")
        A(f"v_add_f32 v{base+5}, v{base+5}, v{base+7}")
        A(f"v_add_f32 v{dst}, v{base}, v{base+4}")
        A(f"v_add_f32 v{dst+2}, v{base+1}, v{base+5}")
    A(f"buffer_store_dwordx4 v[{T}:{T+3}], v{T+14}, s[64:67], s77 offen sc1")
    A(f"buffer_store_dwordx4 v[{T+4}:{T+7}], v{T+15}, s[64:67], s77 offen sc1")
    stamp(6)
    A("s_cmp_lg_u32 s34, 0")
    A("s_cbranch_scc1 L_end")
    A("s_cmp_ge_u32 s31, 40")
    A("s_cbranch_scc1 L_end")
    A("s_lshl_b32 s35, s31, 13")
    A("s_add_u32 s35, s35, s76")
    A("v_lshlrev_b32 v9, 4, v0")
    A("v_add_u32 v10, 0x1000, v9")
    A(f"s_mov_b32 s36, {SPIN}")
    A("L_poll2:")
    for n in range(8):
        r = BUF + 4 * n
        A(f"buffer_load_dwordx4 v[{r}:{r+3}], v{9 + (n >> 2)}, s[64:67], s35 offen offset:{(n&3)*1024} sc1")
    A("s_waitcnt vmcnt(0)")
    A(f"v_min3_u32 v{T}, v{BUF+1}, v{BUF+3}, v{BUF+5}")
    A(f"v_max3_u32 v{T+1}, v{BUF+1}, v{BUF+3}, v{BUF+5}")
    for q in range(7, 31, 4):
        A(f"v_min3_u32 v{T}, v{T}, v{BUF+q}, v{BUF+q+2}")
        A(f"v_max3_u32 v{T+1}, v{T+1}, v{BUF+q}, v{BUF+q+2}")
    A(f"v_min_u32 v{T}, v{T}, v{BUF+31}")
    A(f"v_max_u32 v{T+1}, v{T+1}, v{BUF+31}")
    A(f"v_cmp_ne_u32 vcc, s72, v{T}")
    A(f"v_cmp_ne_u32_e64 s[74:75], s72, v{T+1}")
    nop(2)
    A("s_or_b64 s[74:75], vcc, s[74:75]")
    A("s_cbranch_scc0 L_poll2_done")
    A("s_sub_u32 s36, s36, 1")
    A("s_cmp_lg_u32 s36, 0")
    A("s_cbranch_scc1 L_poll2")
    A("L_poll2_done:")
    A(f"v_add_f32 v{T}, v{BUF}, v{BUF+4}")
    A(f"v_add_f32 v{T+1}, v{BUF+2}, v{BUF+6}")
    A(f"v_add_f32 v{T+2}, v{BUF+8}, v{BUF+12}")
    A(f"v_add_f32 v{T+3}, v{BUF+10}, v{BUF+14}")
    A(f"v_add_f32 v{T+4}, v{BUF+16}, v{BUF+20}")
    A(f"v_add_f32 v{T+5}, v{BUF+18}, v{BUF+22}")
    A(f"v_add_f32 v{T+6}, v{BUF+24}, v{BUF+28}")
    A(f"v_add_f32 v{T+7}, v{BUF+26}, v{BUF+30}")
    A(f"v_add_f32 v{T}, v{T}, v{T+2}")
    A(f"v_add_f32 v{T+1}, v{T+1}, v{T+3}")
    A(f"v_add_f32 v{T+4}, v{T+4}, v{T+6}")
    A(f"v_add_f32 v{T+5}, v{T+5}, v{T+7}")
    A(f"v_add_f32 v{T}, v{T}, v{T+4}")
    A(f"v_add_f32 v{T+1}, v{T+1}, v{T+5}")
    nop(2)
    A(f"v_permlane32_swap_b32 v{T}, v{T+1}")
    nop(1)
    A(f"v_add_f32 v{T}, v{T}, v{T+1}")
    A(f"v_mov_b32 v{T+1}, v{T}")
    nop(2)
    A(f"v_permlane16_swap_b32 v{T}, v{T+1}")
    nop(1)
    A(f"v_add_f32 v{T}, v{T}, v{T+1}")
    nop(2)
    A(f"v_add_f32_dpp v{T}, v{T}, v{T} row_ror:8 row_mask:0xf bank_mask:0xf")
    A(f"v_mov_b32 v{T+1}, v{T}")
    nop(2)
    A(f"v_permlane32_swap_b32 v{T}, v{T+1}")
    A(f"v_lshlrev_b32 v{T+2}, 16, v{VXR}")
    A(f"v_and_b32 v{T+3}, 0xffff0000, v{VXR}")
    A(f"v_add_f32 v{T}, v{T}, v{T+2}")
    A(f"v_add_f32 v{T+1}, v{T+1}, v{T+3}")
    A(f"v_cvt_pk_bf16_f32 v{T}, v{T}, v{T+1}")
    A("s_mul_i32 s35, s28, 1280")
    A("s_lshl_b32 s36, s31, 5")
    A("s_add_u32 s35, s35, s36")
    A("v_lshlrev_b32 v9, 2, v0")
    A("s_mov_b64 exec, 0xff")
    A(f"buffer_store_dword v{T}, v9, s[68:71], s35 offen")
    A("s_cmp_lg_u32 s31, 0")
    A("s_cbranch_scc1 L_fin")
    A("s_mov_b64 exec, 1")
    A(f"v_mov_b32 v{T+1}, s72")
    A("s_lshl_b32 s36, s28, 7")
    A(f"buffer_store_dword v{T+1}, off, s[64:67], s36 offset:{WS_E} sc1")
    A("L_fin:")
    stamp(7)
    A("L_end:")
    A("s_endpgm")

    body = "\n".join(("    " + l) if not l.endswith(":") else l for l in L) + "\n"
    return (HEADER % (LDS_SIZE, NAME, NAME, NAME)) + body + (FOOTER % NAME)


if __name__ == "__main__":
    kw = {}
    out = f"cdna_kernels/{NAME}.s"
    for a in sys.argv[1:]:
        if a.startswith("out="):
            out = a[4:]
            continue
        k, v = a.split("=")
        try:
            v = int(v)
        except ValueError:
            pass
        kw[k] = v
    open(out, "w").write(gen(**kw))
    print("wrote", out)
```

```python
import sys

NAME = "parallel_sum__gqa_block_cached__glu_gated_reglu__decode"

HEADER = """; Fused LN -> {GQA decode attention, ReGLU FFN} -> residual sum.  Generated by gen_kernel.py (hand-designed schedule).
; @launch grid=(256,1,1) block=(512,1,1) lds=%d
.amdgcn_target "amdgcn-amd-amdhsa--gfx950"
.text
.globl %s_kernel
.p2align 8
.type %s_kernel,@function
%s_kernel:
"""

FOOTER = """.section .rodata,"a"
.p2align 6
.amdhsa_kernel %s_kernel
  .amdhsa_next_free_vgpr 256
  .amdhsa_next_free_sgpr 102
  .amdhsa_accum_offset 256
  .amdhsa_group_segment_fixed_size 0
  .amdhsa_kernarg_size 96
  .amdhsa_user_sgpr_count 2
  .amdhsa_user_sgpr_kernarg_segment_ptr 1
  .amdhsa_system_sgpr_workgroup_id_x 1
.end_amdhsa_kernel
"""

L_QP = 0
L_ST = 2048
L_OP = 2560
L_YP = 4608
LDS_SIZE = 4608 + 4 * 2560

WS_E = 0
WS_ST = 4096
WS_Y = 65536
WS_DBG = 0x180000
WS_SIZE = 0x200000

TAG_A = 1664525
TAG_C = 1013904223
LOG2E = 0x3FB8AA3B
SCALE = 0x3DB504F3
SPIN = 20000


def gen(WOP=0, FFP=0, rot=0, LAL=8, GS=2, PRE=32, PREV=16, B0=0, prio=0, NPRE=8, stamps=False, kpol="nt", wpol="", fpol="", dump=False, noffn=0, nowo=0, nowq=0):
    L = []
    A = L.append

    def nop(n):
        assert 1 <= n <= 16
        A(f"s_nop {n-1}")

    def stamp(idx):
        if not stamps:
            return
        A("s_memrealtime s[90:91]")
        A("s_waitcnt lgkmcnt(0)")
        A(f"v_writelane_b32 v62, s90, {idx}")

    def stamp_flush():
        if not stamps:
            return
        A("s_mov_b64 exec, 0xffff")
        A("v_lshlrev_b32 v61, 2, v63")
        A("buffer_store_dword v62, v61, s[84:87], s88 offen")

    A("s_cmp_ge_u32 s2, 256")
    A("s_cbranch_scc1 L_end")
    A("s_load_dwordx16 s[4:19], s[0:1], 0")
    A("s_load_dwordx8 s[20:27], s[0:1], 64")
    A("v_lshrrev_b32 v1, 6, v0")
    A("v_and_b32 v0, 63, v0")
    A("v_readfirstlane_b32 s3, v1")
    if rot:
        A(f"s_add_u32 s32, s2, {rot}")
        A("s_and_b32 s32, s32, 7")
    else:
        A("s_and_b32 s32, s2, 7")
    A("s_lshr_b32 s35, s2, 3")
    A("s_lshr_b32 s36, s35, 3")
    A("s_and_b32 s37, s35, 7")
    A("s_lshr_b32 s28, s37, 1")
    A("s_and_b32 s38, s37, 1")
    A("s_lshl_b32 s39, s36, 3")
    A("s_add_u32 s29, s32, s39")
    A("s_lshl_b32 s39, s28, 5")
    A("s_add_u32 s39, s39, s29")
    A("s_lshl_b32 s39, s39, 1")
    A("s_add_u32 s30, s39, s38")
    A("s_lshl_b32 s33, s36, 1")
    A("s_add_u32 s33, s33, s38")
    A("s_lshl_b32 s31, s33, 3")
    A("s_add_u32 s31, s31, s32")
    A("v_and_b32 v2, 15, v0")
    A("v_lshrrev_b32 v3, 4, v0")
    A("v_and_b32 v8, 1, v2")
    A("v_lshlrev_b32 v8, 4, v8")
    A("v_mov_b32 v9, 0xffff")
    A("v_lshlrev_b32 v9, v8, v9")
    A("v_lshrrev_b32 v10, 1, v2")
    for r in range(4):
        A(f"v_cmp_eq_u32 vcc, {r}, v10")
        nop(2)
        A(f"v_cndmask_b32 v{4+r}, 0, v9, vcc")
    A("s_waitcnt lgkmcnt(0)")
    if stamps:
        A("s_mov_b32 s84, s26")
        A("s_and_b32 s85, s27, 0xffff")
        A(f"s_mov_b32 s86, {WS_SIZE}")
        A("s_mov_b32 s87, 0x20000")
        A("s_lshl_b32 s88, s2, 3")
        A("s_add_u32 s88, s88, s3")
        A("s_lshl_b32 s88, s88, 6")
        A(f"s_add_u32 s88, s88, {WS_DBG}")
        A("v_mov_b32 v62, 0")
        A("v_mov_b32 v63, v0")
    stamp(0)
    A("s_cmp_ge_u32 s3, 4")
    A("s_cbranch_scc1 L_service")

    RING = 128
    Q = 12
    S = 16
    SC = 32
    AR = 64
    D = 80
    T = 84
    A("s_lshl_b32 s35, s30, 20")
    A("s_lshr_b32 s36, s30, 12")
    A("s_add_u32 s40, s6, s35")
    A("s_addc_u32 s41, s7, s36")
    A("s_and_b32 s41, s41, 0xffff")
    A("s_mov_b32 s42, 0x100000")
    A("s_mov_b32 s43, 0x20000")
    A("s_add_u32 s44, s8, s35")
    A("s_addc_u32 s45, s9, s36")
    A("s_and_b32 s45, s45, 0xffff")
    A("s_lshl_b32 s35, s3, 12")
    A("v_lshlrev_b32 v11, 4, v0")
    A("v_add_u32 v11, s35, v11")
    A("s_mov_b32 s46, 0")

    assert PREV % GS == 0 and LAL <= PREV <= 32 and LAL % GS == 0 and PRE % GS == 0 and LAL <= PRE <= 32 and LAL + GS <= 32 and 16 % GS == 0

    def issue_load(m):
        r = RING + (m % 32) * 4
        A(f"buffer_load_dwordx4 v[{r}:{r+3}], v11, s[40:43], s46 offen offset:{(m % 4)*1024} {kpol}")
        if m % 4 == 3:
            A("s_add_u32 s46, s46, 0x4000")

    for m in range(LAL):
        if B0 and m == NPRE:
            A("s_barrier")
        issue_load(m)
    if B0 and NPRE >= LAL:
        A("s_barrier")
    for m0 in range(LAL, PRE, GS):
        A(f"s_waitcnt vmcnt({LAL - GS})")
        for m in range(m0, m0 + GS):
            issue_load(m)
    A("s_mov_b32 s48, 0xaaaaaaaa")
    A("s_mov_b32 s49, 0xaaaaaaaa")
    A("s_mov_b32 s50, 0xcccccccc")
    A("s_mov_b32 s51, 0xcccccccc")
    A(f"s_mov_b32 s52, {hex(SCALE)}")
    A(f"s_mov_b32 s53, {hex(LOG2E)}")
    A("v_lshlrev_b32 v10, 5, v2")
    for r in range(4):
        A(f"v_mov_b32 v{D+r}, 0")
    stamp(1)
    A("s_barrier")
    stamp(2)
    for vv in range(4):
        A(f"ds_read_b128 v[{16+vv*8}:{19+vv*8}], v10 offset:{L_QP+vv*512}")
        A(f"ds_read_b128 v[{20+vv*8}:{23+vv*8}], v10 offset:{L_QP+vv*512+16}")
    A("s_waitcnt lgkmcnt(0)")
    for e in range(8):
        A(f"v_add_f32 v{16+e}, v{16+e}, v{24+e}")
        A(f"v_add_f32 v{32+e}, v{32+e}, v{40+e}")
    for e in range(8):
        A(f"v_add_f32 v{16+e}, v{16+e}, v{32+e}")
    for r in range(4):
        A(f"v_cvt_pk_bf16_f32 v{Q+r}, v{16+2*r}, v{17+2*r}")
    A("s_mov_b32 s47, 0")
    nop(2)

    A("s_mov_b64 vcc, -1")
    A("L_ktrip:")
    for half in range(2):
        for n in range(16 * half, 16 * half + 16, GS):
            if n == 32 - LAL:
                A("s_cmp_lg_u32 s47, 7")
                A("s_cbranch_scc1 L_knosw")
                A("s_mov_b32 s40, s44")
                A("s_mov_b32 s41, s45")
                A("s_mov_b32 s46, 0")
                A("L_knosw:")
            A(f"s_waitcnt vmcnt({LAL - GS})")
            skip = n + LAL < PRE
            if skip:
                A(f"s_cbranch_vccnz L_kskip{n}")
            for m in range(n + LAL, n + LAL + GS):
                issue_load(m)
            if skip:
                A(f"L_kskip{n}:")
            for r in range(4):
                for i in range(GS):
                    src = RING + (n + i) * 4 + r
                    d = S + (n + i) % 16
                    c = "0" if r == 0 else f"v{d}"
                    A(f"v_dot2_f32_bf16 v{d}, v{src}, v{Q+r}, {c}")
        nop(3)
        for j in range(8):
            A(f"v_add_f32_dpp v{S+j}, v{S+j}, v{S+j} row_ror:8 row_mask:0xf bank_mask:0x3")
        for j in range(8):
            A(f"v_add_f32_dpp v{S+j}, v{S+j+8}, v{S+j+8} row_ror:8 row_mask:0xf bank_mask:0xc")
        for j in range(4):
            A(f"v_add_f32_dpp v{S+j}, v{S+j}, v{S+j} row_half_mirror row_mask:0xf bank_mask:0x5")
        for j in range(4):
            A(f"v_add_f32_dpp v{S+j}, v{S+j+4}, v{S+j+4} row_half_mirror row_mask:0xf bank_mask:0xa")
        A(f"v_cndmask_b32_e64 v{T+0}, v{S+2}, v{S+0}, s[50:51]")
        A(f"v_cndmask_b32_e64 v{T+2}, v{S+0}, v{S+2}, s[50:51]")
        A(f"v_cndmask_b32_e64 v{T+1}, v{S+3}, v{S+1}, s[50:51]")
        A(f"v_cndmask_b32_e64 v{T+3}, v{S+1}, v{S+3}, s[50:51]")
        nop(1)
        A(f"v_add_f32_dpp v{T+2}, v{T+0}, v{T+2} quad_perm:[2,3,0,1] row_mask:0xf bank_mask:0xf")
        A(f"v_add_f32_dpp v{T+3}, v{T+1}, v{T+3} quad_perm:[2,3,0,1] row_mask:0xf bank_mask:0xf")
        A(f"v_cndmask_b32_e64 v{T+0}, v{T+3}, v{T+2}, s[48:49]")
        A(f"v_cndmask_b32_e64 v{T+1}, v{T+2}, v{T+3}, s[48:49]")
        nop(2)
        A(f"v_add_f32_dpp v{T+1}, v{T+0}, v{T+1} quad_perm:[1,0,3,2] row_mask:0xf bank_mask:0xf")
        A(f"v_cvt_pk_bf16_f32 v{T+1}, v{T+1}, v{T+1}")
        A(f"v_lshlrev_b32 v{T+1}, 16, v{T+1}")
        A(f"v_mul_f32 v{T+1}, s52, v{T+1}")
        A(f"v_cvt_pk_bf16_f32 v{T+1}, v{T+1}, v{T+1}")
        if half == 0:
            A(f"v_lshlrev_b32 v{T+4}, 16, v{T+1}")
        else:
            for kk in range(14):
                A(f"v_mov_b32 v{SC+kk}, v{SC+kk+2}")
            A(f"v_mov_b32 v{SC+14}, v{T+4}")
            A(f"v_lshlrev_b32 v{SC+15}, 16, v{T+1}")
    A("s_mov_b64 vcc, 0")
    A("s_add_u32 s47, s47, 1")
    A("s_cmp_lt_u32 s47, 8")
    A("s_cbranch_scc1 L_ktrip")
    stamp(3)
    for m in range(LAL, PREV):
        issue_load(m)

    def allreduce(op, reg, tmp):
        for sh in (8, 4, 2, 1):
            nop(2)
            A(f"{op}_dpp v{reg}, v{reg}, v{reg} row_ror:{sh} row_mask:0xf bank_mask:0xf")
        A(f"v_mov_b32 v{tmp}, v{reg}")
        nop(2)
        A(f"v_permlane16_swap_b32 v{reg}, v{tmp}")
        nop(1)
        A(f"{op} v{reg}, v{reg}, v{tmp}")
        A(f"v_mov_b32 v{tmp}, v{reg}")
        nop(2)
        A(f"v_permlane32_swap_b32 v{reg}, v{tmp}")
        nop(1)
        A(f"{op} v{reg}, v{reg}, v{tmp}")

    M = T
    A(f"v_max3_f32 v{M}, v{SC}, v{SC+1}, v{SC+2}")
    for kk in range(3, 15, 2):
        A(f"v_max3_f32 v{M}, v{M}, v{SC+kk}, v{SC+kk+1}")
    A(f"v_max_f32 v{M}, v{M}, v{SC+15}")
    allreduce("v_max_f32", M, T + 2)
    for kk in range(16):
        A(f"v_sub_f32 v{SC+kk}, v{SC+kk}, v{M}")
    for kk in range(16):
        A(f"v_mul_f32 v{SC+kk}, s53, v{SC+kk}")
    for kk in range(16):
        A(f"v_exp_f32 v{SC+kk}, v{SC+kk}")
    nop(1)
    LS = T + 1
    A(f"v_add_f32 v{LS}, v{SC}, v{SC+1}")
    for kk in range(2, 16):
        A(f"v_add_f32 v{LS}, v{LS}, v{SC+kk}")
    for kk in range(16):
        A(f"v_cvt_pk_bf16_f32 v{SC+kk}, v{SC+kk}, v{SC+kk}")
    allreduce("v_add_f32", LS, T + 2)
    A("s_lshl_b32 s35, s3, 3")
    A(f"v_mov_b32 v{T+3}, s35")
    A(f"ds_write_b64 v{T+3}, v[{M}:{M+1}] offset:{L_ST}")
    A("s_waitcnt lgkmcnt(0)")
    A("s_barrier")
    stamp(4)

    A("s_mov_b32 s47, 0")
    A("s_mov_b64 vcc, -1")
    A("L_vtrip:")
    for n in range(0, 32, GS):
        for i in range(GS):
            pr = SC + ((n + i) >> 4)
            j = (n + i) & 15
            for r in range(4):
                A(f"v_and_b32_dpp v{AR+4*i+r}, v{pr}, v{4+r} row_newbcast:{j} row_mask:0xf bank_mask:0xf")
        if n + GS == 32:
            for kk in range(14):
                A(f"v_mov_b32 v{SC+kk}, v{SC+kk+2}")
        A(f"s_waitcnt vmcnt({LAL - GS})")
        skip = n + LAL < PREV
        if skip:
            A(f"s_cbranch_vccnz L_vskip{n}")
        for m in range(n + LAL, n + LAL + GS):
            issue_load(m)
        if skip:
            A(f"L_vskip{n}:")
            nop(1)
        for i in range(GS):
            src = RING + (n + i) * 4
            A(f"v_mfma_f32_16x16x32_bf16 v[{D}:{D+3}], v[{AR+4*i}:{AR+4*i+3}], v[{src}:{src+3}], v[{D}:{D+3}]")
    A("s_mov_b64 vcc, 0")
    A("s_add_u32 s47, s47, 1")
    A("s_cmp_lt_u32 s47, 8")
    A("s_cbranch_scc1 L_vtrip")
    stamp(5)
    A("s_lshl_b32 s35, s3, 9")
    A("v_lshlrev_b32 v8, 4, v3")
    A("v_add3_u32 v8, v8, v10, s35")
    A("s_mov_b32 exec_hi, 0")
    nop(4)
    A(f"ds_write_b128 v8, v[{D}:{D+3}] offset:{L_OP}")
    A("s_waitcnt lgkmcnt(0)")
    A("s_barrier")
    stamp(6)
    stamp_flush()
    A("s_endpgm")

    A("L_service:")
    if prio:
        A(f"s_setprio {prio}")
    X1 = 12
    X2 = 22
    VE = 25
    VXR = 26
    VW = 27
    DQ = 28
    Y = 32
    AR = 52
    G = 64
    T = 80
    BUF = 96
    A("s_sub_u32 s34, s3, 4")
    def srd(base, ptr, size):
        A(f"s_mov_b32 s{base}, s{ptr}")
        A(f"s_and_b32 s{base+1}, s{ptr+1}, 0xffff")
        A(f"s_mov_b32 s{base+2}, {size}")
        A(f"s_mov_b32 s{base+3}, 0x20000")
    A("s_mul_i32 s35, s28, 1280")
    A("s_add_u32 s40, s4, s35")
    A("s_addc_u32 s41, s5, 0")
    A("s_and_b32 s41, s41, 0xffff")
    A("s_mov_b32 s42, 1280")
    A("s_mov_b32 s43, 0x20000")
    srd(44, 10, 640 * 8192)
    srd(64, 26, WS_SIZE)
    A("v_lshlrev_b32 v8, 1, v0")
    A("v_lshrrev_b32 v9, 3, v2")
    A("v_lshlrev_b32 v9, 5, v9")
    A("v_lshl_add_u32 v9, v3, 3, v9")
    A("v_and_b32 v10, 7, v2")
    A("v_add_u32 v9, v9, v10")
    A("s_mul_i32 s35, s34, 160")
    A("v_add_u32 v9, s35, v9")
    A("v_lshlrev_b32 v9, 1, v9")
    for u in range(3):
        A(f"buffer_load_ushort v{X2+u}, v9, s[40:43], 0 offen offset:{u*128}")
    for i in range(10):
        A(f"buffer_load_ushort v{X1+i}, v8, s[40:43], 0 offen offset:{i*128}")
    A("s_lshl_b32 s36, s28, 7")
    A(f"buffer_load_dword v{VE}, off, s[64:67], s36 offset:{WS_E} sc1")
    A("s_lshl_b32 s36, s31, 5")
    A("v_lshlrev_b32 v10, 2, v0")
    A(f"buffer_load_dword v{VXR}, v10, s[40:43], s36 offen")
    stamp(12)
    A("v_lshlrev_b32 v10, 16, v3")
    A("v_lshl_add_u32 v10, v2, 4, v10")
    A(f"s_mul_i32 s35, s34, {160*8192}")
    A("s_lshl_b32 s36, s29, 8")
    A("s_add_u32 s35, s35, s36")
    for n in range(40):
        r = BUF + 4 * n
        if not nowq:
            A(f"buffer_load_dwordx4 v[{r}:{r+3}], v10, s[44:47], s35 offen {wpol}")
        if n != 39:
            A(f"s_add_u32 s35, s35, {8192 * (25 if (n & 7) == 7 else 1)}")
    stamp(13)
    if B0:
        A("s_barrier")
    srd(48, 16, 640 * 3456)
    srd(52, 18, 640 * 3456)
    srd(56, 20, 1728 * 1280)
    srd(60, 12, 4096 * 1280)
    srd(68, 22, 4 * 1280)
    A("v_mul_u32_u24 v27, 1280, v3")
    A("v_lshl_add_u32 v27, v2, 4, v27")
    for r in range(20):
        A(f"v_mov_b32 v{Y+r}, 0")
    for r in range(4):
        A(f"v_mov_b32 v{DQ+r}, 0")
    A("s_waitcnt vmcnt(%d)" % (0 if nowq else 40))
    stamp(1)
    for i in range(10):
        A(f"v_lshlrev_b32 v{X1+i}, 16, v{X1+i}")
    for u in range(3):
        A(f"v_lshlrev_b32 v{X2+u}, 16, v{X2+u}")
    A(f"v_readfirstlane_b32 s72, v{VE}")
    A(f"v_add_f32 v{T}, v{X1}, v{X1+1}")
    for i in range(2, 10):
        A(f"v_add_f32 v{T}, v{T}, v{X1+i}")
    allreduce("v_add_f32", T, T + 1)
    A(f"s_mul_i32 s72, s72, {TAG_A}")
    A(f"s_add_u32 s72, s72, {TAG_C}")
    A(f"v_mul_f32 v{T}, 0x3acccccd, v{T}")
    A(f"v_sub_f32 v{T+2}, v{X1}, v{T}")
    A(f"v_mul_f32 v{T+1}, v{T+2}, v{T+2}")
    for i in range(1, 10):
        A(f"v_sub_f32 v{T+2}, v{X1+i}, v{T}")
        A(f"v_fma_f32 v{T+1}, v{T+2}, v{T+2}, v{T+1}")
    allreduce("v_add_f32", T + 1, T + 2)
    A(f"v_mul_f32 v{T+1}, 0x3acccccd, v{T+1}")
    A(f"v_cvt_pk_bf16_f32 v{T}, v{T}, v{T}")
    A(f"v_cvt_pk_bf16_f32 v{T+1}, v{T+1}, v{T+1}")
    A(f"v_lshlrev_b32 v{T}, 16, v{T}")
    A(f"v_lshlrev_b32 v{T+1}, 16, v{T+1}")
    A(f"v_add_f32 v{T+1}, 0x3727c5ac, v{T+1}")
    A(f"v_cvt_pk_bf16_f32 v{T+1}, v{T+1}, v{T+1}")
    A(f"v_lshlrev_b32 v{T+1}, 16, v{T+1}")
    A(f"v_sqrt_f32 v{T+1}, v{T+1}")
    nop(1)
    A(f"v_cvt_pk_bf16_f32 v{T+1}, v{T+1}, v{T+1}")
    A(f"v_lshlrev_b32 v{T+1}, 16, v{T+1}")
    A(f"v_rcp_f32 v{T+2}, v{T+1}")
    nop(1)

    def normalize(regs):
        for r in regs:
            A(f"v_sub_f32 v{r}, v{r}, v{T}")
        for r in regs:
            A(f"v_cvt_pk_bf16_f32 v{r}, v{r}, v{r}")
        for r in regs:
            A(f"v_lshlrev_b32 v{r}, 16, v{r}")
        for k, r in enumerate(regs):
            A(f"v_mul_f32 v{T+3+k}, v{r}, v{T+2}")
        for k, r in enumerate(regs):
            A(f"v_fma_f32 v{r}, -v{T+3+k}, v{T+1}, v{r}")
        for k, r in enumerate(regs):
            A(f"v_fma_f32 v{r}, v{r}, v{T+2}, v{T+3+k}")
        for r in regs:
            A(f"v_cvt_pk_bf16_f32 v{r}, v{r}, v{r}")

    normalize([X2, X2 + 1, X2 + 2])
    stamp(14)
    nop(2)
    def mkA(setidx, preg, j):
        for r in range(4):
            A(f"v_and_b32_dpp v{AR+4*setidx+r}, v{preg}, v{4+r} row_newbcast:{j} row_mask:0xf bank_mask:0xf")

    mkA(0, X2, 0)
    for n in range(40):
        if n + 1 < 40:
            mkA((n + 1) & 1, X2 + ((n + 1) >> 4), (n + 1) & 15)
        else:
            nop(2)
        if (n & 3) == 0:
            A(f"s_waitcnt vmcnt({36 - n})")
        b = BUF + 4 * n
        a = AR + 4 * (n & 1)
        A(f"v_mfma_f32_16x16x32_bf16 v[{DQ}:{DQ+3}], v[{a}:{a+3}], v[{b}:{b+3}], v[{DQ}:{DQ+3}]")
    stamp(15)
    A("v_lshlrev_b32 v8, 5, v2")
    A("v_lshl_add_u32 v8, v3, 4, v8")
    A("s_lshl_b32 s35, s34, 9")
    A("v_add_u32 v9, s35, v8")
    A("s_mov_b32 exec_hi, 0")
    nop(5)
    A(f"ds_write_b128 v9, v[{DQ}:{DQ+3}] offset:{L_QP}")
    A("s_waitcnt lgkmcnt(0)")
    A("s_mov_b64 exec, -1")
    A("s_barrier")
    stamp(2)
    normalize([X1 + i for i in range(10)])
    stamp(8)

    A("s_mul_i32 s35, s32, 27")
    A("s_lshl_b32 s36, s33, 2")
    A("s_mul_i32 s37, s33, 3")
    A("s_add_u32 s37, s37, 3")
    A("s_cmp_lt_u32 s33, 3")
    A("s_cselect_b32 s36, s36, s37")
    A("s_cselect_b32 s38, 4, 3")
    A("s_add_u32 s35, s35, s36")
    A("s_add_u32 s35, s35, s34")
    A("s_cmp_ge_u32 s34, s38")
    A("s_cbranch_scc1 L_noffn")
    if noffn:
        A("s_branch L_noffn")
    GW = BUF
    UW = BUF + 40
    DW = BUF + 80
    A("v_mul_u32_u24 v9, 3456, v0")
    A("s_lshl_b32 s36, s35, 4")
    A("v_add_u32 v9, s36, v9")
    A("s_mov_b32 s37, 0")
    for i in range(10):
        if FFP and 2 * i >= FFP:
            A(f"s_waitcnt vmcnt({FFP-1})")
        A(f"buffer_load_dwordx4 v[{GW+4*i}:{GW+4*i+3}], v9, s[48:51], s37 offen {fpol}")
        if FFP and 2 * i + 1 >= FFP:
            A(f"s_waitcnt vmcnt({FFP-1})")
        A(f"buffer_load_dwordx4 v[{UW+4*i}:{UW+4*i+3}], v9, s[52:55], s37 offen {fpol}")
        if i != 9:
            A(f"s_add_u32 s37, s37, {64*3456}")
    A(f"s_mul_i32 s37, s35, {8*1280}")
    for kap in range(2):
        for t in range(5):
            r = DW + 4 * (kap * 5 + t)
            A(f"buffer_load_dwordx4 v[{r}:{r+3}], v{VW}, s[56:59], s37 offen offset:{t*256} {wpol}")
        if kap == 0:
            A(f"s_add_u32 s37, s37, {4*1280}")
    stamp(9)
    for i in range(10):
        A(f"v_and_b32 v{T}, 0xffff, v{X1+i}")
        A(f"v_and_b32 v{T+1}, 0xffff0000, v{X1+i}")
        A(f"s_waitcnt vmcnt({10 + 2*(9-i)})")
        for r in range(4):
            c0 = "0" if i == 0 else f"v{G+2*r}"
            c1 = "0" if i == 0 else f"v{G+2*r+1}"
            A(f"v_dot2_f32_bf16 v{G+2*r}, v{GW+4*i+r}, v{T}, {c0}")
            A(f"v_dot2_f32_bf16 v{G+2*r+1}, v{GW+4*i+r}, v{T+1}, {c1}")
        for r in range(4):
            c0 = "0" if i == 0 else f"v{G+8+2*r}"
            c1 = "0" if i == 0 else f"v{G+8+2*r+1}"
            A(f"v_dot2_f32_bf16 v{G+8+2*r}, v{UW+4*i+r}, v{T}, {c0}")
            A(f"v_dot2_f32_bf16 v{G+8+2*r+1}, v{UW+4*i+r}, v{T+1}, {c1}")
        nop(3)
    stamp(10)
    for base in (G, G + 8):
        for e in (0, 1, 4, 5):
            A(f"v_permlane32_swap_b32 v{base+e}, v{base+e+2}")
    nop(1)
    for base in (G, G + 8):
        for e in (0, 1, 4, 5):
            A(f"v_add_f32 v{base+e}, v{base+e}, v{base+e+2}")
    nop(2)
    for base in (G, G + 8):
        for e in (0, 4):
            A(f"v_permlane16_swap_b32 v{base+e}, v{base+e+1}")
    nop(1)
    for base in (G, G + 8):
        for e in (0, 4):
            A(f"v_add_f32 v{base+e}, v{base+e}, v{base+e+1}")
    nop(2)
    for base in (G, G + 8):
        A(f"v_add_f32_dpp v{base}, v{base}, v{base} row_ror:8 row_mask:0xf bank_mask:0x3")
    nop(1)
    for base in (G, G + 8):
        A(f"v_add_f32_dpp v{base}, v{base+4}, v{base+4} row_ror:8 row_mask:0xf bank_mask:0xc")
    for dpp in ("row_half_mirror", "quad_perm:[1,0,3,2]", "quad_perm:[2,3,0,1]"):
        nop(2)
        for base in (G, G + 8):
            A(f"v_add_f32_dpp v{base}, v{base}, v{base} {dpp} row_mask:0xf bank_mask:0xf")
    nop(1)
    A(f"v_cvt_pk_bf16_f32 v{G}, v{G}, v{G}")
    A(f"v_cvt_pk_bf16_f32 v{G+8}, v{G+8}, v{G+8}")
    A(f"v_lshlrev_b32 v{G}, 16, v{G}")
    A(f"v_lshlrev_b32 v{G+8}, 16, v{G+8}")
    A(f"v_max_f32 v{G}, 0, v{G}")
    A(f"v_mul_f32 v{G}, v{G}, v{G+8}")
    A(f"v_cvt_pk_bf16_f32 v{G}, v{G}, v{G}")
    A("s_waitcnt vmcnt(0)")
    nop(2)
    mkA(0, G, 0)
    mkA(1, G, 8)
    nop(2)
    for kap in range(2):
        for t in range(5):
            b = DW + 4 * (kap * 5 + t)
            a = AR + 4 * kap
            A(f"v_mfma_f32_16x16x32_bf16 v[{Y+4*t}:{Y+4*t+3}], v[{a}:{a+3}], v[{b}:{b+3}], v[{Y+4*t}:{Y+4*t+3}]")
        if kap == 0:
            nop(2)
    stamp(11)
    A("L_noffn:")
    A("s_lshl_b32 s35, s29, 7")
    A("s_lshl_b32 s36, s34, 5")
    A("s_add_u32 s35, s35, s36")
    A("s_mul_i32 s35, s35, 1280")
    for kap in range(8):
        for t in range(5):
            r = BUF + 4 * (kap * 5 + t)
            if not nowo:
                if WOP and kap * 5 + t >= WOP:
                    A(f"s_waitcnt vmcnt({WOP-1})")
                A(f"buffer_load_dwordx4 v[{r}:{r+3}], v{VW}, s[60:63], s35 offen offset:{t*256} {wpol}")
        if kap != 7:
            A(f"s_add_u32 s35, s35, {4*1280}")
    stamp(3)
    A("s_barrier")
    A("v_mov_b32 v8, 0")
    A(f"ds_read_b128 v[{T}:{T+3}], v8 offset:{L_ST}")
    A(f"ds_read_b128 v[{T+4}:{T+7}], v8 offset:{L_ST+16}")
    A(f"s_mov_b32 s73, {hex(LOG2E)}")
    A("s_waitcnt lgkmcnt(0)")
    A(f"v_max3_f32 v{T+8}, v{T}, v{T+2}, v{T+4}")
    A(f"v_max_f32 v{T+8}, v{T+8}, v{T+6}")
    for w in range(4):
        A(f"v_sub_f32 v{G+w}, v{T+2*w}, v{T+8}")
    for w in range(4):
        A(f"v_mul_f32 v{G+w}, s73, v{G+w}")
    for w in range(4):
        A(f"v_exp_f32 v{G+w}, v{G+w}")
    nop(1)
    A(f"v_mul_f32 v{T+10}, v{G}, v{T+1}")
    for w in range(1, 4):
        A(f"v_fma_f32 v{T+10}, v{G+w}, v{T+2*w+1}, v{T+10}")
    A(f"v_mov_b32 v{T+9}, s72")
    A(f"v_mov_b32 v{T+11}, s72")
    A("s_lshl_b32 s35, s30, 7")
    A(f"s_add_u32 s35, s35, {WS_ST}")
    A("s_cmp_lg_u32 s34, 0")
    A("s_cbranch_scc1 L_nopub")
    A("s_mov_b64 exec, 1")
    A(f"buffer_store_dwordx4 v[{T+8}:{T+11}], off, s[64:67], s35 sc1")
    A("s_mov_b64 exec, -1")
    A("L_nopub:")
    A("s_xor_b32 s35, s35, 128")
    A(f"s_mov_b32 s36, {SPIN}")
    A("L_poll1:")
    A(f"buffer_load_dwordx4 v[{T+12}:{T+15}], off, s[64:67], s35 sc1")
    A("s_waitcnt vmcnt(0)")
    A(f"v_cmp_ne_u32 vcc, s72, v{T+13}")
    A(f"v_cmp_ne_u32_e64 s[74:75], s72, v{T+15}")
    nop(2)
    A("s_or_b64 s[74:75], vcc, s[74:75]")
    A("s_cbranch_scc0 L_poll1_done")
    A("s_sub_u32 s36, s36, 1")
    A("s_cmp_lg_u32 s36, 0")
    A("s_cbranch_scc1 L_poll1")
    A("L_poll1_done:")
    A(f"v_max_f32 v{G+4}, v{T+8}, v{T+12}")
    A(f"v_sub_f32 v{G+5}, v{T+8}, v{G+4}")
    A(f"v_sub_f32 v{G+6}, v{T+12}, v{G+4}")
    A(f"v_mul_f32 v{G+5}, s73, v{G+5}")
    A(f"v_mul_f32 v{G+6}, s73, v{G+6}")
    A(f"v_exp_f32 v{G+5}, v{G+5}")
    A(f"v_exp_f32 v{G+6}, v{G+6}")
    nop(1)
    A(f"v_mul_f32 v{G+7}, v{G+5}, v{T+10}")
    A(f"v_fma_f32 v{G+7}, v{G+6}, v{T+14}, v{G+7}")
    A(f"v_rcp_f32 v{G+6}, v{G+7}")
    nop(1)
    A(f"v_fma_f32 v{G+4}, -v{G+7}, v{G+6}, 1.0")
    A(f"v_fma_f32 v{G+6}, v{G+4}, v{G+6}, v{G+6}")
    A(f"v_mul_f32 v{G+5}, v{G+5}, v{G+6}")
    for w in range(4):
        A(f"v_mul_f32 v{G+w}, v{G+w}, v{G+5}")
    A("v_and_b32 v9, 7, v2")
    A("v_lshl_add_u32 v9, v9, 2, v3")
    A("s_lshl_b32 s35, s34, 5")
    A("v_add_u32 v9, s35, v9")
    A("v_lshlrev_b32 v9, 2, v9")
    A("v_lshlrev_b32 v8, 5, v2")
    A("v_lshl_add_u32 v8, v3, 4, v8")
    A("s_mul_i32 s35, s34, 2560")
    A("v_add_u32 v8, s35, v8")
    A("s_lshl_b32 s35, s34, 6")
    A("v_add_u32 v10, s35, v0")
    A("s_lshl_b32 s35, s34, 4")
    A("s_add_u32 s35, s35, 256")
    A("v_add_u32 v11, s35, v2")
    A(f"v_lshlrev_b32 v{T+12}, 3, v10")
    A(f"v_lshlrev_b32 v{T+13}, 3, v11")
    for (src, dst) in ((10, T + 14), (11, T + 15)):
        A(f"v_lshrrev_b32 v{dst}, 3, v{src}")
        A(f"v_lshlrev_b32 v{dst}, 13, v{dst}")
        A(f"v_and_b32 v{src}, 7, v{src}")
        A(f"v_lshl_add_u32 v{dst}, v{src}, 4, v{dst}")
    A("v_cmp_gt_u32 vcc, 16, v0")
    A(f"v_mov_b32 v10, 0x7ffffff0")
    nop(1)
    A(f"v_cndmask_b32 v{T+15}, v10, v{T+15}, vcc")
    A(f"s_mul_i32 s76, s28, {40*8192}")
    A(f"s_add_u32 s76, s76, {WS_Y}")
    A("s_lshl_b32 s77, s31, 7")
    A("s_add_u32 s77, s77, s76")
    stamp(4)
    A("s_barrier")
    stamp(5)
    for w in range(4):
        A(f"ds_read_b32 v{T+w}, v9 offset:{L_OP+w*512}")
    A("s_waitcnt lgkmcnt(0)")
    A(f"v_mul_f32 v{T}, v{T}, v{G}")
    for w in range(1, 4):
        A(f"v_fma_f32 v{T}, v{T+w}, v{G+w}, v{T}")
    A(f"v_cvt_pk_bf16_f32 v{T}, v{T}, v{T}")
    nop(2)
    mkA(0, T, 0)
    for kap in range(8):
        if kap + 1 < 8:
            mkA((kap + 1) & 1, T, kap + 1)
        else:
            nop(2)
        a = AR + 4 * (kap & 1)
        for t in range(5):
            b = BUF + 4 * (kap * 5 + t)
            A(f"v_mfma_f32_16x16x32_bf16 v[{Y+4*t}:{Y+4*t+3}], v[{a}:{a+3}], v[{b}:{b+3}], v[{Y+4*t}:{Y+4*t+3}]")
    A("s_mov_b32 exec_hi, 0")
    nop(5)
    for t in range(5):
        A(f"ds_write_b128 v8, v[{Y+4*t}:{Y+4*t+3}] offset:{L_YP+t*512}")
    A("s_mov_b64 exec, -1")
    A("s_waitcnt lgkmcnt(0)")
    A("s_barrier")
    for vv in range(4):
        A(f"ds_read_b64 v[{G+2*vv}:{G+2*vv+1}], v{T+12} offset:{L_YP+vv*2560}")
        A(f"ds_read_b64 v[{G+8+2*vv}:{G+8+2*vv+1}], v{T+13} offset:{L_YP+vv*2560}")
    A(f"v_mov_b32 v{T+1}, s72")
    A(f"v_mov_b32 v{T+3}, s72")
    A(f"v_mov_b32 v{T+5}, s72")
    A(f"v_mov_b32 v{T+7}, s72")
    A("s_waitcnt lgkmcnt(0)")
    for (base, dst) in ((G, T), (G + 8, T + 4)):
        A(f"v_add_f32 v{base}, v{base}, v{base+2}")
        A(f"v_add_f32 v{base+1}, v{base+1}, v{base+3}")
        A(f"v_add_f32 v{base+4}, v{base+4}, v{base+6}")
        A(f"v_add_f32 v{base+5}, v{base+5}, v{base+7}")
        A(f"v_add_f32 v{dst}, v{base}, v{base+4}")
        A(f"v_add_f32 v{dst+2}, v{base+1}, v{base+5}")
    A(f"buffer_store_dwordx4 v[{T}:{T+3}], v{T+14}, s[64:67], s77 offen sc1")
    A(f"buffer_store_dwordx4 v[{T+4}:{T+7}], v{T+15}, s[64:67], s77 offen sc1")
    stamp(6)
    A("s_cmp_lg_u32 s34, 0")
    A("s_cbranch_scc1 L_flush")
    A("s_cmp_ge_u32 s31, 40")
    A("s_cbranch_scc1 L_flush")
    A("s_lshl_b32 s35, s31, 13")
    A("s_add_u32 s35, s35, s76")
    A("v_lshlrev_b32 v9, 4, v0")
    A("v_add_u32 v10, 0x1000, v9")
    A(f"s_mov_b32 s36, {SPIN}")
    A("L_poll2:")
    for n in range(8):
        r = BUF + 4 * n
        A(f"buffer_load_dwordx4 v[{r}:{r+3}], v{9 + (n >> 2)}, s[64:67], s35 offen offset:{(n&3)*1024} sc1")
    A("s_waitcnt vmcnt(0)")
    A(f"v_min3_u32 v{T}, v{BUF+1}, v{BUF+3}, v{BUF+5}")
    A(f"v_max3_u32 v{T+1}, v{BUF+1}, v{BUF+3}, v{BUF+5}")
    for q in range(7, 31, 4):
        A(f"v_min3_u32 v{T}, v{T}, v{BUF+q}, v{BUF+q+2}")
        A(f"v_max3_u32 v{T+1}, v{T+1}, v{BUF+q}, v{BUF+q+2}")
    A(f"v_min_u32 v{T}, v{T}, v{BUF+31}")
    A(f"v_max_u32 v{T+1}, v{T+1}, v{BUF+31}")
    A(f"v_cmp_ne_u32 vcc, s72, v{T}")
    A(f"v_cmp_ne_u32_e64 s[74:75], s72, v{T+1}")
    nop(2)
    A("s_or_b64 s[74:75], vcc, s[74:75]")
    A("s_cbranch_scc0 L_poll2_done")
    A("s_sub_u32 s36, s36, 1")
    A("s_cmp_lg_u32 s36, 0")
    A("s_cbranch_scc1 L_poll2")
    A("L_poll2_done:")
    A(f"v_add_f32 v{T}, v{BUF}, v{BUF+4}")
    A(f"v_add_f32 v{T+1}, v{BUF+2}, v{BUF+6}")
    A(f"v_add_f32 v{T+2}, v{BUF+8}, v{BUF+12}")
    A(f"v_add_f32 v{T+3}, v{BUF+10}, v{BUF+14}")
    A(f"v_add_f32 v{T+4}, v{BUF+16}, v{BUF+20}")
    A(f"v_add_f32 v{T+5}, v{BUF+18}, v{BUF+22}")
    A(f"v_add_f32 v{T+6}, v{BUF+24}, v{BUF+28}")
    A(f"v_add_f32 v{T+7}, v{BUF+26}, v{BUF+30}")
    A(f"v_add_f32 v{T}, v{T}, v{T+2}")
    A(f"v_add_f32 v{T+1}, v{T+1}, v{T+3}")
    A(f"v_add_f32 v{T+4}, v{T+4}, v{T+6}")
    A(f"v_add_f32 v{T+5}, v{T+5}, v{T+7}")
    A(f"v_add_f32 v{T}, v{T}, v{T+4}")
    A(f"v_add_f32 v{T+1}, v{T+1}, v{T+5}")
    nop(2)
    A(f"v_permlane32_swap_b32 v{T}, v{T+1}")
    nop(1)
    A(f"v_add_f32 v{T}, v{T}, v{T+1}")
    A(f"v_mov_b32 v{T+1}, v{T}")
    nop(2)
    A(f"v_permlane16_swap_b32 v{T}, v{T+1}")
    nop(1)
    A(f"v_add_f32 v{T}, v{T}, v{T+1}")
    nop(2)
    A(f"v_add_f32_dpp v{T}, v{T}, v{T} row_ror:8 row_mask:0xf bank_mask:0xf")
    A(f"v_mov_b32 v{T+1}, v{T}")
    nop(2)
    A(f"v_permlane32_swap_b32 v{T}, v{T+1}")
    A(f"v_lshlrev_b32 v{T+2}, 16, v{VXR}")
    A(f"v_and_b32 v{T+3}, 0xffff0000, v{VXR}")
    A(f"v_add_f32 v{T}, v{T}, v{T+2}")
    A(f"v_add_f32 v{T+1}, v{T+1}, v{T+3}")
    A(f"v_cvt_pk_bf16_f32 v{T}, v{T}, v{T+1}")
    A("s_mul_i32 s35, s28, 1280")
    A("s_lshl_b32 s36, s31, 5")
    A("s_add_u32 s35, s35, s36")
    A("v_lshlrev_b32 v9, 2, v0")
    A("s_mov_b64 exec, 0xff")
    A(f"buffer_store_dword v{T}, v9, s[68:71], s35 offen")
    A("s_cmp_lg_u32 s31, 0")
    A("s_cbranch_scc1 L_fin")
    A("s_mov_b64 exec, 1")
    A(f"v_mov_b32 v{T+1}, s72")
    A("s_lshl_b32 s36, s28, 7")
    A(f"buffer_store_dword v{T+1}, off, s[64:67], s36 offset:{WS_E} sc1")
    A("L_fin:")
    stamp(7)
    A("L_flush:")
    stamp_flush()
    A("L_end:")
    A("s_endpgm")

    body = "\n".join(("    " + l) if not l.endswith(":") else l for l in L) + "\n"
    return (HEADER % (LDS_SIZE, NAME, NAME, NAME)) + body + (FOOTER % NAME)


if __name__ == "__main__":
    kw = {}
    out = f"cdna_kernels/{NAME}.s"
    for a in sys.argv[1:]:
        if a.startswith("out="):
            out = a[4:]
            continue
        k, v = a.split("=")
        try:
            v = int(v)
        except ValueError:
            pass
        kw[k] = v
    open(out, "w").write(gen(**kw))
    print("wrote", out)
```

```python
import sys

NAME = "parallel_sum__gqa_block_cached__glu_gated_reglu__decode"

HEADER = """; Fused LN -> {GQA decode attention, ReGLU FFN} -> residual sum.  Generated by gen_kernel.py (hand-designed schedule).
; @launch grid=(256,1,1) block=(512,1,1) lds=%d
.amdgcn_target "amdgcn-amd-amdhsa--gfx950"
.text
.globl %s_kernel
.p2align 8
.type %s_kernel,@function
%s_kernel:
"""

FOOTER = """.section .rodata,"a"
.p2align 6
.amdhsa_kernel %s_kernel
  .amdhsa_next_free_vgpr 256
  .amdhsa_next_free_sgpr 102
  .amdhsa_accum_offset 256
  .amdhsa_group_segment_fixed_size 0
  .amdhsa_kernarg_size 96
  .amdhsa_user_sgpr_count 2
  .amdhsa_user_sgpr_kernarg_segment_ptr 1
  .amdhsa_system_sgpr_workgroup_id_x 1
.end_amdhsa_kernel
"""

L_Q = 0
L_ST = 2048
L_OP = 2560
L_YP = 4608
LDS_SIZE = 4608 + 4 * 2560

WS_E = 0
WS_ST = 4096
WS_Y = 65536
WS_QP = 0x160000
WS_GP = 0x260000
WS_DBG = 0x480000
WS_SIZE = 0x500000

TAG_A = 1664525
TAG_C = 1013904223
LOG2E = 0x3FB8AA3B
SCALE = 0x3DB504F3
SPIN = 20000


def gen(rot=0, LAL=6, GS=2, PRE=32, PREV=16, prio=0, NPRE=8, stamps=False, kpol="nt", wpol="nt", apol="nt", dpol="nt", WOAT=0, WDAT=0, noffn=0, nowo=0, nowq=0):
    B0 = 1
    L = []
    A = L.append

    def nop(n):
        assert 1 <= n <= 16
        A(f"s_nop {n-1}")

    def stamp(idx):
        if not stamps:
            return
        A("s_memrealtime s[90:91]")
        A("s_waitcnt lgkmcnt(0)")
        A(f"v_writelane_b32 v62, s90, {idx}")

    def stamp_flush():
        if not stamps:
            return
        A("s_mov_b64 exec, 0xffff")
        A("v_lshlrev_b32 v61, 2, v63")
        A("buffer_store_dword v62, v61, s[84:87], s88 offen")

    A("s_cmp_ge_u32 s2, 256")
    A("s_cbranch_scc1 L_end")
    A("s_load_dwordx16 s[4:19], s[0:1], 0")
    A("s_load_dwordx8 s[20:27], s[0:1], 64")
    A("v_lshrrev_b32 v1, 6, v0")
    A("v_and_b32 v0, 63, v0")
    A("v_readfirstlane_b32 s3, v1")
    if rot:
        A(f"s_add_u32 s32, s2, {rot}")
        A("s_and_b32 s32, s32, 7")
    else:
        A("s_and_b32 s32, s2, 7")
    A("s_lshr_b32 s35, s2, 3")
    A("s_lshr_b32 s36, s35, 3")
    A("s_and_b32 s37, s35, 7")
    A("s_lshr_b32 s28, s37, 1")
    A("s_and_b32 s38, s37, 1")
    A("s_lshl_b32 s39, s36, 3")
    A("s_add_u32 s29, s32, s39")
    A("s_lshl_b32 s39, s28, 5")
    A("s_add_u32 s39, s39, s29")
    A("s_lshl_b32 s39, s39, 1")
    A("s_add_u32 s30, s39, s38")
    A("s_lshl_b32 s33, s36, 1")
    A("s_add_u32 s33, s33, s38")
    A("s_lshl_b32 s31, s33, 3")
    A("s_add_u32 s31, s31, s32")
    A("v_and_b32 v2, 15, v0")
    A("v_lshrrev_b32 v3, 4, v0")
    A("v_and_b32 v8, 1, v2")
    A("v_lshlrev_b32 v8, 4, v8")
    A("v_mov_b32 v9, 0xffff")
    A("v_lshlrev_b32 v9, v8, v9")
    A("v_lshrrev_b32 v10, 1, v2")
    for r in range(4):
        A(f"v_cmp_eq_u32 vcc, {r}, v10")
        nop(2)
        A(f"v_cndmask_b32 v{4+r}, 0, v9, vcc")
    A("s_waitcnt lgkmcnt(0)")
    if stamps:
        A("s_mov_b32 s84, s26")
        A("s_and_b32 s85, s27, 0xffff")
        A(f"s_mov_b32 s86, {WS_SIZE}")
        A("s_mov_b32 s87, 0x20000")
        A("s_lshl_b32 s88, s2, 3")
        A("s_add_u32 s88, s88, s3")
        A("s_lshl_b32 s88, s88, 6")
        A(f"s_add_u32 s88, s88, {WS_DBG}")
        A("v_mov_b32 v62, 0")
        A("v_mov_b32 v63, v0")
    stamp(0)
    A("s_cmp_ge_u32 s3, 4")
    A("s_cbranch_scc1 L_service")

    RING = 128
    Q = 12
    S = 16
    SC = 32
    AR = 64
    D = 80
    T = 84
    A("s_lshl_b32 s35, s30, 20")
    A("s_lshr_b32 s36, s30, 12")
    A("s_add_u32 s40, s6, s35")
    A("s_addc_u32 s41, s7, s36")
    A("s_and_b32 s41, s41, 0xffff")
    A("s_mov_b32 s42, 0x100000")
    A("s_mov_b32 s43, 0x20000")
    A("s_add_u32 s44, s8, s35")
    A("s_addc_u32 s45, s9, s36")
    A("s_and_b32 s45, s45, 0xffff")
    A("s_lshl_b32 s35, s3, 12")
    A("v_lshlrev_b32 v11, 4, v0")
    A("v_add_u32 v11, s35, v11")
    A("s_mov_b32 s46, 0")

    assert PREV % GS == 0 and LAL <= PREV <= 32 and LAL % GS == 0 and PRE % GS == 0 and LAL <= PRE <= 32 and LAL + GS <= 32 and 16 % GS == 0

    def issue_load(m):
        r = RING + (m % 32) * 4
        A(f"buffer_load_dwordx4 v[{r}:{r+3}], v11, s[40:43], s46 offen offset:{(m % 4)*1024} {kpol}")
        if m % 4 == 3:
            A("s_add_u32 s46, s46, 0x4000")

    for m in range(LAL):
        if B0 and m == NPRE:
            A("s_barrier")
        issue_load(m)
    if B0 and NPRE >= LAL:
        A("s_barrier")
    for m0 in range(LAL, PRE, GS):
        A(f"s_waitcnt vmcnt({LAL - GS})")
        for m in range(m0, m0 + GS):
            issue_load(m)
    A("s_mov_b32 s48, 0xaaaaaaaa")
    A("s_mov_b32 s49, 0xaaaaaaaa")
    A("s_mov_b32 s50, 0xcccccccc")
    A("s_mov_b32 s51, 0xcccccccc")
    A(f"s_mov_b32 s52, {hex(SCALE)}")
    A(f"s_mov_b32 s53, {hex(LOG2E)}")
    A("v_lshlrev_b32 v10, 5, v2")
    for r in range(4):
        A(f"v_mov_b32 v{D+r}, 0")
    stamp(1)
    A("s_barrier")
    stamp(2)
    A("v_lshlrev_b32 v9, 4, v2")
    A(f"ds_read_b128 v[{Q}:{Q+3}], v9 offset:{L_Q}")
    A("s_waitcnt lgkmcnt(0)")
    A("s_mov_b32 s47, 0")
    nop(2)

    A("s_mov_b64 vcc, -1")
    A("L_ktrip:")
    for half in range(2):
        for n in range(16 * half, 16 * half + 16, GS):
            if n == 32 - LAL:
                A("s_cmp_lg_u32 s47, 7")
                A("s_cbranch_scc1 L_knosw")
                A("s_mov_b32 s40, s44")
                A("s_mov_b32 s41, s45")
                A("s_mov_b32 s46, 0")
                A("L_knosw:")
            A(f"s_waitcnt vmcnt({LAL - GS})")
            skip = n + LAL < PRE
            if skip:
                A(f"s_cbranch_vccnz L_kskip{n}")
            for m in range(n + LAL, n + LAL + GS):
                issue_load(m)
            if skip:
                A(f"L_kskip{n}:")
            for r in range(4):
                for i in range(GS):
                    src = RING + (n + i) * 4 + r
                    d = S + (n + i) % 16
                    c = "0" if r == 0 else f"v{d}"
                    A(f"v_dot2_f32_bf16 v{d}, v{src}, v{Q+r}, {c}")
        nop(3)
        for j in range(8):
            A(f"v_add_f32_dpp v{S+j}, v{S+j}, v{S+j} row_ror:8 row_mask:0xf bank_mask:0x3")
        for j in range(8):
            A(f"v_add_f32_dpp v{S+j}, v{S+j+8}, v{S+j+8} row_ror:8 row_mask:0xf bank_mask:0xc")
        for j in range(4):
            A(f"v_add_f32_dpp v{S+j}, v{S+j}, v{S+j} row_half_mirror row_mask:0xf bank_mask:0x5")
        for j in range(4):
            A(f"v_add_f32_dpp v{S+j}, v{S+j+4}, v{S+j+4} row_half_mirror row_mask:0xf bank_mask:0xa")
        A(f"v_cndmask_b32_e64 v{T+0}, v{S+2}, v{S+0}, s[50:51]")
        A(f"v_cndmask_b32_e64 v{T+2}, v{S+0}, v{S+2}, s[50:51]")
        A(f"v_cndmask_b32_e64 v{T+1}, v{S+3}, v{S+1}, s[50:51]")
        A(f"v_cndmask_b32_e64 v{T+3}, v{S+1}, v{S+3}, s[50:51]")
        nop(1)
        A(f"v_add_f32_dpp v{T+2}, v{T+0}, v{T+2} quad_perm:[2,3,0,1] row_mask:0xf bank_mask:0xf")
        A(f"v_add_f32_dpp v{T+3}, v{T+1}, v{T+3} quad_perm:[2,3,0,1] row_mask:0xf bank_mask:0xf")
        A(f"v_cndmask_b32_e64 v{T+0}, v{T+3}, v{T+2}, s[48:49]")
        A(f"v_cndmask_b32_e64 v{T+1}, v{T+2}, v{T+3}, s[48:49]")
        nop(2)
        A(f"v_add_f32_dpp v{T+1}, v{T+0}, v{T+1} quad_perm:[1,0,3,2] row_mask:0xf bank_mask:0xf")
        A(f"v_cvt_pk_bf16_f32 v{T+1}, v{T+1}, v{T+1}")
        A(f"v_lshlrev_b32 v{T+1}, 16, v{T+1}")
        A(f"v_mul_f32 v{T+1}, s52, v{T+1}")
        A(f"v_cvt_pk_bf16_f32 v{T+1}, v{T+1}, v{T+1}")
        if half == 0:
            A(f"v_lshlrev_b32 v{T+4}, 16, v{T+1}")
        else:
            for kk in range(14):
                A(f"v_mov_b32 v{SC+kk}, v{SC+kk+2}")
            A(f"v_mov_b32 v{SC+14}, v{T+4}")
            A(f"v_lshlrev_b32 v{SC+15}, 16, v{T+1}")
    A("s_mov_b64 vcc, 0")
    A("s_add_u32 s47, s47, 1")
    A("s_cmp_lt_u32 s47, 8")
    A("s_cbranch_scc1 L_ktrip")
    stamp(3)
    for m in range(LAL, PREV):
        issue_load(m)

    def allreduce(op, reg, tmp):
        for sh in (8, 4, 2, 1):
            nop(2)
            A(f"{op}_dpp v{reg}, v{reg}, v{reg} row_ror:{sh} row_mask:0xf bank_mask:0xf")
        A(f"v_mov_b32 v{tmp}, v{reg}")
        nop(2)
        A(f"v_permlane16_swap_b32 v{reg}, v{tmp}")
        nop(1)
        A(f"{op} v{reg}, v{reg}, v{tmp}")
        A(f"v_mov_b32 v{tmp}, v{reg}")
        nop(2)
        A(f"v_permlane32_swap_b32 v{reg}, v{tmp}")
        nop(1)
        A(f"{op} v{reg}, v{reg}, v{tmp}")

    M = T
    A(f"v_max3_f32 v{M}, v{SC}, v{SC+1}, v{SC+2}")
    for kk in range(3, 15, 2):
        A(f"v_max3_f32 v{M}, v{M}, v{SC+kk}, v{SC+kk+1}")
    A(f"v_max_f32 v{M}, v{M}, v{SC+15}")
    allreduce("v_max_f32", M, T + 2)
    for kk in range(16):
        A(f"v_sub_f32 v{SC+kk}, v{SC+kk}, v{M}")
    for kk in range(16):
        A(f"v_mul_f32 v{SC+kk}, s53, v{SC+kk}")
    for kk in range(16):
        A(f"v_exp_f32 v{SC+kk}, v{SC+kk}")
    nop(1)
    LS = T + 1
    A(f"v_add_f32 v{LS}, v{SC}, v{SC+1}")
    for kk in range(2, 16):
        A(f"v_add_f32 v{LS}, v{LS}, v{SC+kk}")
    for kk in range(16):
        A(f"v_cvt_pk_bf16_f32 v{SC+kk}, v{SC+kk}, v{SC+kk}")
    allreduce("v_add_f32", LS, T + 2)
    A("s_lshl_b32 s35, s3, 3")
    A(f"v_mov_b32 v{T+3}, s35")
    A(f"ds_write_b64 v{T+3}, v[{M}:{M+1}] offset:{L_ST}")
    A("s_waitcnt lgkmcnt(0)")
    A("s_barrier")
    stamp(4)

    A("s_mov_b32 s47, 0")
    A("s_mov_b64 vcc, -1")
    A("L_vtrip:")
    for n in range(0, 32, GS):
        for i in range(GS):
            pr = SC + ((n + i) >> 4)
            j = (n + i) & 15
            for r in range(4):
                A(f"v_and_b32_dpp v{AR+4*i+r}, v{pr}, v{4+r} row_newbcast:{j} row_mask:0xf bank_mask:0xf")
        if n + GS == 32:
            for kk in range(14):
                A(f"v_mov_b32 v{SC+kk}, v{SC+kk+2}")
        A(f"s_waitcnt vmcnt({LAL - GS})")
        skip = n + LAL < PREV
        if skip:
            A(f"s_cbranch_vccnz L_vskip{n}")
        for m in range(n + LAL, n + LAL + GS):
            issue_load(m)
        if skip:
            A(f"L_vskip{n}:")
            nop(1)
        for i in range(GS):
            src = RING + (n + i) * 4
            A(f"v_mfma_f32_16x16x32_bf16 v[{D}:{D+3}], v[{AR+4*i}:{AR+4*i+3}], v[{src}:{src+3}], v[{D}:{D+3}]")
    A("s_mov_b64 vcc, 0")
    A("s_add_u32 s47, s47, 1")
    A("s_cmp_lt_u32 s47, 8")
    A("s_cbranch_scc1 L_vtrip")
    stamp(5)
    A("s_lshl_b32 s35, s3, 9")
    A("v_lshlrev_b32 v8, 4, v3")
    A("v_add3_u32 v8, v8, v10, s35")
    A("s_mov_b32 exec_hi, 0")
    nop(4)
    A(f"ds_write_b128 v8, v[{D}:{D+3}] offset:{L_OP}")
    A("s_waitcnt lgkmcnt(0)")
    A("s_barrier")
    stamp(6)
    stamp_flush()
    A("s_endpgm")

    A("L_service:")
    if prio:
        A(f"s_setprio {prio}")
    VW = 1
    M2 = 12
    PC = 14
    VE = 19
    DQ = 20
    A2 = 28
    Y = 32
    AR = 52
    VXR = 60
    G = 64
    T = 80
    BUF = 96
    XU = 176
    XS = 216
    A("s_sub_u32 s34, s3, 4")
    def srd(base, ptr, size):
        A(f"s_mov_b32 s{base}, s{ptr}")
        A(f"s_and_b32 s{base+1}, s{ptr+1}, 0xffff")
        A(f"s_mov_b32 s{base+2}, {size}")
        A(f"s_mov_b32 s{base+3}, 0x20000")
    srd(64, 26, WS_SIZE)
    srd(40, 4, 4 * 1280)
    A(f"buffer_load_dword v{VE}, off, s[64:67], 0 offset:{WS_E} sc1")
    A("s_cmp_eq_u32 s34, 1")
    A("s_cbranch_scc1 L_idle")
    A("s_cmp_eq_u32 s34, 0")
    A("s_cbranch_scc1 L_prod")
    A("s_cmp_ge_u32 s2, 224")
    A("s_cbranch_scc1 L_idle")
    A("L_prod:")
    A("v_lshrrev_b32 v8, 2, v2")
    A("v_mul_u32_u24 v8, 1280, v8")
    A("v_and_b32 v10, 3, v2")
    A("v_lshl_add_u32 v11, v10, 2, v3")
    A("v_lshl_add_u32 v9, v11, 1, v8")
    A("v_lshl_add_u32 v11, v3, 2, v10")
    A("v_lshl_add_u32 v8, v11, 4, v8")
    A("s_mul_i32 s78, s2, 4682")
    A("s_lshr_b32 s78, s78, 16")
    A("s_mul_i32 s79, s78, 14")
    A("s_sub_u32 s79, s2, s79")
    A("s_lshr_b32 s80, s2, 3")
    A("s_and_b32 s80, s80, 7")
    A("s_mul_i32 s36, s80, 160")
    A("s_mul_i32 s37, s78, 80")
    A("s_cmp_eq_u32 s34, 0")
    A("s_cselect_b32 s36, s36, s37")
    for q in range(5):
        A(f"buffer_load_ushort v{PC+q}, v9, s[40:43], s36 offen offset:{q*32}")
    for i in range(5):
        A(f"buffer_load_dwordx4 v[{XS+4*i}:{XS+4*i+3}], v8, s[40:43], 0 offen offset:{i*256}")
    stamp(12)
    A("s_cmp_eq_u32 s34, 0")
    A("s_cbranch_scc0 L_ldF")
    srd(44, 10, 640 * 8192)
    A("v_lshlrev_b32 v10, 13, v3")
    A("v_lshl_add_u32 v10, v2, 4, v10")
    A(f"s_mul_i32 s35, s80, {80*8192}")
    A("s_lshl_b32 s36, s29, 8")
    A("s_add_u32 s35, s35, s36")
    for n in range(20):
        r = BUF + 4 * n
        if not nowq:
            A(f"buffer_load_dwordx4 v[{r}:{r+3}], v10, s[44:47], s35 offen {apol}")
        if n != 19:
            A(f"s_add_u32 s35, s35, {4*8192}")
    A("s_lshl_b32 s81, s29, 15")
    A("s_lshl_b32 s36, s80, 12")
    A("s_add_u32 s81, s81, s36")
    A(f"s_add_u32 s81, s81, {WS_QP}")
    A("s_waitcnt vmcnt(%d)" % (0 if nowq else 20))
    A("s_branch L_stats")
    A("L_ldF:")
    A("s_cmp_eq_u32 s34, 2")
    A("s_cbranch_scc0 L_ldU")
    srd(44, 16, 640 * 3456)
    A("s_branch L_ldF2")
    A("L_ldU:")
    srd(44, 18, 640 * 3456)
    A("L_ldF2:")
    A("v_mul_u32_u24 v10, 3456, v3")
    A("v_lshl_add_u32 v10, v2, 4, v10")
    A(f"s_mul_i32 s35, s78, {40*3456}")
    A("s_lshl_b32 s36, s79, 8")
    A("s_add_u32 s35, s35, s36")
    for n in range(10):
        r = BUF + 4 * n
        if not noffn:
            A(f"buffer_load_dwordx4 v[{r}:{r+3}], v10, s[44:47], s35 offen {apol}")
        if n != 9:
            A(f"s_add_u32 s35, s35, {4*3456}")
    A("s_lshl_b32 s81, s79, 4")
    A("s_add_u32 s81, s81, s78")
    A("s_sub_u32 s36, s34, 2")
    A("s_mul_i32 s36, s36, 224")
    A("s_add_u32 s81, s81, s36")
    A("s_lshl_b32 s81, s81, 12")
    A(f"s_add_u32 s81, s81, {WS_GP}")
    A("s_waitcnt vmcnt(%d)" % (0 if noffn else 10))
    A("L_stats:")
    A("s_barrier")
    stamp(1)
    for r in range(20):
        A(f"v_lshlrev_b32 v{XU+2*r}, 16, v{XS+r}")
        A(f"v_and_b32 v{XU+2*r+1}, 0xffff0000, v{XS+r}")
    A(f"v_readfirstlane_b32 s72, v{VE}")
    for a in range(4):
        A(f"v_pk_add_f32 v[{G+2*a}:{G+2*a+1}], v[{XU+2*a}:{XU+2*a+1}], v[{XU+8+2*a}:{XU+8+2*a+1}]")
    for r in range(8, 20):
        a = r & 3
        A(f"v_pk_add_f32 v[{G+2*a}:{G+2*a+1}], v[{G+2*a}:{G+2*a+1}], v[{XU+2*r}:{XU+2*r+1}]")
    A(f"v_pk_add_f32 v[{G}:{G+1}], v[{G}:{G+1}], v[{G+2}:{G+3}]")
    A(f"v_pk_add_f32 v[{G+4}:{G+5}], v[{G+4}:{G+5}], v[{G+6}:{G+7}]")
    A(f"s_mul_i32 s72, s72, {TAG_A}")
    A(f"v_pk_add_f32 v[{G}:{G+1}], v[{G}:{G+1}], v[{G+4}:{G+5}]")
    A(f"s_add_u32 s72, s72, {TAG_C}")
    A(f"v_add_f32 v{T}, v{G}, v{G+1}")

    def breduce(reg, tmp):
        nop(2)
        A(f"v_add_f32_dpp v{reg}, v{reg}, v{reg} quad_perm:[1,0,3,2] row_mask:0xf bank_mask:0xf")
        nop(2)
        A(f"v_add_f32_dpp v{reg}, v{reg}, v{reg} quad_perm:[2,3,0,1] row_mask:0xf bank_mask:0xf")
        A(f"v_mov_b32 v{tmp}, v{reg}")
        nop(2)
        A(f"v_permlane16_swap_b32 v{reg}, v{tmp}")
        nop(1)
        A(f"v_add_f32 v{reg}, v{reg}, v{tmp}")
        A(f"v_mov_b32 v{tmp}, v{reg}")
        nop(2)
        A(f"v_permlane32_swap_b32 v{reg}, v{tmp}")
        nop(1)
        A(f"v_add_f32 v{reg}, v{reg}, v{tmp}")

    breduce(T, T + 1)
    A(f"v_mul_f32 v{T}, 0x3acccccd, v{T}")
    A(f"v_mov_b32 v{T+1}, v{T}")
    for r in range(20):
        A(f"v_pk_add_f32 v[{XU+2*r}:{XU+2*r+1}], v[{XU+2*r}:{XU+2*r+1}], v[{T}:{T+1}] neg_lo:[0,1] neg_hi:[0,1]")
    for a in range(4):
        A(f"v_pk_mul_f32 v[{G+2*a}:{G+2*a+1}], v[{XU+2*a}:{XU+2*a+1}], v[{XU+2*a}:{XU+2*a+1}]")
    for r in range(4, 20):
        a = r & 3
        A(f"v_pk_fma_f32 v[{G+2*a}:{G+2*a+1}], v[{XU+2*r}:{XU+2*r+1}], v[{XU+2*r}:{XU+2*r+1}], v[{G+2*a}:{G+2*a+1}]")
    A(f"v_pk_add_f32 v[{G}:{G+1}], v[{G}:{G+1}], v[{G+2}:{G+3}]")
    A(f"v_pk_add_f32 v[{G+4}:{G+5}], v[{G+4}:{G+5}], v[{G+6}:{G+7}]")
    A(f"v_pk_add_f32 v[{G}:{G+1}], v[{G}:{G+1}], v[{G+4}:{G+5}]")
    A(f"v_add_f32 v{T+1}, v{G}, v{G+1}")
    breduce(T + 1, T + 2)
    A(f"v_mul_f32 v{T+1}, 0x3acccccd, v{T+1}")
    A(f"v_cvt_pk_bf16_f32 v{T}, v{T}, v{T}")
    A(f"v_cvt_pk_bf16_f32 v{T+1}, v{T+1}, v{T+1}")
    A(f"v_lshlrev_b32 v{T}, 16, v{T}")
    A(f"v_lshlrev_b32 v{T+1}, 16, v{T+1}")
    A(f"v_add_f32 v{T+1}, 0x3727c5ac, v{T+1}")
    A(f"v_cvt_pk_bf16_f32 v{T+1}, v{T+1}, v{T+1}")
    A(f"v_lshlrev_b32 v{T+1}, 16, v{T+1}")
    A(f"v_sqrt_f32 v{T+1}, v{T+1}")
    for q in range(5):
        A(f"v_lshlrev_b32 v{PC+q}, 16, v{PC+q}")
    A(f"v_cvt_pk_bf16_f32 v{T+1}, v{T+1}, v{T+1}")
    A(f"v_lshlrev_b32 v{T+1}, 16, v{T+1}")
    A(f"v_rcp_f32 v{T+2}, v{T+1}")
    regs = [PC + q for q in range(5)]
    for r in regs:
        A(f"v_sub_f32 v{r}, v{r}, v{T}")
    for r in regs:
        A(f"v_cvt_pk_bf16_f32 v{r}, v{r}, v{r}")
    for r in regs:
        A(f"v_lshlrev_b32 v{r}, 16, v{r}")
    for k, r in enumerate(regs):
        A(f"v_mul_f32 v{T+3+k}, v{r}, v{T+2}")
    for k, r in enumerate(regs):
        A(f"v_fma_f32 v{r}, -v{T+3+k}, v{T+1}, v{r}")
    for k, r in enumerate(regs):
        A(f"v_fma_f32 v{r}, v{r}, v{T+2}, v{T+3+k}")
    for r in regs:
        A(f"v_cvt_pk_bf16_f32 v{r}, v{r}, v{r}")
    A("v_and_b32 v8, 1, v2")
    A("v_lshlrev_b32 v8, 4, v8")
    A("v_mov_b32 v9, 0xffff")
    A("v_lshlrev_b32 v9, v8, v9")
    A("v_and_b32 v10, 2, v2")
    A("v_cmp_eq_u32 vcc, 0, v10")
    for r in range(8):
        A(f"v_mov_b32 v{DQ+r}, 0")
    A(f"v_cndmask_b32 v{M2}, 0, v9, vcc")
    A("v_cmp_ne_u32 vcc, 0, v10")
    for r in range(8):
        A(f"v_mov_b32 v{G+2*r+1}, s72")
    A(f"v_cndmask_b32 v{M2+1}, 0, v9, vcc")
    A("v_lshlrev_b32 v11, 4, v0")
    stamp(14)

    def mkA2(setidx, n):
        q, jj = n >> 2, n & 3
        for r in range(2):
            A(f"v_and_b32_dpp v{A2+2*setidx+r}, v{PC+q}, v{M2+r} quad_perm:[{jj},{jj},{jj},{jj}] row_mask:0xf bank_mask:0xf")

    def prod_mfma(NW):
        nop(2)
        mkA2(0, 0)
        for n in range(NW):
            if n + 1 < NW:
                mkA2((n + 1) & 1, n + 1)
            else:
                nop(2)
            if (n & 1) == 0:
                A(f"s_waitcnt vmcnt({NW - 2 - n})")
            b = BUF + 4 * n
            a = A2 + 2 * (n & 1)
            A(f"v_mfma_f32_16x16x16_bf16 v[{DQ}:{DQ+3}], v[{a}:{a+1}], v[{b}:{b+1}], v[{DQ}:{DQ+3}]")
            A(f"v_mfma_f32_16x16x16_bf16 v[{DQ+4}:{DQ+7}], v[{a}:{a+1}], v[{b+2}:{b+3}], v[{DQ+4}:{DQ+7}]")

    A("s_cmp_eq_u32 s34, 0")
    A("s_cbranch_scc1 L_mfQ")
    prod_mfma(10)
    A("s_branch L_pub")
    A("L_mfQ:")
    prod_mfma(20)
    A("L_pub:")
    stamp(15)
    nop(8)
    for r in range(8):
        A(f"v_mov_b32 v{G+2*r}, v{DQ+r}")
    for st_ in range(4):
        A(f"buffer_store_dwordx4 v[{G+4*st_}:{G+4*st_+3}], v11, s[64:67], s81 offen offset:{st_*1024} sc1")
    A("s_cmp_eq_u32 s34, 0")
    A("s_cbranch_scc0 L_b1")
    A("v_lshlrev_b32 v10, 10, v3")
    A("v_lshl_add_u32 v10, v2, 4, v10")
    A("s_lshl_b32 s82, s29, 15")
    A("s_lshl_b32 s36, s28, 8")
    A("s_add_u32 s82, s82, s36")
    A(f"s_add_u32 s82, s82, {WS_QP}")
    A(f"s_mov_b32 s36, {SPIN}")
    A("L_pollq:")
    A("s_mov_b32 s35, s82")
    for n in range(8):
        r = BUF + 4 * n
        A(f"buffer_load_dwordx4 v[{r}:{r+3}], v10, s[64:67], s35 offen sc1")
        if n != 7:
            A("s_add_u32 s35, s35, 4096")
    A("s_waitcnt vmcnt(0)")
    A(f"v_min3_u32 v{T}, v{BUF+1}, v{BUF+3}, v{BUF+5}")
    A(f"v_max3_u32 v{T+1}, v{BUF+1}, v{BUF+3}, v{BUF+5}")
    for q in range(7, 31, 4):
        A(f"v_min3_u32 v{T}, v{T}, v{BUF+q}, v{BUF+q+2}")
        A(f"v_max3_u32 v{T+1}, v{T+1}, v{BUF+q}, v{BUF+q+2}")
    A(f"v_min_u32 v{T}, v{T}, v{BUF+31}")
    A(f"v_max_u32 v{T+1}, v{T+1}, v{BUF+31}")
    A(f"v_cmp_ne_u32 vcc, s72, v{T}")
    A(f"v_cmp_ne_u32_e64 s[74:75], s72, v{T+1}")
    nop(2)
    A("s_or_b64 s[74:75], vcc, s[74:75]")
    A("s_cbranch_scc0 L_pollq_done")
    A("s_sub_u32 s36, s36, 1")
    A("s_cmp_lg_u32 s36, 0")
    A("s_cbranch_scc1 L_pollq")
    A("L_pollq_done:")
    for a in range(4):
        A(f"v_add_f32 v{T+2*a}, v{BUF+8*a}, v{BUF+8*a+4}")
        A(f"v_add_f32 v{T+2*a+1}, v{BUF+8*a+2}, v{BUF+8*a+6}")
    for a in range(2):
        A(f"v_add_f32 v{T+4*a}, v{T+4*a}, v{T+4*a+2}")
        A(f"v_add_f32 v{T+4*a+1}, v{T+4*a+1}, v{T+4*a+3}")
    A(f"v_add_f32 v{T}, v{T}, v{T+4}")
    A(f"v_add_f32 v{T+1}, v{T+1}, v{T+5}")
    A("v_lshlrev_b32 v9, 2, v3")
    A(f"v_cvt_pk_bf16_f32 v{T}, v{T}, v{T+1}")
    A("v_lshl_add_u32 v9, v2, 4, v9")
    A(f"ds_write_b32 v9, v{T} offset:{L_Q}")
    A("s_waitcnt lgkmcnt(0)")
    A("s_branch L_b1")
    A("L_idle:")
    A("s_waitcnt vmcnt(0)")
    A(f"v_readfirstlane_b32 s72, v{VE}")
    A("s_barrier")
    A(f"s_mul_i32 s72, s72, {TAG_A}")
    A(f"s_add_u32 s72, s72, {TAG_C}")
    A("L_b1:")
    A("s_barrier")
    stamp(2)
    srd(56, 20, 1728 * 1280)
    srd(60, 12, 4096 * 1280)
    srd(68, 22, 4 * 1280)
    A(f"v_mul_u32_u24 v{VW}, 1280, v3")
    A(f"v_lshl_add_u32 v{VW}, v2, 4, v{VW}")
    for r in range(20):
        A(f"v_mov_b32 v{Y+r}, 0")
    A("s_mul_i32 s35, s28, 1280")
    A("s_lshl_b32 s36, s31, 5")
    A("s_add_u32 s35, s35, s36")
    A("v_lshlrev_b32 v10, 2, v0")
    A(f"buffer_load_dword v{VXR}, v10, s[40:43], s35 offen")

    def mkA(setidx, preg, j):
        for r in range(4):
            A(f"v_and_b32_dpp v{AR+4*setidx+r}, v{preg}, v{4+r} row_newbcast:{j} row_mask:0xf bank_mask:0xf")

    A("s_cmp_lg_u32 s34, 1")
    A("s_cbranch_scc1 L_noffn")
    if noffn:
        A("s_branch L_noffn")
    A(f"s_mul_i32 s35, s31, {27*1280}")
    for kap in range(7):
        for t in range(5):
            r = BUF + 4 * (kap * 5 + t)
            A(f"buffer_load_dwordx4 v[{r}:{r+3}], v{VW}, s[56:59], s35 offen offset:{t*256} {dpol}")
        if kap != 6:
            A(f"s_add_u32 s35, s35, {4*1280}")
    A("v_and_b32 v8, 7, v2")
    A("v_lshl_add_u32 v8, v8, 2, v3")
    A("v_min_u32 v8, 26, v8")
    A("s_mul_i32 s35, s31, 27")
    A("v_add_u32 v8, s35, v8")
    A("v_lshrrev_b32 v9, 7, v8")
    A("v_lshlrev_b32 v9, 16, v9")
    A("v_lshrrev_b32 v10, 3, v2")
    A(f"v_mul_u32_u24 v10, {224*4096}, v10")
    A("v_add_u32 v9, v9, v10")
    A("v_bfe_u32 v10, v8, 1, 2")
    A("v_lshl_add_u32 v9, v10, 10, v9")
    A("v_bfe_u32 v10, v8, 3, 4")
    A("v_lshl_add_u32 v9, v10, 4, v9")
    A("v_and_b32 v10, 1, v8")
    A("v_lshl_add_u32 v9, v10, 3, v9")
    A("s_lshl_b32 s82, s28, 8")
    A(f"s_add_u32 s82, s82, {WS_GP}")
    A(f"s_mov_b32 s36, {SPIN}")
    A("L_pollg:")
    A("s_mov_b32 s35, s82")
    for n in range(16):
        r = G + 2 * n
        A(f"buffer_load_dwordx2 v[{r}:{r+1}], v9, s[64:67], s35 offen sc1")
        if n != 15:
            A("s_add_u32 s35, s35, 4096")
    A("s_waitcnt vmcnt(0)")
    A(f"v_min3_u32 v8, v{G+1}, v{G+3}, v{G+5}")
    A(f"v_max3_u32 v10, v{G+1}, v{G+3}, v{G+5}")
    for q in range(7, 31, 4):
        A(f"v_min3_u32 v8, v8, v{G+q}, v{G+q+2}")
        A(f"v_max3_u32 v10, v10, v{G+q}, v{G+q+2}")
    A(f"v_min_u32 v8, v8, v{G+31}")
    A(f"v_max_u32 v10, v10, v{G+31}")
    A("v_cmp_ne_u32 vcc, s72, v8")
    A("v_cmp_ne_u32_e64 s[74:75], s72, v10")
    nop(2)
    A("s_or_b64 s[74:75], vcc, s[74:75]")
    A("s_cbranch_scc0 L_pollg_done")
    A("s_sub_u32 s36, s36, 1")
    A("s_cmp_lg_u32 s36, 0")
    A("s_cbranch_scc1 L_pollg")
    A("L_pollg_done:")
    stamp(9)
    for a in range(8):
        A(f"v_add_f32 v{G+4*a}, v{G+4*a}, v{G+4*a+2}")
    for a in range(4):
        A(f"v_add_f32 v{G+8*a}, v{G+8*a}, v{G+8*a+4}")
    for a in range(2):
        A(f"v_add_f32 v{G+16*a}, v{G+16*a}, v{G+16*a+8}")
    A(f"v_add_f32 v{G}, v{G}, v{G+16}")
    A(f"v_cvt_pk_bf16_f32 v{G}, v{G}, v{G}")
    A(f"v_lshlrev_b32 v{G}, 16, v{G}")
    A("v_cmp_ne_u32 vcc, 54, v0")
    nop(1)
    A(f"v_mov_b32_dpp v{G+1}, v{G} row_ror:8 row_mask:0xf bank_mask:0xf")
    A(f"v_max_f32 v{G}, 0, v{G}")
    A(f"v_mul_f32 v{G}, v{G}, v{G+1}")
    A(f"v_cvt_pk_bf16_f32 v{G}, v{G}, v{G}")
    A(f"v_cndmask_b32 v{G}, 0, v{G}, vcc")
    nop(2)
    mkA(0, G, 0)
    for kap in range(7):
        if kap + 1 < 7:
            mkA((kap + 1) & 1, G, kap + 1)
        else:
            nop(2)
        a = AR + 4 * (kap & 1)
        for t in range(5):
            b = BUF + 4 * (kap * 5 + t)
            A(f"v_mfma_f32_16x16x32_bf16 v[{Y+4*t}:{Y+4*t+3}], v[{a}:{a+3}], v[{b}:{b+3}], v[{Y+4*t}:{Y+4*t+3}]")
    stamp(11)
    A("L_noffn:")
    def wo_loads():
        A("s_lshl_b32 s35, s29, 7")
        A("s_lshl_b32 s36, s34, 5")
        A("s_add_u32 s35, s35, s36")
        A("s_mul_i32 s35, s35, 1280")
        for kap in range(8):
            for t in range(5):
                r = BUF + 4 * (kap * 5 + t)
                if not nowo:
                    A(f"buffer_load_dwordx4 v[{r}:{r+3}], v{VW}, s[60:63], s35 offen offset:{t*256} {wpol}")
            if kap != 7:
                A(f"s_add_u32 s35, s35, {4*1280}")
    if WOAT == 0:
        wo_loads()
    stamp(3)
    A("s_barrier")
    if WOAT == 1:
        wo_loads()
    A("v_mov_b32 v8, 0")
    A(f"ds_read_b128 v[{T}:{T+3}], v8 offset:{L_ST}")
    A(f"ds_read_b128 v[{T+4}:{T+7}], v8 offset:{L_ST+16}")
    A(f"s_mov_b32 s73, {hex(LOG2E)}")
    A("s_waitcnt lgkmcnt(0)")
    A(f"v_max3_f32 v{T+8}, v{T}, v{T+2}, v{T+4}")
    A(f"v_max_f32 v{T+8}, v{T+8}, v{T+6}")
    for w in range(4):
        A(f"v_sub_f32 v{G+w}, v{T+2*w}, v{T+8}")
    for w in range(4):
        A(f"v_mul_f32 v{G+w}, s73, v{G+w}")
    for w in range(4):
        A(f"v_exp_f32 v{G+w}, v{G+w}")
    nop(1)
    A(f"v_mul_f32 v{T+10}, v{G}, v{T+1}")
    for w in range(1, 4):
        A(f"v_fma_f32 v{T+10}, v{G+w}, v{T+2*w+1}, v{T+10}")
    A(f"v_mov_b32 v{T+9}, s72")
    A(f"v_mov_b32 v{T+11}, s72")
    A("s_lshl_b32 s35, s30, 7")
    A(f"s_add_u32 s35, s35, {WS_ST}")
    A("s_cmp_lg_u32 s34, 0")
    A("s_cbranch_scc1 L_nopub")
    A("s_mov_b64 exec, 1")
    A(f"buffer_store_dwordx4 v[{T+8}:{T+11}], off, s[64:67], s35 sc1")
    A("s_mov_b64 exec, -1")
    A("L_nopub:")
    A("s_xor_b32 s35, s35, 128")
    A(f"s_mov_b32 s36, {SPIN}")
    A("L_poll1:")
    A(f"buffer_load_dwordx4 v[{T+12}:{T+15}], off, s[64:67], s35 sc1")
    A("s_waitcnt vmcnt(0)")
    A(f"v_cmp_ne_u32 vcc, s72, v{T+13}")
    A(f"v_cmp_ne_u32_e64 s[74:75], s72, v{T+15}")
    nop(2)
    A("s_or_b64 s[74:75], vcc, s[74:75]")
    A("s_cbranch_scc0 L_poll1_done")
    A("s_sub_u32 s36, s36, 1")
    A("s_cmp_lg_u32 s36, 0")
    A("s_cbranch_scc1 L_poll1")
    A("L_poll1_done:")
    A(f"v_max_f32 v{G+4}, v{T+8}, v{T+12}")
    A(f"v_sub_f32 v{G+5}, v{T+8}, v{G+4}")
    A(f"v_sub_f32 v{G+6}, v{T+12}, v{G+4}")
    A(f"v_mul_f32 v{G+5}, s73, v{G+5}")
    A(f"v_mul_f32 v{G+6}, s73, v{G+6}")
    A(f"v_exp_f32 v{G+5}, v{G+5}")
    A(f"v_exp_f32 v{G+6}, v{G+6}")
    nop(1)
    A(f"v_mul_f32 v{G+7}, v{G+5}, v{T+10}")
    A(f"v_fma_f32 v{G+7}, v{G+6}, v{T+14}, v{G+7}")
    A(f"v_rcp_f32 v{G+6}, v{G+7}")
    nop(1)
    A(f"v_fma_f32 v{G+4}, -v{G+7}, v{G+6}, 1.0")
    A(f"v_fma_f32 v{G+6}, v{G+4}, v{G+6}, v{G+6}")
    A(f"v_mul_f32 v{G+5}, v{G+5}, v{G+6}")
    for w in range(4):
        A(f"v_mul_f32 v{G+w}, v{G+w}, v{G+5}")
    A("v_and_b32 v9, 7, v2")
    A("v_lshl_add_u32 v9, v9, 2, v3")
    A("s_lshl_b32 s35, s34, 5")
    A("v_add_u32 v9, s35, v9")
    A("v_lshlrev_b32 v9, 2, v9")
    A("v_lshlrev_b32 v8, 5, v2")
    A("v_lshl_add_u32 v8, v3, 4, v8")
    A("s_mul_i32 s35, s34, 2560")
    A("v_add_u32 v8, s35, v8")
    A("s_lshl_b32 s35, s34, 6")
    A("v_add_u32 v10, s35, v0")
    A("s_lshl_b32 s35, s34, 4")
    A("s_add_u32 s35, s35, 256")
    A("v_add_u32 v11, s35, v2")
    A(f"v_lshlrev_b32 v{T+12}, 3, v10")
    A(f"v_lshlrev_b32 v{T+13}, 3, v11")
    for (src, dst) in ((10, T + 14), (11, T + 15)):
        A(f"v_lshrrev_b32 v{dst}, 3, v{src}")
        A(f"v_lshlrev_b32 v{dst}, 13, v{dst}")
        A(f"v_and_b32 v{src}, 7, v{src}")
        A(f"v_lshl_add_u32 v{dst}, v{src}, 4, v{dst}")
    A("v_cmp_gt_u32 vcc, 16, v0")
    A(f"v_mov_b32 v10, 0x7ffffff0")
    nop(1)
    A(f"v_cndmask_b32 v{T+15}, v10, v{T+15}, vcc")
    A(f"s_mul_i32 s76, s28, {40*8192}")
    A(f"s_add_u32 s76, s76, {WS_Y}")
    A("s_lshl_b32 s77, s31, 7")
    A("s_add_u32 s77, s77, s76")
    stamp(4)
    A("s_barrier")
    stamp(5)
    for w in range(4):
        A(f"ds_read_b32 v{T+w}, v9 offset:{L_OP+w*512}")
    A("s_waitcnt lgkmcnt(0)")
    A(f"v_mul_f32 v{T}, v{T}, v{G}")
    for w in range(1, 4):
        A(f"v_fma_f32 v{T}, v{T+w}, v{G+w}, v{T}")
    A(f"v_cvt_pk_bf16_f32 v{T}, v{T}, v{T}")
    nop(2)
    mkA(0, T, 0)
    for kap in range(8):
        if kap + 1 < 8:
            mkA((kap + 1) & 1, T, kap + 1)
        else:
            nop(2)
        a = AR + 4 * (kap & 1)
        for t in range(5):
            b = BUF + 4 * (kap * 5 + t)
            A(f"v_mfma_f32_16x16x32_bf16 v[{Y+4*t}:{Y+4*t+3}], v[{a}:{a+3}], v[{b}:{b+3}], v[{Y+4*t}:{Y+4*t+3}]")
    A("s_mov_b32 exec_hi, 0")
    nop(5)
    for t in range(5):
        A(f"ds_write_b128 v8, v[{Y+4*t}:{Y+4*t+3}] offset:{L_YP+t*512}")
    A("s_mov_b64 exec, -1")
    A("s_waitcnt lgkmcnt(0)")
    A("s_barrier")
    for vv in range(4):
        A(f"ds_read_b64 v[{G+2*vv}:{G+2*vv+1}], v{T+12} offset:{L_YP+vv*2560}")
        A(f"ds_read_b64 v[{G+8+2*vv}:{G+8+2*vv+1}], v{T+13} offset:{L_YP+vv*2560}")
    A(f"v_mov_b32 v{T+1}, s72")
    A(f"v_mov_b32 v{T+3}, s72")
    A(f"v_mov_b32 v{T+5}, s72")
    A(f"v_mov_b32 v{T+7}, s72")
    A("s_waitcnt lgkmcnt(0)")
    for (base, dst) in ((G, T), (G + 8, T + 4)):
        A(f"v_add_f32 v{base}, v{base}, v{base+2}")
        A(f"v_add_f32 v{base+1}, v{base+1}, v{base+3}")
        A(f"v_add_f32 v{base+4}, v{base+4}, v{base+6}")
        A(f"v_add_f32 v{base+5}, v{base+5}, v{base+7}")
        A(f"v_add_f32 v{dst}, v{base}, v{base+4}")
        A(f"v_add_f32 v{dst+2}, v{base+1}, v{base+5}")
    A(f"buffer_store_dwordx4 v[{T}:{T+3}], v{T+14}, s[64:67], s77 offen sc1")
    A(f"buffer_store_dwordx4 v[{T+4}:{T+7}], v{T+15}, s[64:67], s77 offen sc1")
    stamp(6)
    A("s_cmp_lg_u32 s34, 0")
    A("s_cbranch_scc1 L_flush")
    A("s_cmp_ge_u32 s31, 40")
    A("s_cbranch_scc1 L_flush")
    A("s_lshl_b32 s35, s31, 13")
    A("s_add_u32 s35, s35, s76")
    A("v_lshlrev_b32 v9, 4, v0")
    A("v_add_u32 v10, 0x1000, v9")
    A(f"s_mov_b32 s36, {SPIN}")
    A("L_poll2:")
    for n in range(8):
        r = BUF + 4 * n
        A(f"buffer_load_dwordx4 v[{r}:{r+3}], v{9 + (n >> 2)}, s[64:67], s35 offen offset:{(n&3)*1024} sc1")
    A("s_waitcnt vmcnt(0)")
    A(f"v_min3_u32 v{T}, v{BUF+1}, v{BUF+3}, v{BUF+5}")
    A(f"v_max3_u32 v{T+1}, v{BUF+1}, v{BUF+3}, v{BUF+5}")
    for q in range(7, 31, 4):
        A(f"v_min3_u32 v{T}, v{T}, v{BUF+q}, v{BUF+q+2}")
        A(f"v_max3_u32 v{T+1}, v{T+1}, v{BUF+q}, v{BUF+q+2}")
    A(f"v_min_u32 v{T}, v{T}, v{BUF+31}")
    A(f"v_max_u32 v{T+1}, v{T+1}, v{BUF+31}")
    A(f"v_cmp_ne_u32 vcc, s72, v{T}")
    A(f"v_cmp_ne_u32_e64 s[74:75], s72, v{T+1}")
    nop(2)
    A("s_or_b64 s[74:75], vcc, s[74:75]")
    A("s_cbranch_scc0 L_poll2_done")
    A("s_sub_u32 s36, s36, 1")
    A("s_cmp_lg_u32 s36, 0")
    A("s_cbranch_scc1 L_poll2")
    A("L_poll2_done:")
    A(f"v_add_f32 v{T}, v{BUF}, v{BUF+4}")
    A(f"v_add_f32 v{T+1}, v{BUF+2}, v{BUF+6}")
    A(f"v_add_f32 v{T+2}, v{BUF+8}, v{BUF+12}")
    A(f"v_add_f32 v{T+3}, v{BUF+10}, v{BUF+14}")
    A(f"v_add_f32 v{T+4}, v{BUF+16}, v{BUF+20}")
    A(f"v_add_f32 v{T+5}, v{BUF+18}, v{BUF+22}")
    A(f"v_add_f32 v{T+6}, v{BUF+24}, v{BUF+28}")
    A(f"v_add_f32 v{T+7}, v{BUF+26}, v{BUF+30}")
    A(f"v_add_f32 v{T}, v{T}, v{T+2}")
    A(f"v_add_f32 v{T+1}, v{T+1}, v{T+3}")
    A(f"v_add_f32 v{T+4}, v{T+4}, v{T+6}")
    A(f"v_add_f32 v{T+5}, v{T+5}, v{T+7}")
    A(f"v_add_f32 v{T}, v{T}, v{T+4}")
    A(f"v_add_f32 v{T+1}, v{T+1}, v{T+5}")
    nop(2)
    A(f"v_permlane32_swap_b32 v{T}, v{T+1}")
    nop(1)
    A(f"v_add_f32 v{T}, v{T}, v{T+1}")
    A(f"v_mov_b32 v{T+1}, v{T}")
    nop(2)
    A(f"v_permlane16_swap_b32 v{T}, v{T+1}")
    nop(1)
    A(f"v_add_f32 v{T}, v{T}, v{T+1}")
    nop(2)
    A(f"v_add_f32_dpp v{T}, v{T}, v{T} row_ror:8 row_mask:0xf bank_mask:0xf")
    A(f"v_mov_b32 v{T+1}, v{T}")
    nop(2)
    A(f"v_permlane32_swap_b32 v{T}, v{T+1}")
    A(f"v_lshlrev_b32 v{T+2}, 16, v{VXR}")
    A(f"v_and_b32 v{T+3}, 0xffff0000, v{VXR}")
    A(f"v_add_f32 v{T}, v{T}, v{T+2}")
    A(f"v_add_f32 v{T+1}, v{T+1}, v{T+3}")
    A(f"v_cvt_pk_bf16_f32 v{T}, v{T}, v{T+1}")
    A("s_mul_i32 s35, s28, 1280")
    A("s_lshl_b32 s36, s31, 5")
    A("s_add_u32 s35, s35, s36")
    A("v_lshlrev_b32 v9, 2, v0")
    A("s_mov_b64 exec, 0xff")
    A(f"buffer_store_dword v{T}, v9, s[68:71], s35 offen")
    A("s_or_b32 s36, s31, s28")
    A("s_cmp_lg_u32 s36, 0")
    A("s_cbranch_scc1 L_fin")
    A("s_mov_b64 exec, 1")
    A(f"v_mov_b32 v{T+1}, s72")
    A(f"buffer_store_dword v{T+1}, off, s[64:67], 0 offset:{WS_E} sc1")
    A("L_fin:")
    stamp(7)
    A("L_flush:")
    stamp_flush()
    A("L_end:")
    A("s_endpgm")

    body = "\n".join(("    " + l) if not l.endswith(":") else l for l in L) + "\n"
    return (HEADER % (LDS_SIZE, NAME, NAME, NAME)) + body + (FOOTER % NAME)


if __name__ == "__main__":
    kw = {}
    out = f"cdna_kernels/{NAME}.s"
    for a in sys.argv[1:]:
        if a.startswith("out="):
            out = a[4:]
            continue
        k, v = a.split("=")
        try:
            v = int(v)
        except ValueError:
            pass
        kw[k] = v
    open(out, "w").write(gen(**kw))
    print("wrote", out)
```

```python
import sys

NAME = "parallel_sum__gqa_block_cached__glu_gated_reglu__decode"

HEADER = """; Fused LN -> {GQA decode attention, ReGLU FFN} -> residual sum.  Generated by gen_kernel.py (hand-designed schedule).
; @launch grid=(256,1,1) block=(512,1,1) lds=%d
.amdgcn_target "amdgcn-amd-amdhsa--gfx950"
.text
.globl %s_kernel
.p2align 8
.type %s_kernel,@function
%s_kernel:
"""

FOOTER = """.section .rodata,"a"
.p2align 6
.amdhsa_kernel %s_kernel
  .amdhsa_next_free_vgpr 256
  .amdhsa_next_free_sgpr 102
  .amdhsa_accum_offset 256
  .amdhsa_group_segment_fixed_size 0
  .amdhsa_kernarg_size 96
  .amdhsa_user_sgpr_count 2
  .amdhsa_user_sgpr_kernarg_segment_ptr 1
  .amdhsa_system_sgpr_workgroup_id_x 1
.end_amdhsa_kernel
"""

L_Q = 0
L_TAG = 256
L_F = 384
L_ST = 2048
L_OP = 2560
L_YP = 4608
LDS_SIZE = 4608 + 4 * 2560

WS_E = 0
WS_ST = 4096
WS_Y = 65536
WS_QP = 0x160000
WS_GP = 0x260000
WS_DBG = 0x480000
WS_SIZE = 0x500000

TAG_A = 1664525
TAG_C = 1013904223
LOG2E = 0x3FB8AA3B
SCALE = 0x3DB504F3
SPIN = 20000


def gen(rot=0, LAL=6, GS=2, PRE=32, PREV=16, prio=0, NPRE=0, stamps=False, kpol="nt", wpol="nt", apol="nt", dpol="nt", WOAT=0, WOP=4, WDAT=0, FP=0, B0=1, ACK=1, noffn=0, nowo=0, nowq=0, nofl=0, ppol="sc1", gpol="sc1 nt", qgpol="sc1 nt", qppol="sc1", ygpol="sc1", npub=4, nopub=0, nowd=0, nog=0):
    L = []
    A = L.append

    def nop(n):
        assert 1 <= n <= 16
        A(f"s_nop {n-1}")

    def stamp(idx):
        if not stamps:
            return
        A("s_memrealtime s[90:91]")
        A("s_waitcnt lgkmcnt(0)")
        A(f"v_writelane_b32 v62, s90, {idx}")

    def stamp_flush():
        if not stamps:
            return
        A("s_mov_b64 exec, 0xffff")
        A("v_lshlrev_b32 v61, 2, v63")
        A("buffer_store_dword v62, v61, s[84:87], s88 offen")

    A("s_cmp_ge_u32 s2, 256")
    A("s_cbranch_scc1 L_end")
    A("s_load_dwordx16 s[4:19], s[0:1], 0")
    A("s_load_dwordx8 s[20:27], s[0:1], 64")
    A("v_lshrrev_b32 v1, 6, v0")
    A("v_and_b32 v0, 63, v0")
    A("v_readfirstlane_b32 s3, v1")
    if rot:
        A(f"s_add_u32 s32, s2, {rot}")
        A("s_and_b32 s32, s32, 7")
    else:
        A("s_and_b32 s32, s2, 7")
    A("s_lshr_b32 s35, s2, 3")
    A("s_lshr_b32 s36, s35, 3")
    A("s_and_b32 s37, s35, 7")
    A("s_lshr_b32 s28, s37, 1")
    A("s_and_b32 s38, s37, 1")
    A("s_lshl_b32 s39, s36, 3")
    A("s_add_u32 s29, s32, s39")
    A("s_lshl_b32 s39, s28, 5")
    A("s_add_u32 s39, s39, s29")
    A("s_lshl_b32 s39, s39, 1")
    A("s_add_u32 s30, s39, s38")
    A("s_lshl_b32 s33, s36, 1")
    A("s_add_u32 s33, s33, s38")
    A("s_lshl_b32 s31, s33, 3")
    A("s_add_u32 s31, s31, s32")
    A("v_and_b32 v2, 15, v0")
    A("v_lshrrev_b32 v3, 4, v0")
    A("v_and_b32 v8, 1, v2")
    A("v_lshlrev_b32 v8, 4, v8")
    A("v_mov_b32 v9, 0xffff")
    A("v_lshlrev_b32 v9, v8, v9")
    A("v_lshrrev_b32 v10, 1, v2")
    for r in range(4):
        A(f"v_cmp_eq_u32 vcc, {r}, v10")
        nop(2)
        A(f"v_cndmask_b32 v{4+r}, 0, v9, vcc")
    A("s_waitcnt lgkmcnt(0)")
    if stamps:
        A("s_mov_b32 s84, s26")
        A("s_and_b32 s85, s27, 0xffff")
        A(f"s_mov_b32 s86, {WS_SIZE}")
        A("s_mov_b32 s87, 0x20000")
        A("s_lshl_b32 s88, s2, 3")
        A("s_add_u32 s88, s88, s3")
        A("s_lshl_b32 s88, s88, 6")
        A(f"s_add_u32 s88, s88, {WS_DBG}")
        A("v_mov_b32 v62, 0")
        A("v_mov_b32 v63, v0")
    stamp(0)
    A("s_cmp_ge_u32 s3, 4")
    A("s_cbranch_scc1 L_service")

    RING = 128
    Q = 12
    S = 16
    SC = 32
    AR = 64
    D = 80
    T = 84
    A("s_lshl_b32 s35, s30, 20")
    A("s_lshr_b32 s36, s30, 12")
    A("s_add_u32 s40, s6, s35")
    A("s_addc_u32 s41, s7, s36")
    A("s_and_b32 s41, s41, 0xffff")
    A("s_mov_b32 s42, 0x100000")
    A("s_mov_b32 s43, 0x20000")
    A("s_add_u32 s44, s8, s35")
    A("s_addc_u32 s45, s9, s36")
    A("s_and_b32 s45, s45, 0xffff")
    A("s_lshl_b32 s35, s3, 12")
    A("v_lshlrev_b32 v11, 4, v0")
    A("v_add_u32 v11, s35, v11")
    A("s_mov_b32 s46, 0")

    assert PREV % GS == 0 and LAL <= PREV <= 32 and LAL % GS == 0 and PRE % GS == 0 and LAL <= PRE <= 32 and LAL + GS <= 32 and 16 % GS == 0

    def issue_load(m):
        r = RING + (m % 32) * 4
        A(f"buffer_load_dwordx4 v[{r}:{r+3}], v11, s[40:43], s46 offen offset:{(m % 4)*1024} {kpol}")
        if m % 4 == 3:
            A("s_add_u32 s46, s46, 0x4000")

    for m in range(LAL):
        if B0 and m == NPRE:
            A("s_barrier")
        issue_load(m)
    if B0 and NPRE >= LAL:
        A("s_barrier")
    for m0 in range(LAL, PRE, GS):
        A(f"s_waitcnt vmcnt({LAL - GS})")
        for m in range(m0, m0 + GS):
            issue_load(m)
    A("s_mov_b32 s48, 0xaaaaaaaa")
    A("s_mov_b32 s49, 0xaaaaaaaa")
    A("s_mov_b32 s50, 0xcccccccc")
    A("s_mov_b32 s51, 0xcccccccc")
    A(f"s_mov_b32 s52, {hex(SCALE)}")
    A(f"s_mov_b32 s53, {hex(LOG2E)}")
    A("v_lshlrev_b32 v10, 5, v2")
    for r in range(4):
        A(f"v_mov_b32 v{D+r}, 0")
    stamp(1)
    A("s_barrier")
    stamp(2)
    A("v_lshlrev_b32 v9, 4, v2")
    A(f"ds_read_b128 v[{Q}:{Q+3}], v9 offset:{L_Q}")
    A("s_waitcnt lgkmcnt(0)")
    A("s_mov_b32 s47, 0")
    nop(2)

    A("s_mov_b64 vcc, -1")
    A("L_ktrip:")
    for half in range(2):
        for n in range(16 * half, 16 * half + 16, GS):
            if n == 32 - LAL:
                A("s_cmp_lg_u32 s47, 7")
                A("s_cbranch_scc1 L_knosw")
                A("s_mov_b32 s40, s44")
                A("s_mov_b32 s41, s45")
                A("s_mov_b32 s46, 0")
                A("L_knosw:")
            A(f"s_waitcnt vmcnt({LAL - GS})")
            skip = n + LAL < PRE
            if skip:
                A(f"s_cbranch_vccnz L_kskip{n}")
            for m in range(n + LAL, n + LAL + GS):
                issue_load(m)
            if skip:
                A(f"L_kskip{n}:")
            for r in range(4):
                for i in range(GS):
                    src = RING + (n + i) * 4 + r
                    d = S + (n + i) % 16
                    c = "0" if r == 0 else f"v{d}"
                    A(f"v_dot2_f32_bf16 v{d}, v{src}, v{Q+r}, {c}")
        nop(3)
        for j in range(8):
            A(f"v_add_f32_dpp v{S+j}, v{S+j}, v{S+j} row_ror:8 row_mask:0xf bank_mask:0x3")
        for j in range(8):
            A(f"v_add_f32_dpp v{S+j}, v{S+j+8}, v{S+j+8} row_ror:8 row_mask:0xf bank_mask:0xc")
        for j in range(4):
            A(f"v_add_f32_dpp v{S+j}, v{S+j}, v{S+j} row_half_mirror row_mask:0xf bank_mask:0x5")
        for j in range(4):
            A(f"v_add_f32_dpp v{S+j}, v{S+j+4}, v{S+j+4} row_half_mirror row_mask:0xf bank_mask:0xa")
        A(f"v_cndmask_b32_e64 v{T+0}, v{S+2}, v{S+0}, s[50:51]")
        A(f"v_cndmask_b32_e64 v{T+2}, v{S+0}, v{S+2}, s[50:51]")
        A(f"v_cndmask_b32_e64 v{T+1}, v{S+3}, v{S+1}, s[50:51]")
        A(f"v_cndmask_b32_e64 v{T+3}, v{S+1}, v{S+3}, s[50:51]")
        nop(1)
        A(f"v_add_f32_dpp v{T+2}, v{T+0}, v{T+2} quad_perm:[2,3,0,1] row_mask:0xf bank_mask:0xf")
        A(f"v_add_f32_dpp v{T+3}, v{T+1}, v{T+3} quad_perm:[2,3,0,1] row_mask:0xf bank_mask:0xf")
        A(f"v_cndmask_b32_e64 v{T+0}, v{T+3}, v{T+2}, s[48:49]")
        A(f"v_cndmask_b32_e64 v{T+1}, v{T+2}, v{T+3}, s[48:49]")
        nop(2)
        A(f"v_add_f32_dpp v{T+1}, v{T+0}, v{T+1} quad_perm:[1,0,3,2] row_mask:0xf bank_mask:0xf")
        A(f"v_cvt_pk_bf16_f32 v{T+1}, v{T+1}, v{T+1}")
        A(f"v_lshlrev_b32 v{T+1}, 16, v{T+1}")
        A(f"v_mul_f32 v{T+1}, s52, v{T+1}")
        A(f"v_cvt_pk_bf16_f32 v{T+1}, v{T+1}, v{T+1}")
        if half == 0:
            A(f"v_lshlrev_b32 v{T+4}, 16, v{T+1}")
        else:
            for kk in range(14):
                A(f"v_mov_b32 v{SC+kk}, v{SC+kk+2}")
            A(f"v_mov_b32 v{SC+14}, v{T+4}")
            A(f"v_lshlrev_b32 v{SC+15}, 16, v{T+1}")
    A("s_mov_b64 vcc, 0")
    A("s_add_u32 s47, s47, 1")
    A("s_cmp_lt_u32 s47, 8")
    A("s_cbranch_scc1 L_ktrip")
    stamp(3)
    for m in range(LAL, PREV):
        issue_load(m)

    def allreduce(op, reg, tmp):
        for sh in (8, 4, 2, 1):
            nop(2)
            A(f"{op}_dpp v{reg}, v{reg}, v{reg} row_ror:{sh} row_mask:0xf bank_mask:0xf")
        A(f"v_mov_b32 v{tmp}, v{reg}")
        nop(2)
        A(f"v_permlane16_swap_b32 v{reg}, v{tmp}")
        nop(1)
        A(f"{op} v{reg}, v{reg}, v{tmp}")
        A(f"v_mov_b32 v{tmp}, v{reg}")
        nop(2)
        A(f"v_permlane32_swap_b32 v{reg}, v{tmp}")
        nop(1)
        A(f"{op} v{reg}, v{reg}, v{tmp}")

    M = T
    A(f"v_max3_f32 v{M}, v{SC}, v{SC+1}, v{SC+2}")
    for kk in range(3, 15, 2):
        A(f"v_max3_f32 v{M}, v{M}, v{SC+kk}, v{SC+kk+1}")
    A(f"v_max_f32 v{M}, v{M}, v{SC+15}")
    allreduce("v_max_f32", M, T + 2)
    for kk in range(16):
        A(f"v_sub_f32 v{SC+kk}, v{SC+kk}, v{M}")
    for kk in range(16):
        A(f"v_mul_f32 v{SC+kk}, s53, v{SC+kk}")
    for kk in range(16):
        A(f"v_exp_f32 v{SC+kk}, v{SC+kk}")
    nop(1)
    LS = T + 1
    A(f"v_add_f32 v{LS}, v{SC}, v{SC+1}")
    for kk in range(2, 16):
        A(f"v_add_f32 v{LS}, v{LS}, v{SC+kk}")
    for kk in range(16):
        A(f"v_cvt_pk_bf16_f32 v{SC+kk}, v{SC+kk}, v{SC+kk}")
    allreduce("v_add_f32", LS, T + 2)
    A("s_lshl_b32 s35, s3, 3")
    A(f"v_mov_b32 v{T+3}, s35")
    A(f"ds_write_b64 v{T+3}, v[{M}:{M+1}] offset:{L_ST}")
    A("s_waitcnt lgkmcnt(0)")
    A("s_barrier")
    stamp(4)

    A("s_mov_b32 s47, 0")
    A("s_mov_b64 vcc, -1")
    A("L_vtrip:")
    for n in range(0, 32, GS):
        for i in range(GS):
            pr = SC + ((n + i) >> 4)
            j = (n + i) & 15
            for r in range(4):
                A(f"v_and_b32_dpp v{AR+4*i+r}, v{pr}, v{4+r} row_newbcast:{j} row_mask:0xf bank_mask:0xf")
        if n + GS == 32:
            for kk in range(14):
                A(f"v_mov_b32 v{SC+kk}, v{SC+kk+2}")
        A(f"s_waitcnt vmcnt({LAL - GS})")
        skip = n + LAL < PREV
        if skip:
            A(f"s_cbranch_vccnz L_vskip{n}")
        for m in range(n + LAL, n + LAL + GS):
            issue_load(m)
        if skip:
            A(f"L_vskip{n}:")
            nop(1)
        for i in range(GS):
            src = RING + (n + i) * 4
            A(f"v_mfma_f32_16x16x32_bf16 v[{D}:{D+3}], v[{AR+4*i}:{AR+4*i+3}], v[{src}:{src+3}], v[{D}:{D+3}]")
    A("s_mov_b64 vcc, 0")
    A("s_add_u32 s47, s47, 1")
    A("s_cmp_lt_u32 s47, 8")
    A("s_cbranch_scc1 L_vtrip")
    stamp(5)
    A("s_lshl_b32 s35, s3, 9")
    A("v_lshlrev_b32 v8, 4, v3")
    A("v_add3_u32 v8, v8, v10, s35")
    A("s_mov_b32 exec_hi, 0")
    nop(4)
    A(f"ds_write_b128 v8, v[{D}:{D+3}] offset:{L_OP}")
    A("s_waitcnt lgkmcnt(0)")
    A("s_barrier")
    stamp(6)
    stamp_flush()
    A("s_endpgm")

    A("L_service:")
    if prio:
        A(f"s_setprio {prio}")
    VW = 1
    M2 = 12
    PC = 14
    VE = 19
    DQ = 20
    A2 = 28
    Y = 32
    AR = 52
    VXR = 60
    G = 64
    T = 80
    BUF = 96
    XU = 176
    XS = 216
    A("s_sub_u32 s34, s3, 4")
    def srd(base, ptr, size):
        A(f"s_mov_b32 s{base}, s{ptr}")
        A(f"s_and_b32 s{base+1}, s{ptr+1}, 0xffff")
        A(f"s_mov_b32 s{base+2}, {size}")
        A(f"s_mov_b32 s{base+3}, 0x20000")
    srd(64, 26, WS_SIZE)
    srd(40, 4, 4 * 1280)
    A("s_cmp_eq_u32 s34, 0")
    A("s_cbranch_scc0 L_idle")
    A(f"buffer_load_dword v{VE}, off, s[64:67], 0 offset:{WS_E} sc1")
    A("v_lshrrev_b32 v8, 2, v2")
    A("v_mul_u32_u24 v8, 1280, v8")
    A("v_and_b32 v10, 3, v2")
    A("v_lshl_add_u32 v11, v10, 2, v3")
    A("v_lshl_add_u32 v9, v11, 1, v8")
    A("v_lshl_add_u32 v11, v3, 2, v10")
    A("v_lshl_add_u32 v8, v11, 4, v8")
    A("s_lshr_b32 s80, s2, 3")
    A("s_and_b32 s80, s80, 7")
    A("s_mul_i32 s36, s80, 160")
    for i in range(5):
        A(f"buffer_load_dwordx4 v[{XS+4*i}:{XS+4*i+3}], v8, s[40:43], 0 offen offset:{i*256}")
    for q in range(5):
        A(f"buffer_load_ushort v{PC+q}, v9, s[40:43], s36 offen offset:{q*32}")
    srd(44, 10, 640 * 8192)
    A("v_lshlrev_b32 v10, 13, v3")
    A("v_lshl_add_u32 v10, v2, 4, v10")
    A(f"s_mul_i32 s35, s80, {80*8192}")
    A("s_lshl_b32 s36, s29, 8")
    A("s_add_u32 s35, s35, s36")
    for n in range(20):
        r = BUF + 4 * n
        if not nowq:
            A(f"buffer_load_dwordx4 v[{r}:{r+3}], v10, s[44:47], s35 offen {apol}")
        if n != 19:
            A(f"s_add_u32 s35, s35, {4*8192}")
    if B0:
        A("s_barrier")
    stamp(12)
    A("s_lshl_b32 s81, s29, 15")
    A("s_lshl_b32 s36, s80, 12")
    A("s_add_u32 s81, s81, s36")
    A(f"s_add_u32 s81, s81, {WS_QP}")
    def masks2():
        A("v_and_b32 v8, 1, v2")
        A("v_lshlrev_b32 v8, 4, v8")
        A("v_mov_b32 v9, 0xffff")
        A("v_lshlrev_b32 v9, v8, v9")
        A("v_and_b32 v10, 2, v2")
        A("v_cmp_eq_u32 vcc, 0, v10")
        for r in range(8):
            A(f"v_mov_b32 v{DQ+r}, 0")
        A(f"v_cndmask_b32 v{M2}, 0, v9, vcc")
        A("v_cmp_ne_u32 vcc, 0, v10")
        nop(2)
        A(f"v_cndmask_b32 v{M2+1}, 0, v9, vcc")
    masks2()
    A("s_waitcnt vmcnt(%d)" % (0 if nowq else 20))
    stamp(1)
    for r in range(20):
        A(f"v_lshlrev_b32 v{XU+2*r}, 16, v{XS+r}")
        A(f"v_and_b32 v{XU+2*r+1}, 0xffff0000, v{XS+r}")
    A(f"v_readfirstlane_b32 s72, v{VE}")
    for a in range(4):
        A(f"v_pk_add_f32 v[{G+2*a}:{G+2*a+1}], v[{XU+2*a}:{XU+2*a+1}], v[{XU+8+2*a}:{XU+8+2*a+1}]")
    for r in range(8, 20):
        a = r & 3
        A(f"v_pk_add_f32 v[{G+2*a}:{G+2*a+1}], v[{G+2*a}:{G+2*a+1}], v[{XU+2*r}:{XU+2*r+1}]")
    A(f"v_pk_add_f32 v[{G}:{G+1}], v[{G}:{G+1}], v[{G+2}:{G+3}]")
    A(f"v_pk_add_f32 v[{G+4}:{G+5}], v[{G+4}:{G+5}], v[{G+6}:{G+7}]")
    A(f"s_mul_i32 s72, s72, {TAG_A}")
    A(f"v_pk_add_f32 v[{G}:{G+1}], v[{G}:{G+1}], v[{G+4}:{G+5}]")
    A(f"s_add_u32 s72, s72, {TAG_C}")
    A(f"v_add_f32 v{T}, v{G}, v{G+1}")

    def breduce(reg, tmp):
        nop(2)
        A(f"v_add_f32_dpp v{reg}, v{reg}, v{reg} quad_perm:[1,0,3,2] row_mask:0xf bank_mask:0xf")
        nop(2)
        A(f"v_add_f32_dpp v{reg}, v{reg}, v{reg} quad_perm:[2,3,0,1] row_mask:0xf bank_mask:0xf")
        A(f"v_mov_b32 v{tmp}, v{reg}")
        nop(2)
        A(f"v_permlane16_swap_b32 v{reg}, v{tmp}")
        nop(1)
        A(f"v_add_f32 v{reg}, v{reg}, v{tmp}")
        A(f"v_mov_b32 v{tmp}, v{reg}")
        nop(2)
        A(f"v_permlane32_swap_b32 v{reg}, v{tmp}")
        nop(1)
        A(f"v_add_f32 v{reg}, v{reg}, v{tmp}")

    breduce(T, T + 1)
    A(f"v_mul_f32 v{T}, 0x3acccccd, v{T}")
    A(f"v_mov_b32 v{T+1}, v{T}")
    for r in range(20):
        A(f"v_pk_add_f32 v[{XU+2*r}:{XU+2*r+1}], v[{XU+2*r}:{XU+2*r+1}], v[{T}:{T+1}] neg_lo:[0,1] neg_hi:[0,1]")
    for a in range(4):
        A(f"v_pk_mul_f32 v[{G+2*a}:{G+2*a+1}], v[{XU+2*a}:{XU+2*a+1}], v[{XU+2*a}:{XU+2*a+1}]")
    for r in range(4, 20):
        a = r & 3
        A(f"v_pk_fma_f32 v[{G+2*a}:{G+2*a+1}], v[{XU+2*r}:{XU+2*r+1}], v[{XU+2*r}:{XU+2*r+1}], v[{G+2*a}:{G+2*a+1}]")
    A(f"v_pk_add_f32 v[{G}:{G+1}], v[{G}:{G+1}], v[{G+2}:{G+3}]")
    A(f"v_pk_add_f32 v[{G+4}:{G+5}], v[{G+4}:{G+5}], v[{G+6}:{G+7}]")
    A(f"v_pk_add_f32 v[{G}:{G+1}], v[{G}:{G+1}], v[{G+4}:{G+5}]")
    A(f"v_add_f32 v{T+1}, v{G}, v{G+1}")
    breduce(T + 1, T + 2)
    A(f"v_mul_f32 v{T+1}, 0x3acccccd, v{T+1}")
    A(f"v_cvt_pk_bf16_f32 v{T}, v{T}, v{T}")
    A(f"v_cvt_pk_bf16_f32 v{T+1}, v{T+1}, v{T+1}")
    A(f"v_lshlrev_b32 v{T}, 16, v{T}")
    A(f"v_lshlrev_b32 v{T+1}, 16, v{T+1}")
    A(f"v_add_f32 v{T+1}, 0x3727c5ac, v{T+1}")
    A(f"v_cvt_pk_bf16_f32 v{T+1}, v{T+1}, v{T+1}")
    A(f"v_lshlrev_b32 v{T+1}, 16, v{T+1}")
    A(f"v_sqrt_f32 v{T+1}, v{T+1}")
    for q in range(5):
        A(f"v_lshlrev_b32 v{PC+q}, 16, v{PC+q}")
    A(f"v_cvt_pk_bf16_f32 v{T+1}, v{T+1}, v{T+1}")
    A(f"v_lshlrev_b32 v{T+1}, 16, v{T+1}")
    A(f"v_rcp_f32 v{T+2}, v{T+1}")

    def normalize(regs):
        for r in regs:
            A(f"v_sub_f32 v{r}, v{r}, v{T}")
        for r in regs:
            A(f"v_cvt_pk_bf16_f32 v{r}, v{r}, v{r}")
        for r in regs:
            A(f"v_lshlrev_b32 v{r}, 16, v{r}")
        for k, r in enumerate(regs):
            A(f"v_mul_f32 v{T+4+k}, v{r}, v{T+2}")
        for k, r in enumerate(regs):
            A(f"v_fma_f32 v{r}, -v{T+4+k}, v{T+1}, v{r}")
        for k, r in enumerate(regs):
            A(f"v_fma_f32 v{r}, v{r}, v{T+2}, v{T+4+k}")
        for r in regs:
            A(f"v_cvt_pk_bf16_f32 v{r}, v{r}, v{r}")
    normalize([PC + q for q in range(5)])
    A(f"v_mov_b32 v{T+3}, s72")
    A("v_lshrrev_b32 v8, 2, v2")
    A("v_lshlrev_b32 v8, 4, v8")
    A(f"ds_write_b128 v8, v[{T}:{T+3}] offset:{L_TAG}")
    stamp(14)

    def mkA2(setidx, n):
        q, jj = n >> 2, n & 3
        for r in range(2):
            A(f"v_and_b32_dpp v{A2+2*setidx+r}, v{PC+q}, v{M2+r} quad_perm:[{jj},{jj},{jj},{jj}] row_mask:0xf bank_mask:0xf")

    def prod_mfma(NW):
        nop(2)
        mkA2(0, 0)
        for n in range(NW):
            if n + 1 < NW:
                mkA2((n + 1) & 1, n + 1)
            else:
                nop(2)
            if (n & 1) == 0:
                A(f"s_waitcnt vmcnt({NW - 2 - n})")
            b = BUF + 4 * n
            a = A2 + 2 * (n & 1)
            A(f"v_mfma_f32_16x16x16_bf16 v[{DQ}:{DQ+3}], v[{a}:{a+1}], v[{b}:{b+1}], v[{DQ}:{DQ+3}]")
            A(f"v_mfma_f32_16x16x16_bf16 v[{DQ+4}:{DQ+7}], v[{a}:{a+1}], v[{b+2}:{b+3}], v[{DQ+4}:{DQ+7}]")

    def publish(pol="sc1", nst=4):
        A("v_lshlrev_b32 v11, 4, v0")
        for r in range(8):
            A(f"v_mov_b32 v{G+2*r+1}, s72")
        for r in range(8):
            A(f"v_mov_b32 v{G+2*r}, v{DQ+r}")
        for st_ in range(nst):
            A(f"buffer_store_dwordx4 v[{G+4*st_}:{G+4*st_+3}], v11, s[64:67], s81 offen offset:{st_*1024} {pol}")

    prod_mfma(20)
    stamp(15)
    publish(qppol)
    A("v_lshlrev_b32 v10, 10, v3")
    A("v_lshl_add_u32 v10, v2, 4, v10")
    A("s_lshl_b32 s82, s29, 15")
    A("s_lshl_b32 s36, s28, 8")
    A("s_add_u32 s82, s82, s36")
    A(f"s_add_u32 s82, s82, {WS_QP}")
    A(f"s_mov_b32 s36, {SPIN}")
    if ACK:
        A("s_waitcnt vmcnt(0)")
    stamp(10)
    A("L_pollq:")
    A("s_mov_b32 s35, s82")
    for n in range(8):
        r = BUF + 4 * n
        A(f"buffer_load_dwordx4 v[{r}:{r+3}], v10, s[64:67], s35 offen {qgpol}")
        if n != 7:
            A("s_add_u32 s35, s35, 4096")
    A("s_waitcnt vmcnt(0)")
    A(f"v_min3_u32 v{T}, v{BUF+1}, v{BUF+3}, v{BUF+5}")
    A(f"v_max3_u32 v{T+1}, v{BUF+1}, v{BUF+3}, v{BUF+5}")
    for q in range(7, 31, 4):
        A(f"v_min3_u32 v{T}, v{T}, v{BUF+q}, v{BUF+q+2}")
        A(f"v_max3_u32 v{T+1}, v{T+1}, v{BUF+q}, v{BUF+q+2}")
    A(f"v_min_u32 v{T}, v{T}, v{BUF+31}")
    A(f"v_max_u32 v{T+1}, v{T+1}, v{BUF+31}")
    A(f"v_cmp_ne_u32 vcc, s72, v{T}")
    A(f"v_cmp_ne_u32_e64 s[74:75], s72, v{T+1}")
    nop(2)
    A("s_or_b64 s[74:75], vcc, s[74:75]")
    A("s_cbranch_scc0 L_pollq_done")
    A("s_sub_u32 s36, s36, 1")
    A("s_cmp_lg_u32 s36, 0")
    A("s_cbranch_scc1 L_pollq")
    A("L_pollq_done:")
    for a in range(4):
        A(f"v_add_f32 v{T+2*a}, v{BUF+8*a}, v{BUF+8*a+4}")
        A(f"v_add_f32 v{T+2*a+1}, v{BUF+8*a+2}, v{BUF+8*a+6}")
    for a in range(2):
        A(f"v_add_f32 v{T+4*a}, v{T+4*a}, v{T+4*a+2}")
        A(f"v_add_f32 v{T+4*a+1}, v{T+4*a+1}, v{T+4*a+3}")
    A(f"v_add_f32 v{T}, v{T}, v{T+4}")
    A(f"v_add_f32 v{T+1}, v{T+1}, v{T+5}")
    A("v_lshlrev_b32 v9, 2, v3")
    A(f"v_cvt_pk_bf16_f32 v{T}, v{T}, v{T+1}")
    A("v_lshl_add_u32 v9, v2, 4, v9")
    A(f"ds_write_b32 v9, v{T} offset:{L_Q}")
    A("s_waitcnt lgkmcnt(0)")
    stamp(13)
    A("s_branch L_b1")
    A("L_idle:")
    if B0:
        A("s_barrier")
    A("L_b1:")
    A("s_barrier")
    stamp(2)
    A("v_lshrrev_b32 v8, 2, v2")
    A("v_lshlrev_b32 v9, 4, v8")
    A(f"ds_read_b128 v[{T}:{T+3}], v9 offset:{L_TAG}")
    A("s_waitcnt lgkmcnt(0)")
    A(f"v_readfirstlane_b32 s72, v{T+3}")
    A("s_cmp_lg_u32 s34, 2")
    A("s_cbranch_scc1 L_common")
    A("s_cmp_ge_u32 s2, 224")
    A("s_cbranch_scc1 L_common")
    if noffn:
        A("s_branch L_common")
    A("s_cmp_ge_u32 s2, 112")
    A("s_cselect_b32 s36, 112, 0")
    A("s_sub_u32 s36, s2, s36")
    A("s_mul_i32 s78, s36, 4682")
    A("s_lshr_b32 s78, s78, 16")
    A("s_mul_i32 s79, s78, 14")
    A("s_sub_u32 s79, s36, s79")
    A("v_mul_u32_u24 v8, 1280, v8")
    A("v_and_b32 v10, 3, v2")
    A("v_lshl_add_u32 v11, v10, 2, v3")
    A("v_lshl_add_u32 v9, v11, 1, v8")
    A("s_mul_i32 s36, s78, 160")
    for q in range(5):
        A(f"buffer_load_ushort v{PC+q}, v9, s[40:43], s36 offen offset:{q*32}")
    A("s_cmp_ge_u32 s2, 112")
    A("s_cbranch_scc1 L_ldU")
    srd(44, 16, 640 * 3456)
    A("s_branch L_ldF2")
    A("L_ldU:")
    srd(44, 18, 640 * 3456)
    A("L_ldF2:")
    A("v_mul_u32_u24 v1, 3456, v3")
    A("v_lshl_add_u32 v1, v2, 4, v1")
    A(f"s_mul_i32 s83, s78, {80*3456}")
    A("s_lshl_b32 s36, s79, 8")
    A("s_add_u32 s83, s83, s36")
    for n in range(20):
        r = BUF + 4 * n
        if FP and n >= FP:
            A(f"s_waitcnt vmcnt({FP-1})")
        if not nofl:
            A(f"buffer_load_dwordx4 v[{r}:{r+3}], v1, s[44:47], s83 offen {apol}")
        if n != 19:
            A(f"s_add_u32 s83, s83, {4*3456}")
    masks2()
    A("s_waitcnt vmcnt(%d)" % (0 if (nofl or FP) else 20))
    for q in range(5):
        A(f"v_lshlrev_b32 v{PC+q}, 16, v{PC+q}")
    normalize([PC + q for q in range(5)])
    prod_mfma(20)
    stamp(15)
    A("L_common:")
    srd(56, 20, 1728 * 1280)
    srd(60, 12, 4096 * 1280)
    srd(68, 22, 4 * 1280)
    A(f"v_mul_u32_u24 v{VW}, 1280, v3")
    A(f"v_lshl_add_u32 v{VW}, v2, 4, v{VW}")
    for r in range(20):
        A(f"v_mov_b32 v{Y+r}, 0")
    A("s_mul_i32 s35, s28, 1280")
    A("s_lshl_b32 s36, s31, 5")
    A("s_add_u32 s35, s35, s36")
    A("v_lshlrev_b32 v10, 2, v0")
    A(f"buffer_load_dword v{VXR}, v10, s[40:43], s35 offen")

    def mkA(setidx, preg, j):
        for r in range(4):
            A(f"v_and_b32_dpp v{AR+4*setidx+r}, v{preg}, v{4+r} row_newbcast:{j} row_mask:0xf bank_mask:0xf")

    def wd_loads():
        A(f"s_mul_i32 s35, s31, {27*1280}")
        for kap in range(7):
            for t in range(5):
                r = BUF + 4 * (kap * 5 + t)
                if WOP and kap * 5 + t >= WOP:
                    A(f"s_waitcnt vmcnt({WOP-1})")
                if not nowd:
                    A(f"buffer_load_dwordx4 v[{r}:{r+3}], v{VW}, s[56:59], s35 offen offset:{t*256} {dpol}")
            if kap != 6:
                A(f"s_add_u32 s35, s35, {4*1280}")

    def wo_loads():
        A("s_lshl_b32 s35, s29, 7")
        A("s_lshl_b32 s36, s34, 5")
        A("s_add_u32 s35, s35, s36")
        A("s_mul_i32 s35, s35, 1280")
        for kap in range(8):
            for t in range(5):
                r = BUF + 4 * (kap * 5 + t)
                if not nowo:
                    if WOP and kap * 5 + t >= WOP:
                        A(f"s_waitcnt vmcnt({WOP-1})")
                    A(f"buffer_load_dwordx4 v[{r}:{r+3}], v{VW}, s[60:63], s35 offen offset:{t*256} {wpol}")
            if kap != 7:
                A(f"s_add_u32 s35, s35, {4*1280}")

    EW = 240
    PS = 236

    def wg_stats(ew):
        A("v_mov_b32 v8, 0")
        A(f"ds_read_b128 v[{T}:{T+3}], v8 offset:{L_ST}")
        A(f"ds_read_b128 v[{T+4}:{T+7}], v8 offset:{L_ST+16}")
        A(f"s_mov_b32 s73, {hex(LOG2E)}")
        A("s_waitcnt lgkmcnt(0)")
        A(f"v_max3_f32 v{T+8}, v{T}, v{T+2}, v{T+4}")
        A(f"v_max_f32 v{T+8}, v{T+8}, v{T+6}")
        for w in range(4):
            A(f"v_sub_f32 v{ew+w}, v{T+2*w}, v{T+8}")
        for w in range(4):
            A(f"v_mul_f32 v{ew+w}, s73, v{ew+w}")
        for w in range(4):
            A(f"v_exp_f32 v{ew+w}, v{ew+w}")
        nop(1)
        A(f"v_mul_f32 v{T+10}, v{ew}, v{T+1}")
        for w in range(1, 4):
            A(f"v_fma_f32 v{T+10}, v{ew+w}, v{T+2*w+1}, v{T+10}")

    A("s_cmp_eq_u32 s34, 1")
    A("s_cbranch_scc1 L_k1")
    if WOAT == 0:
        wo_loads()
    A("s_branch L_kdone")
    A("L_k1:")
    if WDAT == 0 and not noffn:
        wd_loads()
    A("L_kdone:")
    stamp(3)
    A("s_barrier")
    A("s_cmp_eq_u32 s34, 1")
    A("s_cbranch_scc1 L_v1")
    A("s_cmp_eq_u32 s34, 0")
    A("s_cbranch_scc0 L_nostat")
    wg_stats(G)
    A(f"v_mov_b32 v{T+9}, s72")
    A(f"v_mov_b32 v{T+11}, s72")
    A("s_lshl_b32 s35, s30, 7")
    A(f"s_add_u32 s35, s35, {WS_ST}")
    A("s_mov_b64 exec, 1")
    A(f"buffer_store_dwordx4 v[{T+8}:{T+11}], off, s[64:67], s35 {ppol}")
    A("s_mov_b64 exec, -1")
    A("L_nostat:")
    A("s_cmp_lg_u32 s34, 2")
    A("s_cbranch_scc1 L_nofpub")
    A("s_cmp_ge_u32 s2, 224")
    A("s_cbranch_scc1 L_nofpub")
    if not (noffn or nopub):
        A("s_cmp_ge_u32 s2, 112")
        A("s_cselect_b32 s36, 112, 0")
        A("s_sub_u32 s37, s2, s36")
        A("s_mul_i32 s78, s37, 4682")
        A("s_lshr_b32 s78, s78, 16")
        A("s_mul_i32 s79, s78, 14")
        A("s_sub_u32 s79, s37, s79")
        A("s_lshl_b32 s81, s79, 3")
        A("s_add_u32 s81, s81, s78")
        A("s_add_u32 s81, s81, s36")
        A("s_lshl_b32 s81, s81, 12")
        A(f"s_add_u32 s81, s81, {WS_GP}")
        publish(ppol, npub)
    A("L_nofpub:")
    if WOAT == 1:
        wo_loads()
    A("s_branch L_vdone")

    A("L_v1:")
    if WDAT == 1 and not noffn:
        wd_loads()
    wg_stats(EW)
    A("v_and_b32 v8, 7, v2")
    A("v_lshl_add_u32 v8, v8, 2, v3")
    A("v_min_u32 v8, 26, v8")
    A("s_mul_i32 s35, s31, 27")
    A("v_add_u32 v8, s35, v8")
    A("v_lshrrev_b32 v9, 7, v8")
    A("v_lshlrev_b32 v9, 15, v9")
    A("v_lshrrev_b32 v10, 3, v2")
    A(f"v_mul_u32_u24 v10, {112*4096}, v10")
    A("v_add_u32 v9, v9, v10")
    A("v_bfe_u32 v10, v8, 1, 2")
    A("v_lshl_add_u32 v9, v10, 10, v9")
    A("v_bfe_u32 v10, v8, 3, 4")
    A("v_lshl_add_u32 v9, v10, 4, v9")
    A("v_and_b32 v10, 1, v8")
    A("v_lshl_add_u32 v9, v10, 3, v9")
    A("s_lshl_b32 s82, s28, 8")
    A(f"s_add_u32 s82, s82, {WS_GP}")
    A("s_lshl_b32 s83, s30, 7")
    A(f"s_add_u32 s83, s83, {WS_ST}")
    A("s_xor_b32 s83, s83, 128")
    A(f"s_mov_b32 s36, {SPIN}")
    A("L_pollg:")
    A("s_mov_b32 s35, s82")
    A(f"buffer_load_dwordx4 v[{PS}:{PS+3}], off, s[64:67], s83 {gpol}")
    nf = 0 if (noffn or nog) else 8
    for n in range(nf):
        r = G + 2 * n
        A(f"buffer_load_dwordx2 v[{r}:{r+1}], v9, s[64:67], s35 offen {gpol}")
        if n != 7:
            A("s_add_u32 s35, s35, 4096")
    A("s_waitcnt vmcnt(0)")
    if nf and not nopub and npub == 4:
        A(f"v_min3_u32 v8, v{PS+1}, v{PS+3}, v{G+1}")
        A(f"v_max3_u32 v10, v{PS+1}, v{PS+3}, v{G+1}")
        for q in range(3, 15, 4):
            A(f"v_min3_u32 v8, v8, v{G+q}, v{G+q+2}")
            A(f"v_max3_u32 v10, v10, v{G+q}, v{G+q+2}")
        A(f"v_min_u32 v8, v8, v{G+15}")
        A(f"v_max_u32 v10, v10, v{G+15}")
    else:
        A(f"v_min_u32 v8, v{PS+1}, v{PS+3}")
        A(f"v_max_u32 v10, v{PS+1}, v{PS+3}")
    A("v_cmp_ne_u32 vcc, s72, v8")
    A("v_cmp_ne_u32_e64 s[74:75], s72, v10")
    nop(2)
    A("s_or_b64 s[74:75], vcc, s[74:75]")
    A("s_cbranch_scc0 L_pollg_done")
    A("s_sub_u32 s36, s36, 1")
    A("s_cmp_lg_u32 s36, 0")
    A("s_cbranch_scc1 L_pollg")
    A("L_pollg_done:")
    stamp(9)
    A(f"v_max_f32 v{T}, v{T+8}, v{PS}")
    A(f"v_sub_f32 v{T+1}, v{T+8}, v{T}")
    A(f"v_sub_f32 v{T+2}, v{PS}, v{T}")
    A(f"v_mul_f32 v{T+1}, s73, v{T+1}")
    A(f"v_mul_f32 v{T+2}, s73, v{T+2}")
    A(f"v_exp_f32 v{T+1}, v{T+1}")
    A(f"v_exp_f32 v{T+2}, v{T+2}")
    nop(1)
    A(f"v_mul_f32 v{T+3}, v{T+1}, v{T+10}")
    A(f"v_fma_f32 v{T+3}, v{T+2}, v{PS+2}, v{T+3}")
    A(f"v_rcp_f32 v{T+2}, v{T+3}")
    nop(1)
    A(f"v_fma_f32 v{T}, -v{T+3}, v{T+2}, 1.0")
    A(f"v_fma_f32 v{T+2}, v{T}, v{T+2}, v{T+2}")
    A(f"v_mul_f32 v{T+1}, v{T+1}, v{T+2}")
    for w in range(4):
        A(f"v_mul_f32 v{EW+w}, v{EW+w}, v{T+1}")
    A(f"v_mov_b32 v8, {L_F}")
    A(f"ds_write_b128 v8, v[{EW}:{EW+3}]")
    if not noffn:
        for a in range(4):
            A(f"v_add_f32 v{G+4*a}, v{G+4*a}, v{G+4*a+2}")
        for a in range(2):
            A(f"v_add_f32 v{G+8*a}, v{G+8*a}, v{G+8*a+4}")
        A(f"v_add_f32 v{G}, v{G}, v{G+8}")
        A(f"v_cvt_pk_bf16_f32 v{G}, v{G}, v{G}")
        A(f"v_lshlrev_b32 v{G}, 16, v{G}")
        A("v_cmp_ne_u32 vcc, 54, v0")
        nop(1)
        A(f"v_mov_b32_dpp v{G+1}, v{G} row_ror:8 row_mask:0xf bank_mask:0xf")
        A(f"v_max_f32 v{G}, 0, v{G}")
        A(f"v_mul_f32 v{G}, v{G}, v{G+1}")
        A(f"v_cvt_pk_bf16_f32 v{G}, v{G}, v{G}")
        A(f"v_cndmask_b32 v{G}, 0, v{G}, vcc")
        nop(2)
        mkA(0, G, 0)
        for kap in range(7):
            if kap + 1 < 7:
                mkA((kap + 1) & 1, G, kap + 1)
            else:
                nop(2)
            a = AR + 4 * (kap & 1)
            for t in range(5):
                b = BUF + 4 * (kap * 5 + t)
                A(f"v_mfma_f32_16x16x32_bf16 v[{Y+4*t}:{Y+4*t+3}], v[{a}:{a+3}], v[{b}:{b+3}], v[{Y+4*t}:{Y+4*t+3}]")
    stamp(11)
    A("s_waitcnt lgkmcnt(0)")
    wo_loads()
    A("L_vdone:")
    A("v_and_b32 v9, 7, v2")
    A("v_lshl_add_u32 v9, v9, 2, v3")
    A("s_lshl_b32 s35, s34, 5")
    A("v_add_u32 v9, s35, v9")
    A("v_lshlrev_b32 v9, 2, v9")
    A("v_lshlrev_b32 v8, 5, v2")
    A("v_lshl_add_u32 v8, v3, 4, v8")
    A("s_mul_i32 s35, s34, 2560")
    A("v_add_u32 v8, s35, v8")
    A("s_lshl_b32 s35, s34, 6")
    A("v_add_u32 v10, s35, v0")
    A("s_lshl_b32 s35, s34, 4")
    A("s_add_u32 s35, s35, 256")
    A("v_add_u32 v11, s35, v2")
    A(f"v_lshlrev_b32 v{T+12}, 3, v10")
    A(f"v_lshlrev_b32 v{T+13}, 3, v11")
    for (src, dst) in ((10, T + 14), (11, T + 15)):
        A(f"v_lshrrev_b32 v{dst}, 3, v{src}")
        A(f"v_lshlrev_b32 v{dst}, 13, v{dst}")
        A(f"v_and_b32 v{src}, 7, v{src}")
        A(f"v_lshl_add_u32 v{dst}, v{src}, 4, v{dst}")
    A("v_cmp_gt_u32 vcc, 16, v0")
    A(f"v_mov_b32 v10, 0x7ffffff0")
    nop(1)
    A(f"v_cndmask_b32 v{T+15}, v10, v{T+15}, vcc")
    A(f"s_mul_i32 s76, s28, {40*8192}")
    A(f"s_add_u32 s76, s76, {WS_Y}")
    A("s_lshl_b32 s77, s31, 7")
    A("s_add_u32 s77, s77, s76")
    A("s_waitcnt vmcnt(0)")
    stamp(4)
    A("s_barrier")
    stamp(5)
    A(f"v_mov_b32 v10, {L_F}")
    A(f"ds_read_b128 v[{G}:{G+3}], v10")
    for w in range(4):
        A(f"ds_read_b32 v{T+w}, v9 offset:{L_OP+w*512}")
    A("s_waitcnt lgkmcnt(0)")
    A(f"v_mul_f32 v{T}, v{T}, v{G}")
    for w in range(1, 4):
        A(f"v_fma_f32 v{T}, v{T+w}, v{G+w}, v{T}")
    A(f"v_cvt_pk_bf16_f32 v{T}, v{T}, v{T}")
    nop(2)
    mkA(0, T, 0)
    for kap in range(8):
        if kap + 1 < 8:
            mkA((kap + 1) & 1, T, kap + 1)
        else:
            nop(2)
        a = AR + 4 * (kap & 1)
        for t in range(5):
            b = BUF + 4 * (kap * 5 + t)
            A(f"v_mfma_f32_16x16x32_bf16 v[{Y+4*t}:{Y+4*t+3}], v[{a}:{a+3}], v[{b}:{b+3}], v[{Y+4*t}:{Y+4*t+3}]")
    A("s_mov_b32 exec_hi, 0")
    nop(5)
    for t in range(5):
        A(f"ds_write_b128 v8, v[{Y+4*t}:{Y+4*t+3}] offset:{L_YP+t*512}")
    A("s_mov_b64 exec, -1")
    A("s_waitcnt lgkmcnt(0)")
    A("s_barrier")
    for vv in range(4):
        A(f"ds_read_b64 v[{G+2*vv}:{G+2*vv+1}], v{T+12} offset:{L_YP+vv*2560}")
        A(f"ds_read_b64 v[{G+8+2*vv}:{G+8+2*vv+1}], v{T+13} offset:{L_YP+vv*2560}")
    A(f"v_mov_b32 v{T+1}, s72")
    A(f"v_mov_b32 v{T+3}, s72")
    A(f"v_mov_b32 v{T+5}, s72")
    A(f"v_mov_b32 v{T+7}, s72")
    A("s_waitcnt lgkmcnt(0)")
    for (base, dst) in ((G, T), (G + 8, T + 4)):
        A(f"v_add_f32 v{base}, v{base}, v{base+2}")
        A(f"v_add_f32 v{base+1}, v{base+1}, v{base+3}")
        A(f"v_add_f32 v{base+4}, v{base+4}, v{base+6}")
        A(f"v_add_f32 v{base+5}, v{base+5}, v{base+7}")
        A(f"v_add_f32 v{dst}, v{base}, v{base+4}")
        A(f"v_add_f32 v{dst+2}, v{base+1}, v{base+5}")
    A(f"buffer_store_dwordx4 v[{T}:{T+3}], v{T+14}, s[64:67], s77 offen sc1")
    A(f"buffer_store_dwordx4 v[{T+4}:{T+7}], v{T+15}, s[64:67], s77 offen sc1")
    stamp(6)
    A("s_cmp_lg_u32 s34, 0")
    A("s_cbranch_scc1 L_flush")
    A("s_cmp_ge_u32 s31, 40")
    A("s_cbranch_scc1 L_flush")
    A("s_lshl_b32 s35, s31, 13")
    A("s_add_u32 s35, s35, s76")
    A("v_lshlrev_b32 v9, 4, v0")
    A("v_add_u32 v10, 0x1000, v9")
    A(f"s_mov_b32 s36, {SPIN}")
    A("L_poll2:")
    for n in range(8):
        r = BUF + 4 * n
        A(f"buffer_load_dwordx4 v[{r}:{r+3}], v{9 + (n >> 2)}, s[64:67], s35 offen offset:{(n&3)*1024} {ygpol}")
    A("s_waitcnt vmcnt(0)")
    A(f"v_min3_u32 v{T}, v{BUF+1}, v{BUF+3}, v{BUF+5}")
    A(f"v_max3_u32 v{T+1}, v{BUF+1}, v{BUF+3}, v{BUF+5}")
    for q in range(7, 31, 4):
        A(f"v_min3_u32 v{T}, v{T}, v{BUF+q}, v{BUF+q+2}")
        A(f"v_max3_u32 v{T+1}, v{T+1}, v{BUF+q}, v{BUF+q+2}")
    A(f"v_min_u32 v{T}, v{T}, v{BUF+31}")
    A(f"v_max_u32 v{T+1}, v{T+1}, v{BUF+31}")
    A(f"v_cmp_ne_u32 vcc, s72, v{T}")
    A(f"v_cmp_ne_u32_e64 s[74:75], s72, v{T+1}")
    nop(2)
    A("s_or_b64 s[74:75], vcc, s[74:75]")
    A("s_cbranch_scc0 L_poll2_done")
    A("s_sub_u32 s36, s36, 1")
    A("s_cmp_lg_u32 s36, 0")
    A("s_cbranch_scc1 L_poll2")
    A("L_poll2_done:")
    A(f"v_add_f32 v{T}, v{BUF}, v{BUF+4}")
    A(f"v_add_f32 v{T+1}, v{BUF+2}, v{BUF+6}")
    A(f"v_add_f32 v{T+2}, v{BUF+8}, v{BUF+12}")
    A(f"v_add_f32 v{T+3}, v{BUF+10}, v{BUF+14}")
    A(f"v_add_f32 v{T+4}, v{BUF+16}, v{BUF+20}")
    A(f"v_add_f32 v{T+5}, v{BUF+18}, v{BUF+22}")
    A(f"v_add_f32 v{T+6}, v{BUF+24}, v{BUF+28}")
    A(f"v_add_f32 v{T+7}, v{BUF+26}, v{BUF+30}")
    A(f"v_add_f32 v{T}, v{T}, v{T+2}")
    A(f"v_add_f32 v{T+1}, v{T+1}, v{T+3}")
    A(f"v_add_f32 v{T+4}, v{T+4}, v{T+6}")
    A(f"v_add_f32 v{T+5}, v{T+5}, v{T+7}")
    A(f"v_add_f32 v{T}, v{T}, v{T+4}")
    A(f"v_add_f32 v{T+1}, v{T+1}, v{T+5}")
    nop(2)
    A(f"v_permlane32_swap_b32 v{T}, v{T+1}")
    nop(1)
    A(f"v_add_f32 v{T}, v{T}, v{T+1}")
    A(f"v_mov_b32 v{T+1}, v{T}")
    nop(2)
    A(f"v_permlane16_swap_b32 v{T}, v{T+1}")
    nop(1)
    A(f"v_add_f32 v{T}, v{T}, v{T+1}")
    nop(2)
    A(f"v_add_f32_dpp v{T}, v{T}, v{T} row_ror:8 row_mask:0xf bank_mask:0xf")
    A(f"v_mov_b32 v{T+1}, v{T}")
    nop(2)
    A(f"v_permlane32_swap_b32 v{T}, v{T+1}")
    A(f"v_lshlrev_b32 v{T+2}, 16, v{VXR}")
    A(f"v_and_b32 v{T+3}, 0xffff0000, v{VXR}")
    A(f"v_add_f32 v{T}, v{T}, v{T+2}")
    A(f"v_add_f32 v{T+1}, v{T+1}, v{T+3}")
    A(f"v_cvt_pk_bf16_f32 v{T}, v{T}, v{T+1}")
    A("s_mul_i32 s35, s28, 1280")
    A("s_lshl_b32 s36, s31, 5")
    A("s_add_u32 s35, s35, s36")
    A("v_lshlrev_b32 v9, 2, v0")
    A("s_mov_b64 exec, 0xff")
    A(f"buffer_store_dword v{T}, v9, s[68:71], s35 offen")
    A("s_or_b32 s36, s31, s28")
    A("s_cmp_lg_u32 s36, 0")
    A("s_cbranch_scc1 L_fin")
    A("s_mov_b64 exec, 1")
    A(f"v_mov_b32 v{T+1}, s72")
    A(f"buffer_store_dword v{T+1}, off, s[64:67], 0 offset:{WS_E} sc1")
    A("L_fin:")
    stamp(7)
    A("L_flush:")
    stamp_flush()
    A("L_end:")
    A("s_endpgm")

    body = "\n".join(("    " + l) if not l.endswith(":") else l for l in L) + "\n"
    return (HEADER % (LDS_SIZE, NAME, NAME, NAME)) + body + (FOOTER % NAME)


if __name__ == "__main__":
    kw = {}
    out = f"cdna_kernels/{NAME}.s"
    for a in sys.argv[1:]:
        if a.startswith("out="):
            out = a[4:]
            continue
        k, v = a.split("=")
        try:
            v = int(v)
        except ValueError:
            pass
        kw[k] = v
    open(out, "w").write(gen(**kw))
    print("wrote", out)
```

```python
import sys

NAME = "parallel_sum__gqa_block_cached__glu_gated_reglu__decode"

HEADER = """; Fused LN -> {GQA decode attention, ReGLU FFN} -> residual sum.  Generated by gen_kernel.py (hand-designed schedule).
; @launch grid=(256,1,1) block=(512,1,1) lds=%d
.amdgcn_target "amdgcn-amd-amdhsa--gfx950"
.text
.globl %s_kernel
.p2align 8
.type %s_kernel,@function
%s_kernel:
"""

FOOTER = """.section .rodata,"a"
.p2align 6
.amdhsa_kernel %s_kernel
  .amdhsa_next_free_vgpr 256
  .amdhsa_next_free_sgpr 102
  .amdhsa_accum_offset 256
  .amdhsa_group_segment_fixed_size 0
  .amdhsa_kernarg_size 96
  .amdhsa_user_sgpr_count 2
  .amdhsa_user_sgpr_kernarg_segment_ptr 1
  .amdhsa_system_sgpr_workgroup_id_x 1
.end_amdhsa_kernel
"""

L_Q = 0
L_TAG = 256
L_F = 384
L_ST = 2048
L_OP = 2560
L_YP = 4608
LDS_SIZE = 4608 + 4 * 2560

WS_E = 0
WS_ST = 4096
WS_Y = 65536
WS_QP = 0x160000
WS_GP = 0x260000
WS_DBG = 0x480000
WS_SIZE = 0x500000

TAG_A = 1664525
TAG_C = 1013904223
LOG2E = 0x3FB8AA3B
SCALE = 0x3DB504F3
SPIN = 20000


def gen(rot=0, LAL=6, GS=2, PRE=32, PREV=16, prio=0, NPRE=0, stamps=False, kpol="nt", wpol="nt", apol="nt", dpol="nt", LAL2=0, NT1=6, WOAT=0, WOP=4, WDAT=1, FP=0, B0=1, ACK=1, noffn=0, nowo=0, nowq=0, nofl=0, ppol="sc1 nt", gpol="sc1 nt", qgpol="sc1 nt", qppol="sc1", ygpol="sc1", npub=4, nopub=0, nowd=0, nog=0):
    L = []
    A = L.append

    def nop(n):
        assert 1 <= n <= 16
        A(f"s_nop {n-1}")

    def stamp(idx):
        if not stamps:
            return
        A("s_memrealtime s[90:91]")
        A("s_waitcnt lgkmcnt(0)")
        A(f"v_writelane_b32 v62, s90, {idx}")

    def stamp_flush():
        if not stamps:
            return
        A("s_mov_b64 exec, 0xffff")
        A("v_lshlrev_b32 v61, 2, v63")
        A("buffer_store_dword v62, v61, s[84:87], s88 offen")

    A("s_cmp_ge_u32 s2, 256")
    A("s_cbranch_scc1 L_end")
    A("s_load_dwordx16 s[4:19], s[0:1], 0")
    A("s_load_dwordx8 s[20:27], s[0:1], 64")
    A("v_lshrrev_b32 v1, 6, v0")
    A("v_and_b32 v0, 63, v0")
    A("v_readfirstlane_b32 s3, v1")
    if rot:
        A(f"s_add_u32 s32, s2, {rot}")
        A("s_and_b32 s32, s32, 7")
    else:
        A("s_and_b32 s32, s2, 7")
    A("s_lshr_b32 s35, s2, 3")
    A("s_lshr_b32 s36, s35, 3")
    A("s_and_b32 s37, s35, 7")
    A("s_lshr_b32 s28, s37, 1")
    A("s_and_b32 s38, s37, 1")
    A("s_lshl_b32 s39, s36, 3")
    A("s_add_u32 s29, s32, s39")
    A("s_lshl_b32 s39, s28, 5")
    A("s_add_u32 s39, s39, s29")
    A("s_lshl_b32 s39, s39, 1")
    A("s_add_u32 s30, s39, s38")
    A("s_lshl_b32 s33, s36, 1")
    A("s_add_u32 s33, s33, s38")
    A("s_lshl_b32 s31, s33, 3")
    A("s_add_u32 s31, s31, s32")
    A("v_and_b32 v2, 15, v0")
    A("v_lshrrev_b32 v3, 4, v0")
    A("v_and_b32 v8, 1, v2")
    A("v_lshlrev_b32 v8, 4, v8")
    A("v_mov_b32 v9, 0xffff")
    A("v_lshlrev_b32 v9, v8, v9")
    A("v_lshrrev_b32 v10, 1, v2")
    for r in range(4):
        A(f"v_cmp_eq_u32 vcc, {r}, v10")
        nop(2)
        A(f"v_cndmask_b32 v{4+r}, 0, v9, vcc")
    A("s_waitcnt lgkmcnt(0)")
    if stamps:
        A("s_mov_b32 s84, s26")
        A("s_and_b32 s85, s27, 0xffff")
        A(f"s_mov_b32 s86, {WS_SIZE}")
        A("s_mov_b32 s87, 0x20000")
        A("s_lshl_b32 s88, s2, 3")
        A("s_add_u32 s88, s88, s3")
        A("s_lshl_b32 s88, s88, 6")
        A(f"s_add_u32 s88, s88, {WS_DBG}")
        A("v_mov_b32 v62, 0")
        A("v_mov_b32 v63, v0")
    stamp(0)
    A("s_cmp_ge_u32 s3, 4")
    A("s_cbranch_scc1 L_service")

    RING = 128
    Q = 12
    S = 16
    SC = 32
    AR = 64
    D = 80
    T = 84
    A("s_lshl_b32 s35, s30, 20")
    A("s_lshr_b32 s36, s30, 12")
    A("s_add_u32 s40, s6, s35")
    A("s_addc_u32 s41, s7, s36")
    A("s_and_b32 s41, s41, 0xffff")
    A("s_mov_b32 s42, 0x100000")
    A("s_mov_b32 s43, 0x20000")
    A("s_add_u32 s44, s8, s35")
    A("s_addc_u32 s45, s9, s36")
    A("s_and_b32 s45, s45, 0xffff")
    A("s_lshl_b32 s35, s3, 12")
    A("v_lshlrev_b32 v11, 4, v0")
    A("v_add_u32 v11, s35, v11")
    A("s_mov_b32 s46, 0")

    assert PREV % GS == 0 and LAL <= PREV <= 32 and LAL % GS == 0 and PRE % GS == 0 and LAL <= PRE <= 32 and LAL + GS <= 32 and 16 % GS == 0

    def issue_load(m):
        r = RING + (m % 32) * 4
        A(f"buffer_load_dwordx4 v[{r}:{r+3}], v11, s[40:43], s46 offen offset:{(m % 4)*1024} {kpol}")
        if m % 4 == 3:
            A("s_add_u32 s46, s46, 0x4000")

    for m in range(LAL):
        if B0 and m == NPRE:
            A("s_barrier")
        issue_load(m)
    if B0 and NPRE >= LAL:
        A("s_barrier")
    for m0 in range(LAL, PRE, GS):
        A(f"s_waitcnt vmcnt({LAL - GS})")
        for m in range(m0, m0 + GS):
            issue_load(m)
    A("s_mov_b32 s48, 0xaaaaaaaa")
    A("s_mov_b32 s49, 0xaaaaaaaa")
    A("s_mov_b32 s50, 0xcccccccc")
    A("s_mov_b32 s51, 0xcccccccc")
    A(f"s_mov_b32 s52, {hex(SCALE)}")
    A(f"s_mov_b32 s53, {hex(LOG2E)}")
    A("v_lshlrev_b32 v10, 5, v2")
    for r in range(4):
        A(f"v_mov_b32 v{D+r}, 0")
    stamp(1)
    A("s_barrier")
    stamp(2)
    A("v_lshlrev_b32 v9, 4, v2")
    A(f"ds_read_b128 v[{Q}:{Q+3}], v9 offset:{L_Q}")
    A("s_waitcnt lgkmcnt(0)")
    A("s_mov_b32 s47, 0")
    nop(2)

    A("s_mov_b64 vcc, -1")
    A("L_ktrip:")
    for half in range(2):
        for n in range(16 * half, 16 * half + 16, GS):
            if n == 32 - LAL:
                A("s_cmp_lg_u32 s47, 7")
                A("s_cbranch_scc1 L_knosw")
                A("s_mov_b32 s40, s44")
                A("s_mov_b32 s41, s45")
                A("s_mov_b32 s46, 0")
                A("L_knosw:")
            A(f"s_waitcnt vmcnt({LAL - GS})")
            skip = n + LAL < PRE
            if skip:
                A(f"s_cbranch_vccnz L_kskip{n}")
            for m in range(n + LAL, n + LAL + GS):
                issue_load(m)
            if skip:
                A(f"L_kskip{n}:")
            for r in range(4):
                for i in range(GS):
                    src = RING + (n + i) * 4 + r
                    d = S + (n + i) % 16
                    c = "0" if r == 0 else f"v{d}"
                    A(f"v_dot2_f32_bf16 v{d}, v{src}, v{Q+r}, {c}")
        nop(3)
        for j in range(8):
            A(f"v_add_f32_dpp v{S+j}, v{S+j}, v{S+j} row_ror:8 row_mask:0xf bank_mask:0x3")
        for j in range(8):
            A(f"v_add_f32_dpp v{S+j}, v{S+j+8}, v{S+j+8} row_ror:8 row_mask:0xf bank_mask:0xc")
        for j in range(4):
            A(f"v_add_f32_dpp v{S+j}, v{S+j}, v{S+j} row_half_mirror row_mask:0xf bank_mask:0x5")
        for j in range(4):
            A(f"v_add_f32_dpp v{S+j}, v{S+j+4}, v{S+j+4} row_half_mirror row_mask:0xf bank_mask:0xa")
        A(f"v_cndmask_b32_e64 v{T+0}, v{S+2}, v{S+0}, s[50:51]")
        A(f"v_cndmask_b32_e64 v{T+2}, v{S+0}, v{S+2}, s[50:51]")
        A(f"v_cndmask_b32_e64 v{T+1}, v{S+3}, v{S+1}, s[50:51]")
        A(f"v_cndmask_b32_e64 v{T+3}, v{S+1}, v{S+3}, s[50:51]")
        nop(1)
        A(f"v_add_f32_dpp v{T+2}, v{T+0}, v{T+2} quad_perm:[2,3,0,1] row_mask:0xf bank_mask:0xf")
        A(f"v_add_f32_dpp v{T+3}, v{T+1}, v{T+3} quad_perm:[2,3,0,1] row_mask:0xf bank_mask:0xf")
        A(f"v_cndmask_b32_e64 v{T+0}, v{T+3}, v{T+2}, s[48:49]")
        A(f"v_cndmask_b32_e64 v{T+1}, v{T+2}, v{T+3}, s[48:49]")
        nop(2)
        A(f"v_add_f32_dpp v{T+1}, v{T+0}, v{T+1} quad_perm:[1,0,3,2] row_mask:0xf bank_mask:0xf")
        A(f"v_cvt_pk_bf16_f32 v{T+1}, v{T+1}, v{T+1}")
        A(f"v_lshlrev_b32 v{T+1}, 16, v{T+1}")
        A(f"v_mul_f32 v{T+1}, s52, v{T+1}")
        A(f"v_cvt_pk_bf16_f32 v{T+1}, v{T+1}, v{T+1}")
        if half == 0:
            A(f"v_lshlrev_b32 v{T+4}, 16, v{T+1}")
        else:
            for kk in range(14):
                A(f"v_mov_b32 v{SC+kk}, v{SC+kk+2}")
            A(f"v_mov_b32 v{SC+14}, v{T+4}")
            A(f"v_lshlrev_b32 v{SC+15}, 16, v{T+1}")
    A("s_mov_b64 vcc, 0")
    A("s_add_u32 s47, s47, 1")
    A("s_cmp_lt_u32 s47, 8")
    A("s_cbranch_scc1 L_ktrip")
    stamp(3)
    for m in range(LAL, PREV):
        issue_load(m)

    def allreduce(op, reg, tmp):
        for sh in (8, 4, 2, 1):
            nop(2)
            A(f"{op}_dpp v{reg}, v{reg}, v{reg} row_ror:{sh} row_mask:0xf bank_mask:0xf")
        A(f"v_mov_b32 v{tmp}, v{reg}")
        nop(2)
        A(f"v_permlane16_swap_b32 v{reg}, v{tmp}")
        nop(1)
        A(f"{op} v{reg}, v{reg}, v{tmp}")
        A(f"v_mov_b32 v{tmp}, v{reg}")
        nop(2)
        A(f"v_permlane32_swap_b32 v{reg}, v{tmp}")
        nop(1)
        A(f"{op} v{reg}, v{reg}, v{tmp}")

    M = T
    A(f"v_max3_f32 v{M}, v{SC}, v{SC+1}, v{SC+2}")
    for kk in range(3, 15, 2):
        A(f"v_max3_f32 v{M}, v{M}, v{SC+kk}, v{SC+kk+1}")
    A(f"v_max_f32 v{M}, v{M}, v{SC+15}")
    allreduce("v_max_f32", M, T + 2)
    for kk in range(16):
        A(f"v_sub_f32 v{SC+kk}, v{SC+kk}, v{M}")
    for kk in range(16):
        A(f"v_mul_f32 v{SC+kk}, s53, v{SC+kk}")
    for kk in range(16):
        A(f"v_exp_f32 v{SC+kk}, v{SC+kk}")
    nop(1)
    LS = T + 1
    A(f"v_add_f32 v{LS}, v{SC}, v{SC+1}")
    for kk in range(2, 16):
        A(f"v_add_f32 v{LS}, v{LS}, v{SC+kk}")
    for kk in range(16):
        A(f"v_cvt_pk_bf16_f32 v{SC+kk}, v{SC+kk}, v{SC+kk}")
    allreduce("v_add_f32", LS, T + 2)
    A("s_lshl_b32 s35, s3, 3")
    A(f"v_mov_b32 v{T+3}, s35")
    A(f"ds_write_b64 v{T+3}, v[{M}:{M+1}] offset:{L_ST}")
    A("s_waitcnt lgkmcnt(0)")
    A("s_barrier")
    stamp(4)

    A("s_mov_b32 s47, 0")
    A("s_mov_b64 vcc, -1")
    def vloop(label, lal, end, first):
        A(f"{label}:")
        for n in range(0, 32, GS):
            for i in range(GS):
                pr = SC + ((n + i) >> 4)
                j = (n + i) & 15
                for r in range(4):
                    A(f"v_and_b32_dpp v{AR+4*i+r}, v{pr}, v{4+r} row_newbcast:{j} row_mask:0xf bank_mask:0xf")
            if n + GS == 32:
                for kk in range(14):
                    A(f"v_mov_b32 v{SC+kk}, v{SC+kk+2}")
            A(f"s_waitcnt vmcnt({lal - GS})")
            skip = first and n + lal < PREV
            if skip:
                A(f"s_cbranch_vccnz {label}_skip{n}")
            for m in range(n + lal, n + lal + GS):
                issue_load(m)
            if skip:
                A(f"{label}_skip{n}:")
                nop(1)
            for i in range(GS):
                src = RING + (n + i) * 4
                A(f"v_mfma_f32_16x16x32_bf16 v[{D}:{D+3}], v[{AR+4*i}:{AR+4*i+3}], v[{src}:{src+3}], v[{D}:{D+3}]")
        if first:
            A("s_mov_b64 vcc, 0")
        A("s_add_u32 s47, s47, 1")
        A(f"s_cmp_lt_u32 s47, {end}")
        A(f"s_cbranch_scc1 {label}")
    if LAL2:
        assert LAL2 % GS == 0 and LAL2 + GS <= 32 and LAL2 >= LAL
        vloop("L_vtrip", LAL, NT1, True)
        for m in range(LAL, LAL2):
            issue_load(m)
        vloop("L_vtripb", LAL2, 8, False)
    else:
        vloop("L_vtrip", LAL, 8, True)
    stamp(5)
    A("s_lshl_b32 s35, s3, 9")
    A("v_lshlrev_b32 v8, 4, v3")
    A("v_add3_u32 v8, v8, v10, s35")
    A("s_mov_b32 exec_hi, 0")
    nop(4)
    A(f"ds_write_b128 v8, v[{D}:{D+3}] offset:{L_OP}")
    A("s_waitcnt lgkmcnt(0)")
    A("s_barrier")
    stamp(6)
    stamp_flush()
    A("s_endpgm")

    A("L_service:")
    if prio:
        A(f"s_setprio {prio}")
    VW = 1
    M2 = 12
    PC = 14
    VE = 19
    DQ = 20
    A2 = 28
    Y = 32
    AR = 52
    VXR = 60
    G = 64
    T = 80
    BUF = 96
    XU = 176
    XS = 216
    A("s_sub_u32 s34, s3, 4")
    def srd(base, ptr, size):
        A(f"s_mov_b32 s{base}, s{ptr}")
        A(f"s_and_b32 s{base+1}, s{ptr+1}, 0xffff")
        A(f"s_mov_b32 s{base+2}, {size}")
        A(f"s_mov_b32 s{base+3}, 0x20000")
    srd(64, 26, WS_SIZE)
    srd(40, 4, 4 * 1280)
    A("s_cmp_eq_u32 s34, 0")
    A("s_cbranch_scc0 L_idle")
    A(f"buffer_load_dword v{VE}, off, s[64:67], 0 offset:{WS_E} sc1")
    A("v_lshrrev_b32 v8, 2, v2")
    A("v_mul_u32_u24 v8, 1280, v8")
    A("v_and_b32 v10, 3, v2")
    A("v_lshl_add_u32 v11, v10, 2, v3")
    A("v_lshl_add_u32 v9, v11, 1, v8")
    A("v_lshl_add_u32 v11, v3, 2, v10")
    A("v_lshl_add_u32 v8, v11, 4, v8")
    A("s_lshr_b32 s80, s2, 3")
    A("s_and_b32 s80, s80, 7")
    A("s_mul_i32 s36, s80, 160")
    for i in range(5):
        A(f"buffer_load_dwordx4 v[{XS+4*i}:{XS+4*i+3}], v8, s[40:43], 0 offen offset:{i*256}")
    for q in range(5):
        A(f"buffer_load_ushort v{PC+q}, v9, s[40:43], s36 offen offset:{q*32}")
    srd(44, 10, 640 * 8192)
    A("v_lshlrev_b32 v10, 13, v3")
    A("v_lshl_add_u32 v10, v2, 4, v10")
    A(f"s_mul_i32 s35, s80, {80*8192}")
    A("s_lshl_b32 s36, s29, 8")
    A("s_add_u32 s35, s35, s36")
    for n in range(20):
        r = BUF + 4 * n
        if not nowq:
            A(f"buffer_load_dwordx4 v[{r}:{r+3}], v10, s[44:47], s35 offen {apol}")
        if n != 19:
            A(f"s_add_u32 s35, s35, {4*8192}")
    if B0:
        A("s_barrier")
    stamp(12)
    A("s_lshl_b32 s81, s29, 15")
    A("s_lshl_b32 s36, s80, 12")
    A("s_add_u32 s81, s81, s36")
    A(f"s_add_u32 s81, s81, {WS_QP}")
    def masks2():
        A("v_and_b32 v8, 1, v2")
        A("v_lshlrev_b32 v8, 4, v8")
        A("v_mov_b32 v9, 0xffff")
        A("v_lshlrev_b32 v9, v8, v9")
        A("v_and_b32 v10, 2, v2")
        A("v_cmp_eq_u32 vcc, 0, v10")
        for r in range(8):
            A(f"v_mov_b32 v{DQ+r}, 0")
        A(f"v_cndmask_b32 v{M2}, 0, v9, vcc")
        A("v_cmp_ne_u32 vcc, 0, v10")
        nop(2)
        A(f"v_cndmask_b32 v{M2+1}, 0, v9, vcc")
    masks2()
    A("s_waitcnt vmcnt(%d)" % (0 if nowq else 20))
    stamp(1)
    for r in range(20):
        A(f"v_lshlrev_b32 v{XU+2*r}, 16, v{XS+r}")
        A(f"v_and_b32 v{XU+2*r+1}, 0xffff0000, v{XS+r}")
    A(f"v_readfirstlane_b32 s72, v{VE}")
    for a in range(4):
        A(f"v_pk_add_f32 v[{G+2*a}:{G+2*a+1}], v[{XU+2*a}:{XU+2*a+1}], v[{XU+8+2*a}:{XU+8+2*a+1}]")
    for r in range(8, 20):
        a = r & 3
        A(f"v_pk_add_f32 v[{G+2*a}:{G+2*a+1}], v[{G+2*a}:{G+2*a+1}], v[{XU+2*r}:{XU+2*r+1}]")
    A(f"v_pk_add_f32 v[{G}:{G+1}], v[{G}:{G+1}], v[{G+2}:{G+3}]")
    A(f"v_pk_add_f32 v[{G+4}:{G+5}], v[{G+4}:{G+5}], v[{G+6}:{G+7}]")
    A(f"s_mul_i32 s72, s72, {TAG_A}")
    A(f"v_pk_add_f32 v[{G}:{G+1}], v[{G}:{G+1}], v[{G+4}:{G+5}]")
    A(f"s_add_u32 s72, s72, {TAG_C}")
    A(f"v_add_f32 v{T}, v{G}, v{G+1}")

    def breduce(reg, tmp):
        nop(2)
        A(f"v_add_f32_dpp v{reg}, v{reg}, v{reg} quad_perm:[1,0,3,2] row_mask:0xf bank_mask:0xf")
        nop(2)
        A(f"v_add_f32_dpp v{reg}, v{reg}, v{reg} quad_perm:[2,3,0,1] row_mask:0xf bank_mask:0xf")
        A(f"v_mov_b32 v{tmp}, v{reg}")
        nop(2)
        A(f"v_permlane16_swap_b32 v{reg}, v{tmp}")
        nop(1)
        A(f"v_add_f32 v{reg}, v{reg}, v{tmp}")
        A(f"v_mov_b32 v{tmp}, v{reg}")
        nop(2)
        A(f"v_permlane32_swap_b32 v{reg}, v{tmp}")
        nop(1)
        A(f"v_add_f32 v{reg}, v{reg}, v{tmp}")

    breduce(T, T + 1)
    A(f"v_mul_f32 v{T}, 0x3acccccd, v{T}")
    A(f"v_mov_b32 v{T+1}, v{T}")
    for r in range(20):
        A(f"v_pk_add_f32 v[{XU+2*r}:{XU+2*r+1}], v[{XU+2*r}:{XU+2*r+1}], v[{T}:{T+1}] neg_lo:[0,1] neg_hi:[0,1]")
    for a in range(4):
        A(f"v_pk_mul_f32 v[{G+2*a}:{G+2*a+1}], v[{XU+2*a}:{XU+2*a+1}], v[{XU+2*a}:{XU+2*a+1}]")
    for r in range(4, 20):
        a = r & 3
        A(f"v_pk_fma_f32 v[{G+2*a}:{G+2*a+1}], v[{XU+2*r}:{XU+2*r+1}], v[{XU+2*r}:{XU+2*r+1}], v[{G+2*a}:{G+2*a+1}]")
    A(f"v_pk_add_f32 v[{G}:{G+1}], v[{G}:{G+1}], v[{G+2}:{G+3}]")
    A(f"v_pk_add_f32 v[{G+4}:{G+5}], v[{G+4}:{G+5}], v[{G+6}:{G+7}]")
    A(f"v_pk_add_f32 v[{G}:{G+1}], v[{G}:{G+1}], v[{G+4}:{G+5}]")
    A(f"v_add_f32 v{T+1}, v{G}, v{G+1}")
    breduce(T + 1, T + 2)
    A(f"v_mul_f32 v{T+1}, 0x3acccccd, v{T+1}")
    A(f"v_cvt_pk_bf16_f32 v{T}, v{T}, v{T}")
    A(f"v_cvt_pk_bf16_f32 v{T+1}, v{T+1}, v{T+1}")
    A(f"v_lshlrev_b32 v{T}, 16, v{T}")
    A(f"v_lshlrev_b32 v{T+1}, 16, v{T+1}")
    A(f"v_add_f32 v{T+1}, 0x3727c5ac, v{T+1}")
    A(f"v_cvt_pk_bf16_f32 v{T+1}, v{T+1}, v{T+1}")
    A(f"v_lshlrev_b32 v{T+1}, 16, v{T+1}")
    A(f"v_sqrt_f32 v{T+1}, v{T+1}")
    for q in range(5):
        A(f"v_lshlrev_b32 v{PC+q}, 16, v{PC+q}")
    A(f"v_cvt_pk_bf16_f32 v{T+1}, v{T+1}, v{T+1}")
    A(f"v_lshlrev_b32 v{T+1}, 16, v{T+1}")
    A(f"v_rcp_f32 v{T+2}, v{T+1}")

    def normalize(regs):
        for r in regs:
            A(f"v_sub_f32 v{r}, v{r}, v{T}")
        for r in regs:
            A(f"v_cvt_pk_bf16_f32 v{r}, v{r}, v{r}")
        for r in regs:
            A(f"v_lshlrev_b32 v{r}, 16, v{r}")
        for k, r in enumerate(regs):
            A(f"v_mul_f32 v{T+4+k}, v{r}, v{T+2}")
        for k, r in enumerate(regs):
            A(f"v_fma_f32 v{r}, -v{T+4+k}, v{T+1}, v{r}")
        for k, r in enumerate(regs):
            A(f"v_fma_f32 v{r}, v{r}, v{T+2}, v{T+4+k}")
        for r in regs:
            A(f"v_cvt_pk_bf16_f32 v{r}, v{r}, v{r}")
    normalize([PC + q for q in range(5)])
    A(f"v_mov_b32 v{T+3}, s72")
    A("v_lshrrev_b32 v8, 2, v2")
    A("v_lshlrev_b32 v8, 4, v8")
    A(f"ds_write_b128 v8, v[{T}:{T+3}] offset:{L_TAG}")
    stamp(14)

    def mkA2(setidx, n):
        q, jj = n >> 2, n & 3
        for r in range(2):
            A(f"v_and_b32_dpp v{A2+2*setidx+r}, v{PC+q}, v{M2+r} quad_perm:[{jj},{jj},{jj},{jj}] row_mask:0xf bank_mask:0xf")

    def prod_mfma(NW):
        nop(2)
        mkA2(0, 0)
        for n in range(NW):
            if n + 1 < NW:
                mkA2((n + 1) & 1, n + 1)
            else:
                nop(2)
            if (n & 1) == 0:
                A(f"s_waitcnt vmcnt({NW - 2 - n})")
            b = BUF + 4 * n
            a = A2 + 2 * (n & 1)
            A(f"v_mfma_f32_16x16x16_bf16 v[{DQ}:{DQ+3}], v[{a}:{a+1}], v[{b}:{b+1}], v[{DQ}:{DQ+3}]")
            A(f"v_mfma_f32_16x16x16_bf16 v[{DQ+4}:{DQ+7}], v[{a}:{a+1}], v[{b+2}:{b+3}], v[{DQ+4}:{DQ+7}]")

    def publish(pol="sc1", nst=4):
        A("v_lshlrev_b32 v11, 4, v0")
        for r in range(8):
            A(f"v_mov_b32 v{G+2*r+1}, s72")
        for r in range(8):
            A(f"v_mov_b32 v{G+2*r}, v{DQ+r}")
        for st_ in range(nst):
            A(f"buffer_store_dwordx4 v[{G+4*st_}:{G+4*st_+3}], v11, s[64:67], s81 offen offset:{st_*1024} {pol}")

    prod_mfma(20)
    stamp(15)
    publish(qppol)
    A("v_lshlrev_b32 v10, 10, v3")
    A("v_lshl_add_u32 v10, v2, 4, v10")
    A("s_lshl_b32 s82, s29, 15")
    A("s_lshl_b32 s36, s28, 8")
    A("s_add_u32 s82, s82, s36")
    A(f"s_add_u32 s82, s82, {WS_QP}")
    A(f"s_mov_b32 s36, {SPIN}")
    if ACK:
        A("s_waitcnt vmcnt(0)")
    stamp(10)
    A("L_pollq:")
    A("s_mov_b32 s35, s82")
    for n in range(8):
        r = BUF + 4 * n
        A(f"buffer_load_dwordx4 v[{r}:{r+3}], v10, s[64:67], s35 offen {qgpol}")
        if n != 7:
            A("s_add_u32 s35, s35, 4096")
    A("s_waitcnt vmcnt(0)")
    A(f"v_min3_u32 v{T}, v{BUF+1}, v{BUF+3}, v{BUF+5}")
    A(f"v_max3_u32 v{T+1}, v{BUF+1}, v{BUF+3}, v{BUF+5}")
    for q in range(7, 31, 4):
        A(f"v_min3_u32 v{T}, v{T}, v{BUF+q}, v{BUF+q+2}")
        A(f"v_max3_u32 v{T+1}, v{T+1}, v{BUF+q}, v{BUF+q+2}")
    A(f"v_min_u32 v{T}, v{T}, v{BUF+31}")
    A(f"v_max_u32 v{T+1}, v{T+1}, v{BUF+31}")
    A(f"v_cmp_ne_u32 vcc, s72, v{T}")
    A(f"v_cmp_ne_u32_e64 s[74:75], s72, v{T+1}")
    nop(2)
    A("s_or_b64 s[74:75], vcc, s[74:75]")
    A("s_cbranch_scc0 L_pollq_done")
    A("s_sub_u32 s36, s36, 1")
    A("s_cmp_lg_u32 s36, 0")
    A("s_cbranch_scc1 L_pollq")
    A("L_pollq_done:")
    for a in range(4):
        A(f"v_add_f32 v{T+2*a}, v{BUF+8*a}, v{BUF+8*a+4}")
        A(f"v_add_f32 v{T+2*a+1}, v{BUF+8*a+2}, v{BUF+8*a+6}")
    for a in range(2):
        A(f"v_add_f32 v{T+4*a}, v{T+4*a}, v{T+4*a+2}")
        A(f"v_add_f32 v{T+4*a+1}, v{T+4*a+1}, v{T+4*a+3}")
    A(f"v_add_f32 v{T}, v{T}, v{T+4}")
    A(f"v_add_f32 v{T+1}, v{T+1}, v{T+5}")
    A("v_lshlrev_b32 v9, 2, v3")
    A(f"v_cvt_pk_bf16_f32 v{T}, v{T}, v{T+1}")
    A("v_lshl_add_u32 v9, v2, 4, v9")
    A(f"ds_write_b32 v9, v{T} offset:{L_Q}")
    A("s_waitcnt lgkmcnt(0)")
    stamp(13)
    A("s_branch L_b1")
    A("L_idle:")
    if B0:
        A("s_barrier")
    A("L_b1:")
    A("s_barrier")
    stamp(2)
    A("v_lshrrev_b32 v8, 2, v2")
    A("v_lshlrev_b32 v9, 4, v8")
    A(f"ds_read_b128 v[{T}:{T+3}], v9 offset:{L_TAG}")
    A("s_waitcnt lgkmcnt(0)")
    A(f"v_readfirstlane_b32 s72, v{T+3}")
    A("s_cmp_lg_u32 s34, 2")
    A("s_cbranch_scc1 L_common")
    A("s_cmp_ge_u32 s2, 224")
    A("s_cbranch_scc1 L_common")
    if noffn:
        A("s_branch L_common")
    A("s_cmp_ge_u32 s2, 112")
    A("s_cselect_b32 s36, 112, 0")
    A("s_sub_u32 s36, s2, s36")
    A("s_mul_i32 s78, s36, 4682")
    A("s_lshr_b32 s78, s78, 16")
    A("s_mul_i32 s79, s78, 14")
    A("s_sub_u32 s79, s36, s79")
    A("v_mul_u32_u24 v8, 1280, v8")
    A("v_and_b32 v10, 3, v2")
    A("v_lshl_add_u32 v11, v10, 2, v3")
    A("v_lshl_add_u32 v9, v11, 1, v8")
    A("s_mul_i32 s36, s78, 160")
    for q in range(5):
        A(f"buffer_load_ushort v{PC+q}, v9, s[40:43], s36 offen offset:{q*32}")
    A("s_cmp_ge_u32 s2, 112")
    A("s_cbranch_scc1 L_ldU")
    srd(44, 16, 640 * 3456)
    A("s_branch L_ldF2")
    A("L_ldU:")
    srd(44, 18, 640 * 3456)
    A("L_ldF2:")
    A("v_mul_u32_u24 v1, 3456, v3")
    A("v_lshl_add_u32 v1, v2, 4, v1")
    A(f"s_mul_i32 s83, s78, {80*3456}")
    A("s_lshl_b32 s36, s79, 8")
    A("s_add_u32 s83, s83, s36")
    for n in range(20):
        r = BUF + 4 * n
        if FP and n >= FP:
            A(f"s_waitcnt vmcnt({FP-1})")
        if not nofl:
            A(f"buffer_load_dwordx4 v[{r}:{r+3}], v1, s[44:47], s83 offen {apol}")
        if n != 19:
            A(f"s_add_u32 s83, s83, {4*3456}")
    masks2()
    A("s_waitcnt vmcnt(%d)" % (0 if (nofl or FP) else 20))
    for q in range(5):
        A(f"v_lshlrev_b32 v{PC+q}, 16, v{PC+q}")
    normalize([PC + q for q in range(5)])
    prod_mfma(20)
    stamp(15)
    A("L_common:")
    srd(56, 20, 1728 * 1280)
    srd(60, 12, 4096 * 1280)
    srd(68, 22, 4 * 1280)
    A(f"v_mul_u32_u24 v{VW}, 1280, v3")
    A(f"v_lshl_add_u32 v{VW}, v2, 4, v{VW}")
    for r in range(20):
        A(f"v_mov_b32 v{Y+r}, 0")
    A("s_mul_i32 s35, s28, 1280")
    A("s_lshl_b32 s36, s31, 5")
    A("s_add_u32 s35, s35, s36")
    A("v_lshlrev_b32 v10, 2, v0")
    A(f"buffer_load_dword v{VXR}, v10, s[40:43], s35 offen")

    def mkA(setidx, preg, j):
        for r in range(4):
            A(f"v_and_b32_dpp v{AR+4*setidx+r}, v{preg}, v{4+r} row_newbcast:{j} row_mask:0xf bank_mask:0xf")

    def wd_loads():
        A(f"s_mul_i32 s35, s31, {27*1280}")
        for kap in range(7):
            for t in range(5):
                r = BUF + 4 * (kap * 5 + t)
                if WOP and kap * 5 + t >= WOP:
                    A(f"s_waitcnt vmcnt({WOP-1})")
                if not nowd:
                    A(f"buffer_load_dwordx4 v[{r}:{r+3}], v{VW}, s[56:59], s35 offen offset:{t*256} {dpol}")
            if kap != 6:
                A(f"s_add_u32 s35, s35, {4*1280}")

    def wo_loads():
        A("s_lshl_b32 s35, s29, 7")
        A("s_lshl_b32 s36, s34, 5")
        A("s_add_u32 s35, s35, s36")
        A("s_mul_i32 s35, s35, 1280")
        for kap in range(8):
            for t in range(5):
                r = BUF + 4 * (kap * 5 + t)
                if not nowo:
                    if WOP and kap * 5 + t >= WOP:
                        A(f"s_waitcnt vmcnt({WOP-1})")
                    A(f"buffer_load_dwordx4 v[{r}:{r+3}], v{VW}, s[60:63], s35 offen offset:{t*256} {wpol}")
            if kap != 7:
                A(f"s_add_u32 s35, s35, {4*1280}")

    EW = 240
    PS = 236

    def wg_stats(ew):
        A("v_mov_b32 v8, 0")
        A(f"ds_read_b128 v[{T}:{T+3}], v8 offset:{L_ST}")
        A(f"ds_read_b128 v[{T+4}:{T+7}], v8 offset:{L_ST+16}")
        A(f"s_mov_b32 s73, {hex(LOG2E)}")
        A("s_waitcnt lgkmcnt(0)")
        A(f"v_max3_f32 v{T+8}, v{T}, v{T+2}, v{T+4}")
        A(f"v_max_f32 v{T+8}, v{T+8}, v{T+6}")
        for w in range(4):
            A(f"v_sub_f32 v{ew+w}, v{T+2*w}, v{T+8}")
        for w in range(4):
            A(f"v_mul_f32 v{ew+w}, s73, v{ew+w}")
        for w in range(4):
            A(f"v_exp_f32 v{ew+w}, v{ew+w}")
        nop(1)
        A(f"v_mul_f32 v{T+10}, v{ew}, v{T+1}")
        for w in range(1, 4):
            A(f"v_fma_f32 v{T+10}, v{ew+w}, v{T+2*w+1}, v{T+10}")

    A("s_cmp_eq_u32 s34, 1")
    A("s_cbranch_scc1 L_k1")
    if WOAT == 0:
        wo_loads()
    A("s_branch L_kdone")
    A("L_k1:")
    if WDAT == 0 and not noffn:
        wd_loads()
    A("L_kdone:")
    stamp(3)
    A("s_barrier")
    A("s_cmp_eq_u32 s34, 1")
    A("s_cbranch_scc1 L_v1")
    A("s_cmp_eq_u32 s34, 0")
    A("s_cbranch_scc0 L_nostat")
    wg_stats(G)
    A(f"v_mov_b32 v{T+9}, s72")
    A(f"v_mov_b32 v{T+11}, s72")
    A("s_lshl_b32 s35, s30, 7")
    A(f"s_add_u32 s35, s35, {WS_ST}")
    A("s_mov_b64 exec, 1")
    A(f"buffer_store_dwordx4 v[{T+8}:{T+11}], off, s[64:67], s35 {ppol}")
    A("s_mov_b64 exec, -1")
    A("L_nostat:")
    A("s_cmp_lg_u32 s34, 2")
    A("s_cbranch_scc1 L_nofpub")
    A("s_cmp_ge_u32 s2, 224")
    A("s_cbranch_scc1 L_nofpub")
    if not (noffn or nopub):
        A("s_cmp_ge_u32 s2, 112")
        A("s_cselect_b32 s36, 112, 0")
        A("s_sub_u32 s37, s2, s36")
        A("s_mul_i32 s78, s37, 4682")
        A("s_lshr_b32 s78, s78, 16")
        A("s_mul_i32 s79, s78, 14")
        A("s_sub_u32 s79, s37, s79")
        A("s_lshl_b32 s81, s79, 3")
        A("s_add_u32 s81, s81, s78")
        A("s_add_u32 s81, s81, s36")
        A("s_lshl_b32 s81, s81, 12")
        A(f"s_add_u32 s81, s81, {WS_GP}")
        publish(ppol, npub)
    A("L_nofpub:")
    if WOAT == 1:
        wo_loads()
    A("s_branch L_vdone")

    A("L_v1:")
    if WDAT == 1 and not noffn:
        wd_loads()
    wg_stats(EW)
    A("v_and_b32 v8, 7, v2")
    A("v_lshl_add_u32 v8, v8, 2, v3")
    A("v_min_u32 v8, 26, v8")
    A("s_mul_i32 s35, s31, 27")
    A("v_add_u32 v8, s35, v8")
    A("v_lshrrev_b32 v9, 7, v8")
    A("v_lshlrev_b32 v9, 15, v9")
    A("v_lshrrev_b32 v10, 3, v2")
    A(f"v_mul_u32_u24 v10, {112*4096}, v10")
    A("v_add_u32 v9, v9, v10")
    A("v_bfe_u32 v10, v8, 1, 2")
    A("v_lshl_add_u32 v9, v10, 10, v9")
    A("v_bfe_u32 v10, v8, 3, 4")
    A("v_lshl_add_u32 v9, v10, 4, v9")
    A("v_and_b32 v10, 1, v8")
    A("v_lshl_add_u32 v9, v10, 3, v9")
    A("s_lshl_b32 s82, s28, 8")
    A(f"s_add_u32 s82, s82, {WS_GP}")
    A("s_lshl_b32 s83, s30, 7")
    A(f"s_add_u32 s83, s83, {WS_ST}")
    A("s_xor_b32 s83, s83, 128")
    A(f"s_mov_b32 s36, {SPIN}")
    A("L_pollg:")
    A("s_mov_b32 s35, s82")
    A(f"buffer_load_dwordx4 v[{PS}:{PS+3}], off, s[64:67], s83 {gpol}")
    nf = 0 if (noffn or nog) else 8
    for n in range(nf):
        r = G + 2 * n
        A(f"buffer_load_dwordx2 v[{r}:{r+1}], v9, s[64:67], s35 offen {gpol}")
        if n != 7:
            A("s_add_u32 s35, s35, 4096")
    A("s_waitcnt vmcnt(0)")
    if nf and not nopub and npub == 4 and not nofl:
        A(f"v_min3_u32 v8, v{PS+1}, v{PS+3}, v{G+1}")
        A(f"v_max3_u32 v10, v{PS+1}, v{PS+3}, v{G+1}")
        for q in range(3, 15, 4):
            A(f"v_min3_u32 v8, v8, v{G+q}, v{G+q+2}")
            A(f"v_max3_u32 v10, v10, v{G+q}, v{G+q+2}")
        A(f"v_min_u32 v8, v8, v{G+15}")
        A(f"v_max_u32 v10, v10, v{G+15}")
    else:
        A(f"v_min_u32 v8, v{PS+1}, v{PS+3}")
        A(f"v_max_u32 v10, v{PS+1}, v{PS+3}")
    A("v_cmp_ne_u32 vcc, s72, v8")
    A("v_cmp_ne_u32_e64 s[74:75], s72, v10")
    nop(2)
    A("s_or_b64 s[74:75], vcc, s[74:75]")
    A("s_cbranch_scc0 L_pollg_done")
    A("s_sub_u32 s36, s36, 1")
    A("s_cmp_lg_u32 s36, 0")
    A("s_cbranch_scc1 L_pollg")
    A("L_pollg_done:")
    stamp(9)
    A(f"v_max_f32 v{T}, v{T+8}, v{PS}")
    A(f"v_sub_f32 v{T+1}, v{T+8}, v{T}")
    A(f"v_sub_f32 v{T+2}, v{PS}, v{T}")
    A(f"v_mul_f32 v{T+1}, s73, v{T+1}")
    A(f"v_mul_f32 v{T+2}, s73, v{T+2}")
    A(f"v_exp_f32 v{T+1}, v{T+1}")
    A(f"v_exp_f32 v{T+2}, v{T+2}")
    nop(1)
    A(f"v_mul_f32 v{T+3}, v{T+1}, v{T+10}")
    A(f"v_fma_f32 v{T+3}, v{T+2}, v{PS+2}, v{T+3}")
    A(f"v_rcp_f32 v{T+2}, v{T+3}")
    nop(1)
    A(f"v_fma_f32 v{T}, -v{T+3}, v{T+2}, 1.0")
    A(f"v_fma_f32 v{T+2}, v{T}, v{T+2}, v{T+2}")
    A(f"v_mul_f32 v{T+1}, v{T+1}, v{T+2}")
    for w in range(4):
        A(f"v_mul_f32 v{EW+w}, v{EW+w}, v{T+1}")
    A(f"v_mov_b32 v8, {L_F}")
    A(f"ds_write_b128 v8, v[{EW}:{EW+3}]")
    if not noffn:
        for a in range(4):
            A(f"v_add_f32 v{G+4*a}, v{G+4*a}, v{G+4*a+2}")
        for a in range(2):
            A(f"v_add_f32 v{G+8*a}, v{G+8*a}, v{G+8*a+4}")
        A(f"v_add_f32 v{G}, v{G}, v{G+8}")
        A(f"v_cvt_pk_bf16_f32 v{G}, v{G}, v{G}")
        A(f"v_lshlrev_b32 v{G}, 16, v{G}")
        A("v_cmp_ne_u32 vcc, 54, v0")
        nop(1)
        A(f"v_mov_b32_dpp v{G+1}, v{G} row_ror:8 row_mask:0xf bank_mask:0xf")
        A(f"v_max_f32 v{G}, 0, v{G}")
        A(f"v_mul_f32 v{G}, v{G}, v{G+1}")
        A(f"v_cvt_pk_bf16_f32 v{G}, v{G}, v{G}")
        A(f"v_cndmask_b32 v{G}, 0, v{G}, vcc")
        nop(2)
        mkA(0, G, 0)
        for kap in range(7):
            if kap + 1 < 7:
                mkA((kap + 1) & 1, G, kap + 1)
            else:
                nop(2)
            a = AR + 4 * (kap & 1)
            for t in range(5):
                b = BUF + 4 * (kap * 5 + t)
                A(f"v_mfma_f32_16x16x32_bf16 v[{Y+4*t}:{Y+4*t+3}], v[{a}:{a+3}], v[{b}:{b+3}], v[{Y+4*t}:{Y+4*t+3}]")
    stamp(11)
    A("s_waitcnt lgkmcnt(0)")
    wo_loads()
    A("L_vdone:")
    A("v_and_b32 v9, 7, v2")
    A("v_lshl_add_u32 v9, v9, 2, v3")
    A("s_lshl_b32 s35, s34, 5")
    A("v_add_u32 v9, s35, v9")
    A("v_lshlrev_b32 v9, 2, v9")
    A("v_lshlrev_b32 v8, 5, v2")
    A("v_lshl_add_u32 v8, v3, 4, v8")
    A("s_mul_i32 s35, s34, 2560")
    A("v_add_u32 v8, s35, v8")
    A("s_lshl_b32 s35, s34, 6")
    A("v_add_u32 v10, s35, v0")
    A("s_lshl_b32 s35, s34, 4")
    A("s_add_u32 s35, s35, 256")
    A("v_add_u32 v11, s35, v2")
    A(f"v_lshlrev_b32 v{T+12}, 3, v10")
    A(f"v_lshlrev_b32 v{T+13}, 3, v11")
    for (src, dst) in ((10, T + 14), (11, T + 15)):
        A(f"v_lshrrev_b32 v{dst}, 3, v{src}")
        A(f"v_lshlrev_b32 v{dst}, 13, v{dst}")
        A(f"v_and_b32 v{src}, 7, v{src}")
        A(f"v_lshl_add_u32 v{dst}, v{src}, 4, v{dst}")
    A("v_cmp_gt_u32 vcc, 16, v0")
    A(f"v_mov_b32 v10, 0x7ffffff0")
    nop(1)
    A(f"v_cndmask_b32 v{T+15}, v10, v{T+15}, vcc")
    A(f"s_mul_i32 s76, s28, {40*8192}")
    A(f"s_add_u32 s76, s76, {WS_Y}")
    A("s_lshl_b32 s77, s31, 7")
    A("s_add_u32 s77, s77, s76")
    A("s_waitcnt vmcnt(0)")
    stamp(4)
    A("s_barrier")
    stamp(5)
    A(f"v_mov_b32 v10, {L_F}")
    A(f"ds_read_b128 v[{G}:{G+3}], v10")
    for w in range(4):
        A(f"ds_read_b32 v{T+w}, v9 offset:{L_OP+w*512}")
    A("s_waitcnt lgkmcnt(0)")
    A(f"v_mul_f32 v{T}, v{T}, v{G}")
    for w in range(1, 4):
        A(f"v_fma_f32 v{T}, v{T+w}, v{G+w}, v{T}")
    A(f"v_cvt_pk_bf16_f32 v{T}, v{T}, v{T}")
    nop(2)
    mkA(0, T, 0)
    for kap in range(8):
        if kap + 1 < 8:
            mkA((kap + 1) & 1, T, kap + 1)
        else:
            nop(2)
        a = AR + 4 * (kap & 1)
        for t in range(5):
            b = BUF + 4 * (kap * 5 + t)
            A(f"v_mfma_f32_16x16x32_bf16 v[{Y+4*t}:{Y+4*t+3}], v[{a}:{a+3}], v[{b}:{b+3}], v[{Y+4*t}:{Y+4*t+3}]")
    A("s_mov_b32 exec_hi, 0")
    nop(5)
    for t in range(5):
        A(f"ds_write_b128 v8, v[{Y+4*t}:{Y+4*t+3}] offset:{L_YP+t*512}")
    A("s_mov_b64 exec, -1")
    A("s_waitcnt lgkmcnt(0)")
    A("s_barrier")
    for vv in range(4):
        A(f"ds_read_b64 v[{G+2*vv}:{G+2*vv+1}], v{T+12} offset:{L_YP+vv*2560}")
        A(f"ds_read_b64 v[{G+8+2*vv}:{G+8+2*vv+1}], v{T+13} offset:{L_YP+vv*2560}")
    A(f"v_mov_b32 v{T+1}, s72")
    A(f"v_mov_b32 v{T+3}, s72")
    A(f"v_mov_b32 v{T+5}, s72")
    A(f"v_mov_b32 v{T+7}, s72")
    A("s_waitcnt lgkmcnt(0)")
    for (base, dst) in ((G, T), (G + 8, T + 4)):
        A(f"v_add_f32 v{base}, v{base}, v{base+2}")
        A(f"v_add_f32 v{base+1}, v{base+1}, v{base+3}")
        A(f"v_add_f32 v{base+4}, v{base+4}, v{base+6}")
        A(f"v_add_f32 v{base+5}, v{base+5}, v{base+7}")
        A(f"v_add_f32 v{dst}, v{base}, v{base+4}")
        A(f"v_add_f32 v{dst+2}, v{base+1}, v{base+5}")
    A(f"buffer_store_dwordx4 v[{T}:{T+3}], v{T+14}, s[64:67], s77 offen sc1")
    A(f"buffer_store_dwordx4 v[{T+4}:{T+7}], v{T+15}, s[64:67], s77 offen sc1")
    stamp(6)
    A("s_cmp_lg_u32 s34, 0")
    A("s_cbranch_scc1 L_flush")
    A("s_cmp_ge_u32 s31, 40")
    A("s_cbranch_scc1 L_flush")
    A("s_lshl_b32 s35, s31, 13")
    A("s_add_u32 s35, s35, s76")
    A("v_lshlrev_b32 v9, 4, v0")
    A("v_add_u32 v10, 0x1000, v9")
    A(f"s_mov_b32 s36, {SPIN}")
    A("L_poll2:")
    for n in range(8):
        r = BUF + 4 * n
        A(f"buffer_load_dwordx4 v[{r}:{r+3}], v{9 + (n >> 2)}, s[64:67], s35 offen offset:{(n&3)*1024} {ygpol}")
    A("s_waitcnt vmcnt(0)")
    A(f"v_min3_u32 v{T}, v{BUF+1}, v{BUF+3}, v{BUF+5}")
    A(f"v_max3_u32 v{T+1}, v{BUF+1}, v{BUF+3}, v{BUF+5}")
    for q in range(7, 31, 4):
        A(f"v_min3_u32 v{T}, v{T}, v{BUF+q}, v{BUF+q+2}")
        A(f"v_max3_u32 v{T+1}, v{T+1}, v{BUF+q}, v{BUF+q+2}")
    A(f"v_min_u32 v{T}, v{T}, v{BUF+31}")
    A(f"v_max_u32 v{T+1}, v{T+1}, v{BUF+31}")
    A(f"v_cmp_ne_u32 vcc, s72, v{T}")
    A(f"v_cmp_ne_u32_e64 s[74:75], s72, v{T+1}")
    nop(2)
    A("s_or_b64 s[74:75], vcc, s[74:75]")
    A("s_cbranch_scc0 L_poll2_done")
    A("s_sub_u32 s36, s36, 1")
    A("s_cmp_lg_u32 s36, 0")
    A("s_cbranch_scc1 L_poll2")
    A("L_poll2_done:")
    A(f"v_add_f32 v{T}, v{BUF}, v{BUF+4}")
    A(f"v_add_f32 v{T+1}, v{BUF+2}, v{BUF+6}")
    A(f"v_add_f32 v{T+2}, v{BUF+8}, v{BUF+12}")
    A(f"v_add_f32 v{T+3}, v{BUF+10}, v{BUF+14}")
    A(f"v_add_f32 v{T+4}, v{BUF+16}, v{BUF+20}")
    A(f"v_add_f32 v{T+5}, v{BUF+18}, v{BUF+22}")
    A(f"v_add_f32 v{T+6}, v{BUF+24}, v{BUF+28}")
    A(f"v_add_f32 v{T+7}, v{BUF+26}, v{BUF+30}")
    A(f"v_add_f32 v{T}, v{T}, v{T+2}")
    A(f"v_add_f32 v{T+1}, v{T+1}, v{T+3}")
    A(f"v_add_f32 v{T+4}, v{T+4}, v{T+6}")
    A(f"v_add_f32 v{T+5}, v{T+5}, v{T+7}")
    A(f"v_add_f32 v{T}, v{T}, v{T+4}")
    A(f"v_add_f32 v{T+1}, v{T+1}, v{T+5}")
    nop(2)
    A(f"v_permlane32_swap_b32 v{T}, v{T+1}")
    nop(1)
    A(f"v_add_f32 v{T}, v{T}, v{T+1}")
    A(f"v_mov_b32 v{T+1}, v{T}")
    nop(2)
    A(f"v_permlane16_swap_b32 v{T}, v{T+1}")
    nop(1)
    A(f"v_add_f32 v{T}, v{T}, v{T+1}")
    nop(2)
    A(f"v_add_f32_dpp v{T}, v{T}, v{T} row_ror:8 row_mask:0xf bank_mask:0xf")
    A(f"v_mov_b32 v{T+1}, v{T}")
    nop(2)
    A(f"v_permlane32_swap_b32 v{T}, v{T+1}")
    A(f"v_lshlrev_b32 v{T+2}, 16, v{VXR}")
    A(f"v_and_b32 v{T+3}, 0xffff0000, v{VXR}")
    A(f"v_add_f32 v{T}, v{T}, v{T+2}")
    A(f"v_add_f32 v{T+1}, v{T+1}, v{T+3}")
    A(f"v_cvt_pk_bf16_f32 v{T}, v{T}, v{T+1}")
    A("s_mul_i32 s35, s28, 1280")
    A("s_lshl_b32 s36, s31, 5")
    A("s_add_u32 s35, s35, s36")
    A("v_lshlrev_b32 v9, 2, v0")
    A("s_mov_b64 exec, 0xff")
    A(f"buffer_store_dword v{T}, v9, s[68:71], s35 offen")
    A("s_or_b32 s36, s31, s28")
    A("s_cmp_lg_u32 s36, 0")
    A("s_cbranch_scc1 L_fin")
    A("s_mov_b64 exec, 1")
    A(f"v_mov_b32 v{T+1}, s72")
    A(f"buffer_store_dword v{T+1}, off, s[64:67], 0 offset:{WS_E} sc1")
    A("L_fin:")
    stamp(7)
    A("L_flush:")
    stamp_flush()
    A("L_end:")
    A("s_endpgm")

    body = "\n".join(("    " + l) if not l.endswith(":") else l for l in L) + "\n"
    return (HEADER % (LDS_SIZE, NAME, NAME, NAME)) + body + (FOOTER % NAME)


if __name__ == "__main__":
    kw = {}
    out = f"cdna_kernels/{NAME}.s"
    for a in sys.argv[1:]:
        if a.startswith("out="):
            out = a[4:]
            continue
        k, v = a.split("=")
        try:
            v = int(v)
        except ValueError:
            pass
        kw[k] = v
    open(out, "w").write(gen(**kw))
    print("wrote", out)
```

```python
import sys

NAME = "parallel_sum__gqa_block_cached__glu_gated_reglu__decode"

HEADER = """; Fused LN -> {GQA decode attention, ReGLU FFN} -> residual sum.  Generated by gen_kernel.py (hand-designed schedule).
; @launch grid=(256,1,1) block=(512,1,1) lds=%d
.amdgcn_target "amdgcn-amd-amdhsa--gfx950"
.text
.globl %s_kernel
.p2align 8
.type %s_kernel,@function
%s_kernel:
"""

FOOTER = """.section .rodata,"a"
.p2align 6
.amdhsa_kernel %s_kernel
  .amdhsa_next_free_vgpr 256
  .amdhsa_next_free_sgpr 102
  .amdhsa_accum_offset 256
  .amdhsa_group_segment_fixed_size 0
  .amdhsa_kernarg_size 96
  .amdhsa_user_sgpr_count 2
  .amdhsa_user_sgpr_kernarg_segment_ptr 1
  .amdhsa_system_sgpr_workgroup_id_x 1
.end_amdhsa_kernel
"""

L_Q = 0
L_TAG = 256
L_F = 384
L_ST = 2048
L_OP = 2560
L_YP = 4608
LDS_SIZE = 4608 + 4 * 2560

WS_E = 0
WS_ST = 4096
WS_Y = 65536
WS_QP = 0x160000
WS_GP = 0x260000
WS_DBG = 0x480000
WS_SIZE = 0x500000

TAG_A = 1664525
TAG_C = 1013904223
LOG2E = 0x3FB8AA3B
SCALE = 0x3DB504F3
SPIN = 20000


def gen(rot=0, LAL=6, GS=2, PRE=32, PREV=16, prio=0, NPRE=0, stamps=False, kpol="nt", wpol="nt", apol="nt", dpol="nt", LAL2=0, NT1=6, WOAT=0, WOP=4, WDAT=1, FP=0, B0=1, ACK=1, noffn=0, nowo=0, nowq=0, nofl=0, ppol="sc1 nt", gpol="sc1 nt", qgpol="sc1 nt", qppol="sc1", ygpol="sc1", npub=4, nopub=0, nowd=0, nog=0, perm=0, newmap=0, hmap=0, BLK=4096, STG=0, ssh=0, smask=0, ATS=0, atpol="sc0 sc1", ATW=4):
    L = []
    A = L.append

    def nop(n):
        assert 1 <= n <= 16
        A(f"s_nop {n-1}")

    def stamp(idx):
        if not stamps:
            return
        A("s_memrealtime s[90:91]")
        A("s_waitcnt lgkmcnt(0)")
        A(f"v_writelane_b32 v62, s90, {idx}")

    def stamp_flush():
        if not stamps:
            return
        A("s_mov_b64 exec, 0xffff")
        A("v_lshlrev_b32 v61, 2, v63")
        A("buffer_store_dword v62, v61, s[84:87], s88 offen")

    A("s_cmp_ge_u32 s2, 256")
    A("s_cbranch_scc1 L_end")
    A("s_load_dwordx16 s[4:19], s[0:1], 0")
    A("s_load_dwordx8 s[20:27], s[0:1], 64")
    A("v_lshrrev_b32 v1, 6, v0")
    A("v_and_b32 v0, 63, v0")
    A("v_readfirstlane_b32 s3, v1")
    if perm:
        A("s_mov_b32 s30, 0")
        for j, ch in enumerate(str(perm)[1:]):
            A(f"s_bfe_u32 s35, s2, {hex((1 << 16) | int(ch))}")
            A(f"s_lshl_b32 s35, s35, {j}")
            A("s_or_b32 s30, s30, s35")
        A("s_and_b32 s38, s30, 1")
        A("s_bfe_u32 s29, s30, 0x50001")
        A("s_lshr_b32 s28, s30, 6")
        A("s_lshl_b32 s33, s28, 1")
        A("s_add_u32 s33, s33, s38")
        A("s_and_b32 s31, s30, 63")
    elif newmap:
        A("s_and_b32 s32, s2, 7")
        A("s_lshr_b32 s35, s2, 3")
        A("s_bfe_u32 s38, s32, 0x10001")
        A("s_mul_i32 s36, s38, 3")
        A("s_xor_b32 s36, s36, s32")
        A("s_and_b32 s37, s36, 1")
        A("s_lshr_b32 s36, s36, 1")
        A("s_or_b32 s36, s36, s37")
        A("s_and_b32 s28, s35, 3")
        A("s_lshr_b32 s35, s35, 2")
        A("s_lshl_b32 s36, s36, 3")
        A("s_add_u32 s29, s36, s35")
        A("s_lshl_b32 s39, s28, 5")
        A("s_add_u32 s39, s39, s29")
        A("s_lshl_b32 s39, s39, 1")
        A("s_add_u32 s30, s39, s38")
        A("s_lshl_b32 s33, s28, 1")
        A("s_add_u32 s33, s33, s38")
        A("s_lshl_b32 s31, s29, 1")
        A("s_add_u32 s31, s31, s38")
    else:
        if rot:
            A(f"s_add_u32 s32, s2, {rot}")
            A("s_and_b32 s32, s32, 7")
        else:
            A("s_and_b32 s32, s2, 7")
        A("s_lshr_b32 s35, s2, 3")
        A("s_lshr_b32 s36, s35, 3")
        A("s_and_b32 s37, s35, 7")
        A("s_lshr_b32 s28, s37, 1")
        A("s_and_b32 s38, s37, 1")
        if hmap == 0:
            A("s_lshl_b32 s39, s36, 3")
            A("s_add_u32 s29, s32, s39")
        elif hmap == 1:
            A("s_lshl_b32 s39, s32, 2")
            A("s_add_u32 s29, s36, s39")
        elif hmap == 2:
            A("s_lshl_b32 s39, s32, 1")
            A("s_and_b32 s29, s36, 1")
            A("s_add_u32 s29, s29, s39")
            A("s_lshr_b32 s39, s36, 1")
            A("s_lshl_b32 s39, s39, 4")
            A("s_add_u32 s29, s29, s39")
        elif hmap == 3:
            A("s_lshl_b32 s39, s36, 3")
            A("s_lshl_b32 s29, s36, 1")
            A("s_xor_b32 s29, s29, s32")
            A("s_add_u32 s29, s29, s39")
        A("s_lshl_b32 s39, s28, 5")
        A("s_add_u32 s39, s39, s29")
        A("s_lshl_b32 s39, s39, 1")
        A("s_add_u32 s30, s39, s38")
        A("s_lshl_b32 s33, s36, 1")
        A("s_add_u32 s33, s33, s38")
        A("s_lshl_b32 s31, s33, 3")
        A("s_add_u32 s31, s31, s32")
    A("v_and_b32 v2, 15, v0")
    A("v_lshrrev_b32 v3, 4, v0")
    A("v_and_b32 v8, 1, v2")
    A("v_lshlrev_b32 v8, 4, v8")
    A("v_mov_b32 v9, 0xffff")
    A("v_lshlrev_b32 v9, v8, v9")
    A("v_lshrrev_b32 v10, 1, v2")
    for r in range(4):
        A(f"v_cmp_eq_u32 vcc, {r}, v10")
        nop(2)
        A(f"v_cndmask_b32 v{4+r}, 0, v9, vcc")
    A("s_waitcnt lgkmcnt(0)")
    if stamps:
        A("s_mov_b32 s84, s26")
        A("s_and_b32 s85, s27, 0xffff")
        A(f"s_mov_b32 s86, {WS_SIZE}")
        A("s_mov_b32 s87, 0x20000")
        A("s_lshl_b32 s88, s2, 3")
        A("s_add_u32 s88, s88, s3")
        A("s_lshl_b32 s88, s88, 6")
        A(f"s_add_u32 s88, s88, {WS_DBG}")
        A("v_mov_b32 v62, 0")
        A("v_mov_b32 v63, v0")
    stamp(0)
    A("s_cmp_ge_u32 s3, 4")
    A("s_cbranch_scc1 L_service")

    RING = 128
    Q = 12
    S = 16
    SC = 32
    AR = 64
    D = 80
    T = 84
    A("s_lshl_b32 s35, s30, 20")
    A("s_lshr_b32 s36, s30, 12")
    A("s_add_u32 s40, s6, s35")
    A("s_addc_u32 s41, s7, s36")
    A("s_and_b32 s41, s41, 0xffff")
    A("s_mov_b32 s42, 0x100000")
    A("s_mov_b32 s43, 0x20000")
    A("s_add_u32 s44, s8, s35")
    A("s_addc_u32 s45, s9, s36")
    A("s_and_b32 s45, s45, 0xffff")
    A(f"s_mul_i32 s35, s3, {BLK}")
    A("v_lshlrev_b32 v11, 4, v0")
    A("v_add_u32 v11, s35, v11")
    if STG:
        if smask:
            A(f"s_lshr_b32 s55, s30, {ssh}")
            A(f"s_and_b32 s55, s55, {smask}")
            A(f"s_mul_i32 s55, s55, {STG * 4 * BLK}")
        else:
            A(f"s_mul_i32 s55, s30, {STG * 4 * BLK}")
        A("s_and_b32 s55, s55, 0xfffff")
        A("s_mov_b32 s46, s55")
    else:
        A("s_mov_b32 s46, 0")

    assert PREV % GS == 0 and LAL <= PREV <= 32 and LAL % GS == 0 and PRE % GS == 0 and LAL <= PRE <= 32 and LAL + GS <= 32 and 16 % GS == 0

    def issue_load(m):
        r = RING + (m % 32) * 4
        per = min(BLK // 1024, 4)
        A(f"buffer_load_dwordx4 v[{r}:{r+3}], v11, s[40:43], s46 offen offset:{(m % per)*1024} {kpol}")
        if m % per == per - 1:
            if BLK <= 4096:
                inc = 4 * BLK
            elif BLK == 262144:
                inc = 4096
            else:
                nb = BLK // 1024
                assert nb <= 32
                inc = 4096 if (m % nb) != nb - 1 else 4 * BLK - (BLK - 4096)
            A(f"s_add_u32 s46, s46, {inc}")
            if STG:
                A("s_and_b32 s46, s46, 0xfffff")

    for m in range(LAL):
        if B0 and m == NPRE:
            A("s_barrier")
        issue_load(m)
    if B0 and NPRE >= LAL:
        A("s_barrier")
    for m0 in range(LAL, PRE, GS):
        A(f"s_waitcnt vmcnt({LAL - GS})")
        for m in range(m0, m0 + GS):
            issue_load(m)
    A("s_mov_b32 s48, 0xaaaaaaaa")
    A("s_mov_b32 s49, 0xaaaaaaaa")
    A("s_mov_b32 s50, 0xcccccccc")
    A("s_mov_b32 s51, 0xcccccccc")
    A(f"s_mov_b32 s52, {hex(SCALE)}")
    A(f"s_mov_b32 s53, {hex(LOG2E)}")
    A("v_lshlrev_b32 v10, 5, v2")
    for r in range(4):
        A(f"v_mov_b32 v{D+r}, 0")
    stamp(1)
    A("s_barrier")
    stamp(2)
    A("v_lshlrev_b32 v9, 4, v2")
    A(f"ds_read_b128 v[{Q}:{Q+3}], v9 offset:{L_Q}")
    A("s_waitcnt lgkmcnt(0)")
    A("s_mov_b32 s47, 0")
    nop(2)

    A("s_mov_b64 vcc, -1")
    A("L_ktrip:")
    for half in range(2):
        for n in range(16 * half, 16 * half + 16, GS):
            if n == 32 - LAL:
                A("s_cmp_lg_u32 s47, 7")
                A("s_cbranch_scc1 L_knosw")
                A("s_mov_b32 s40, s44")
                A("s_mov_b32 s41, s45")
                A("s_mov_b32 s46, s55" if STG else "s_mov_b32 s46, 0")
                A("L_knosw:")
            A(f"s_waitcnt vmcnt({LAL - GS})")
            skip = n + LAL < PRE
            if skip:
                A(f"s_cbranch_vccnz L_kskip{n}")
            for m in range(n + LAL, n + LAL + GS):
                issue_load(m)
            if skip:
                A(f"L_kskip{n}:")
            for r in range(4):
                for i in range(GS):
                    src = RING + (n + i) * 4 + r
                    d = S + (n + i) % 16
                    c = "0" if r == 0 else f"v{d}"
                    A(f"v_dot2_f32_bf16 v{d}, v{src}, v{Q+r}, {c}")
        nop(3)
        for j in range(8):
            A(f"v_add_f32_dpp v{S+j}, v{S+j}, v{S+j} row_ror:8 row_mask:0xf bank_mask:0x3")
        for j in range(8):
            A(f"v_add_f32_dpp v{S+j}, v{S+j+8}, v{S+j+8} row_ror:8 row_mask:0xf bank_mask:0xc")
        for j in range(4):
            A(f"v_add_f32_dpp v{S+j}, v{S+j}, v{S+j} row_half_mirror row_mask:0xf bank_mask:0x5")
        for j in range(4):
            A(f"v_add_f32_dpp v{S+j}, v{S+j+4}, v{S+j+4} row_half_mirror row_mask:0xf bank_mask:0xa")
        A(f"v_cndmask_b32_e64 v{T+0}, v{S+2}, v{S+0}, s[50:51]")
        A(f"v_cndmask_b32_e64 v{T+2}, v{S+0}, v{S+2}, s[50:51]")
        A(f"v_cndmask_b32_e64 v{T+1}, v{S+3}, v{S+1}, s[50:51]")
        A(f"v_cndmask_b32_e64 v{T+3}, v{S+1}, v{S+3}, s[50:51]")
        nop(1)
        A(f"v_add_f32_dpp v{T+2}, v{T+0}, v{T+2} quad_perm:[2,3,0,1] row_mask:0xf bank_mask:0xf")
        A(f"v_add_f32_dpp v{T+3}, v{T+1}, v{T+3} quad_perm:[2,3,0,1] row_mask:0xf bank_mask:0xf")
        A(f"v_cndmask_b32_e64 v{T+0}, v{T+3}, v{T+2}, s[48:49]")
        A(f"v_cndmask_b32_e64 v{T+1}, v{T+2}, v{T+3}, s[48:49]")
        nop(2)
        A(f"v_add_f32_dpp v{T+1}, v{T+0}, v{T+1} quad_perm:[1,0,3,2] row_mask:0xf bank_mask:0xf")
        A(f"v_cvt_pk_bf16_f32 v{T+1}, v{T+1}, v{T+1}")
        A(f"v_lshlrev_b32 v{T+1}, 16, v{T+1}")
        A(f"v_mul_f32 v{T+1}, s52, v{T+1}")
        A(f"v_cvt_pk_bf16_f32 v{T+1}, v{T+1}, v{T+1}")
        if half == 0:
            A(f"v_lshlrev_b32 v{T+4}, 16, v{T+1}")
        else:
            for kk in range(14):
                A(f"v_mov_b32 v{SC+kk}, v{SC+kk+2}")
            A(f"v_mov_b32 v{SC+14}, v{T+4}")
            A(f"v_lshlrev_b32 v{SC+15}, 16, v{T+1}")
    A("s_mov_b64 vcc, 0")
    A("s_add_u32 s47, s47, 1")
    A("s_cmp_lt_u32 s47, 8")
    A("s_cbranch_scc1 L_ktrip")
    stamp(3)
    for m in range(LAL, PREV):
        issue_load(m)

    def allreduce(op, reg, tmp):
        for sh in (8, 4, 2, 1):
            nop(2)
            A(f"{op}_dpp v{reg}, v{reg}, v{reg} row_ror:{sh} row_mask:0xf bank_mask:0xf")
        A(f"v_mov_b32 v{tmp}, v{reg}")
        nop(2)
        A(f"v_permlane16_swap_b32 v{reg}, v{tmp}")
        nop(1)
        A(f"{op} v{reg}, v{reg}, v{tmp}")
        A(f"v_mov_b32 v{tmp}, v{reg}")
        nop(2)
        A(f"v_permlane32_swap_b32 v{reg}, v{tmp}")
        nop(1)
        A(f"{op} v{reg}, v{reg}, v{tmp}")

    M = T
    A(f"v_max3_f32 v{M}, v{SC}, v{SC+1}, v{SC+2}")
    for kk in range(3, 15, 2):
        A(f"v_max3_f32 v{M}, v{M}, v{SC+kk}, v{SC+kk+1}")
    A(f"v_max_f32 v{M}, v{M}, v{SC+15}")
    allreduce("v_max_f32", M, T + 2)
    for kk in range(16):
        A(f"v_sub_f32 v{SC+kk}, v{SC+kk}, v{M}")
    for kk in range(16):
        A(f"v_mul_f32 v{SC+kk}, s53, v{SC+kk}")
    for kk in range(16):
        A(f"v_exp_f32 v{SC+kk}, v{SC+kk}")
    nop(1)
    LS = T + 1
    A(f"v_add_f32 v{LS}, v{SC}, v{SC+1}")
    for kk in range(2, 16):
        A(f"v_add_f32 v{LS}, v{LS}, v{SC+kk}")
    for kk in range(16):
        A(f"v_cvt_pk_bf16_f32 v{SC+kk}, v{SC+kk}, v{SC+kk}")
    allreduce("v_add_f32", LS, T + 2)
    A("s_lshl_b32 s35, s3, 3")
    A(f"v_mov_b32 v{T+3}, s35")
    A(f"ds_write_b64 v{T+3}, v[{M}:{M+1}] offset:{L_ST}")
    A("s_waitcnt lgkmcnt(0)")
    A("s_barrier")
    stamp(4)

    A("s_mov_b32 s47, 0")
    A("s_mov_b64 vcc, -1")
    if ATS:
        A("s_mov_b32 s56, s26")
        A("s_and_b32 s57, s27, 0xffff")
        A(f"s_mov_b32 s58, {WS_SIZE}")
        A("s_mov_b32 s59, 0x20000")
        A("s_lshr_b32 s54, s30, 1")
        A("s_lshl_b32 s54, s54, 2")
        A("s_add_u32 s54, s54, s3")
        A("s_lshl_b32 s54, s54, 7")
        A("s_add_u32 s54, s54, 0x400000")
        A("v_mov_b32 v48, 0x12345")
    def vloop(label, lal, end, first):
        A(f"{label}:")
        for n in range(0, 32, GS):
            for i in range(GS):
                pr = SC + ((n + i) >> 4)
                j = (n + i) & 15
                for r in range(4):
                    A(f"v_and_b32_dpp v{AR+4*i+r}, v{pr}, v{4+r} row_newbcast:{j} row_mask:0xf bank_mask:0xf")
            if n + GS == 32:
                for kk in range(14):
                    A(f"v_mov_b32 v{SC+kk}, v{SC+kk+2}")
            A(f"s_waitcnt vmcnt({lal - GS})")
            skip = first and n + lal < PREV
            if skip:
                A(f"s_cbranch_vccnz {label}_skip{n}")
            for m in range(n + lal, n + lal + GS):
                issue_load(m)
            if skip:
                A(f"{label}_skip{n}:")
                nop(1)
            if ATS and n % 8 == 2:
                A(f"s_cmp_lt_u32 s47, {8 - ATS}")
                A(f"s_cbranch_scc1 {label}_noat{n}")
                A(f"s_cmp_ge_u32 s3, {ATW}")
                A(f"s_cbranch_scc1 {label}_noat{n}")
                A("s_mov_b64 exec, 1")
                A(f"buffer_atomic_swap v48, off, s[56:59], s54 {atpol}")
                A("s_mov_b64 exec, -1")
                A("s_add_u32 s54, s54, 4")
                A(f"{label}_noat{n}:")
            for i in range(GS):
                src = RING + (n + i) * 4
                A(f"v_mfma_f32_16x16x32_bf16 v[{D}:{D+3}], v[{AR+4*i}:{AR+4*i+3}], v[{src}:{src+3}], v[{D}:{D+3}]")
        if first:
            A("s_mov_b64 vcc, 0")
        A("s_add_u32 s47, s47, 1")
        A(f"s_cmp_lt_u32 s47, {end}")
        A(f"s_cbranch_scc1 {label}")
    if LAL2:
        assert LAL2 % GS == 0 and LAL2 + GS <= 32 and LAL2 >= LAL
        vloop("L_vtrip", LAL, NT1, True)
        for m in range(LAL, LAL2):
            issue_load(m)
        vloop("L_vtripb", LAL2, 8, False)
    else:
        vloop("L_vtrip", LAL, 8, True)
    stamp(5)
    A("s_lshl_b32 s35, s3, 9")
    A("v_lshlrev_b32 v8, 4, v3")
    A("v_add3_u32 v8, v8, v10, s35")
    A("s_mov_b32 exec_hi, 0")
    nop(4)
    A(f"ds_write_b128 v8, v[{D}:{D+3}] offset:{L_OP}")
    A("s_waitcnt lgkmcnt(0)")
    A("s_barrier")
    stamp(6)
    stamp_flush()
    A("s_endpgm")

    A("L_service:")
    if prio:
        A(f"s_setprio {prio}")
    VW = 1
    M2 = 12
    PC = 14
    VE = 19
    DQ = 20
    A2 = 28
    Y = 32
    AR = 52
    VXR = 60
    G = 64
    T = 80
    BUF = 96
    XU = 176
    XS = 216
    A("s_sub_u32 s34, s3, 4")
    def srd(base, ptr, size):
        A(f"s_mov_b32 s{base}, s{ptr}")
        A(f"s_and_b32 s{base+1}, s{ptr+1}, 0xffff")
        A(f"s_mov_b32 s{base+2}, {size}")
        A(f"s_mov_b32 s{base+3}, 0x20000")
    srd(64, 26, WS_SIZE)
    srd(40, 4, 4 * 1280)
    A("s_cmp_eq_u32 s34, 0")
    A("s_cbranch_scc0 L_idle")
    A(f"buffer_load_dword v{VE}, off, s[64:67], 0 offset:{WS_E} sc1")
    A("v_lshrrev_b32 v8, 2, v2")
    A("v_mul_u32_u24 v8, 1280, v8")
    A("v_and_b32 v10, 3, v2")
    A("v_lshl_add_u32 v11, v10, 2, v3")
    A("v_lshl_add_u32 v9, v11, 1, v8")
    A("v_lshl_add_u32 v11, v3, 2, v10")
    A("v_lshl_add_u32 v8, v11, 4, v8")
    if newmap or perm:
        A("s_mov_b32 s80, s33")
    else:
        A("s_lshr_b32 s80, s2, 3")
        A("s_and_b32 s80, s80, 7")
    A("s_mul_i32 s36, s80, 160")
    for i in range(5):
        A(f"buffer_load_dwordx4 v[{XS+4*i}:{XS+4*i+3}], v8, s[40:43], 0 offen offset:{i*256}")
    for q in range(5):
        A(f"buffer_load_ushort v{PC+q}, v9, s[40:43], s36 offen offset:{q*32}")
    srd(44, 10, 640 * 8192)
    A("v_lshlrev_b32 v10, 13, v3")
    A("v_lshl_add_u32 v10, v2, 4, v10")
    A(f"s_mul_i32 s35, s80, {80*8192}")
    A("s_lshl_b32 s36, s29, 8")
    A("s_add_u32 s35, s35, s36")
    for n in range(20):
        r = BUF + 4 * n
        if not nowq:
            A(f"buffer_load_dwordx4 v[{r}:{r+3}], v10, s[44:47], s35 offen {apol}")
        if n != 19:
            A(f"s_add_u32 s35, s35, {4*8192}")
    if B0:
        A("s_barrier")
    stamp(12)
    A("s_lshl_b32 s81, s29, 15")
    A("s_lshl_b32 s36, s80, 12")
    A("s_add_u32 s81, s81, s36")
    A(f"s_add_u32 s81, s81, {WS_QP}")
    def masks2():
        A("v_and_b32 v8, 1, v2")
        A("v_lshlrev_b32 v8, 4, v8")
        A("v_mov_b32 v9, 0xffff")
        A("v_lshlrev_b32 v9, v8, v9")
        A("v_and_b32 v10, 2, v2")
        A("v_cmp_eq_u32 vcc, 0, v10")
        for r in range(8):
            A(f"v_mov_b32 v{DQ+r}, 0")
        A(f"v_cndmask_b32 v{M2}, 0, v9, vcc")
        A("v_cmp_ne_u32 vcc, 0, v10")
        nop(2)
        A(f"v_cndmask_b32 v{M2+1}, 0, v9, vcc")
    masks2()
    A("s_waitcnt vmcnt(%d)" % (0 if nowq else 20))
    stamp(1)
    for r in range(20):
        A(f"v_lshlrev_b32 v{XU+2*r}, 16, v{XS+r}")
        A(f"v_and_b32 v{XU+2*r+1}, 0xffff0000, v{XS+r}")
    A(f"v_readfirstlane_b32 s72, v{VE}")
    for a in range(4):
        A(f"v_pk_add_f32 v[{G+2*a}:{G+2*a+1}], v[{XU+2*a}:{XU+2*a+1}], v[{XU+8+2*a}:{XU+8+2*a+1}]")
    for r in range(8, 20):
        a = r & 3
        A(f"v_pk_add_f32 v[{G+2*a}:{G+2*a+1}], v[{G+2*a}:{G+2*a+1}], v[{XU+2*r}:{XU+2*r+1}]")
    A(f"v_pk_add_f32 v[{G}:{G+1}], v[{G}:{G+1}], v[{G+2}:{G+3}]")
    A(f"v_pk_add_f32 v[{G+4}:{G+5}], v[{G+4}:{G+5}], v[{G+6}:{G+7}]")
    A(f"s_mul_i32 s72, s72, {TAG_A}")
    A(f"v_pk_add_f32 v[{G}:{G+1}], v[{G}:{G+1}], v[{G+4}:{G+5}]")
    A(f"s_add_u32 s72, s72, {TAG_C}")
    A(f"v_add_f32 v{T}, v{G}, v{G+1}")

    def breduce(reg, tmp):
        nop(2)
        A(f"v_add_f32_dpp v{reg}, v{reg}, v{reg} quad_perm:[1,0,3,2] row_mask:0xf bank_mask:0xf")
        nop(2)
        A(f"v_add_f32_dpp v{reg}, v{reg}, v{reg} quad_perm:[2,3,0,1] row_mask:0xf bank_mask:0xf")
        A(f"v_mov_b32 v{tmp}, v{reg}")
        nop(2)
        A(f"v_permlane16_swap_b32 v{reg}, v{tmp}")
        nop(1)
        A(f"v_add_f32 v{reg}, v{reg}, v{tmp}")
        A(f"v_mov_b32 v{tmp}, v{reg}")
        nop(2)
        A(f"v_permlane32_swap_b32 v{reg}, v{tmp}")
        nop(1)
        A(f"v_add_f32 v{reg}, v{reg}, v{tmp}")

    breduce(T, T + 1)
    A(f"v_mul_f32 v{T}, 0x3acccccd, v{T}")
    A(f"v_mov_b32 v{T+1}, v{T}")
    for r in range(20):
        A(f"v_pk_add_f32 v[{XU+2*r}:{XU+2*r+1}], v[{XU+2*r}:{XU+2*r+1}], v[{T}:{T+1}] neg_lo:[0,1] neg_hi:[0,1]")
    for a in range(4):
        A(f"v_pk_mul_f32 v[{G+2*a}:{G+2*a+1}], v[{XU+2*a}:{XU+2*a+1}], v[{XU+2*a}:{XU+2*a+1}]")
    for r in range(4, 20):
        a = r & 3
        A(f"v_pk_fma_f32 v[{G+2*a}:{G+2*a+1}], v[{XU+2*r}:{XU+2*r+1}], v[{XU+2*r}:{XU+2*r+1}], v[{G+2*a}:{G+2*a+1}]")
    A(f"v_pk_add_f32 v[{G}:{G+1}], v[{G}:{G+1}], v[{G+2}:{G+3}]")
    A(f"v_pk_add_f32 v[{G+4}:{G+5}], v[{G+4}:{G+5}], v[{G+6}:{G+7}]")
    A(f"v_pk_add_f32 v[{G}:{G+1}], v[{G}:{G+1}], v[{G+4}:{G+5}]")
    A(f"v_add_f32 v{T+1}, v{G}, v{G+1}")
    breduce(T + 1, T + 2)
    A(f"v_mul_f32 v{T+1}, 0x3acccccd, v{T+1}")
    A(f"v_cvt_pk_bf16_f32 v{T}, v{T}, v{T}")
    A(f"v_cvt_pk_bf16_f32 v{T+1}, v{T+1}, v{T+1}")
    A(f"v_lshlrev_b32 v{T}, 16, v{T}")
    A(f"v_lshlrev_b32 v{T+1}, 16, v{T+1}")
    A(f"v_add_f32 v{T+1}, 0x3727c5ac, v{T+1}")
    A(f"v_cvt_pk_bf16_f32 v{T+1}, v{T+1}, v{T+1}")
    A(f"v_lshlrev_b32 v{T+1}, 16, v{T+1}")
    A(f"v_sqrt_f32 v{T+1}, v{T+1}")
    for q in range(5):
        A(f"v_lshlrev_b32 v{PC+q}, 16, v{PC+q}")
    A(f"v_cvt_pk_bf16_f32 v{T+1}, v{T+1}, v{T+1}")
    A(f"v_lshlrev_b32 v{T+1}, 16, v{T+1}")
    A(f"v_rcp_f32 v{T+2}, v{T+1}")

    def normalize(regs):
        for r in regs:
            A(f"v_sub_f32 v{r}, v{r}, v{T}")
        for r in regs:
            A(f"v_cvt_pk_bf16_f32 v{r}, v{r}, v{r}")
        for r in regs:
            A(f"v_lshlrev_b32 v{r}, 16, v{r}")
        for k, r in enumerate(regs):
            A(f"v_mul_f32 v{T+4+k}, v{r}, v{T+2}")
        for k, r in enumerate(regs):
            A(f"v_fma_f32 v{r}, -v{T+4+k}, v{T+1}, v{r}")
        for k, r in enumerate(regs):
            A(f"v_fma_f32 v{r}, v{r}, v{T+2}, v{T+4+k}")
        for r in regs:
            A(f"v_cvt_pk_bf16_f32 v{r}, v{r}, v{r}")
    normalize([PC + q for q in range(5)])
    A(f"v_mov_b32 v{T+3}, s72")
    A("v_lshrrev_b32 v8, 2, v2")
    A("v_lshlrev_b32 v8, 4, v8")
    A(f"ds_write_b128 v8, v[{T}:{T+3}] offset:{L_TAG}")
    stamp(14)

    def mkA2(setidx, n):
        q, jj = n >> 2, n & 3
        for r in range(2):
            A(f"v_and_b32_dpp v{A2+2*setidx+r}, v{PC+q}, v{M2+r} quad_perm:[{jj},{jj},{jj},{jj}] row_mask:0xf bank_mask:0xf")

    def prod_mfma(NW):
        nop(2)
        mkA2(0, 0)
        for n in range(NW):
            if n + 1 < NW:
                mkA2((n + 1) & 1, n + 1)
            else:
                nop(2)
            if (n & 1) == 0:
                A(f"s_waitcnt vmcnt({NW - 2 - n})")
            b = BUF + 4 * n
            a = A2 + 2 * (n & 1)
            A(f"v_mfma_f32_16x16x16_bf16 v[{DQ}:{DQ+3}], v[{a}:{a+1}], v[{b}:{b+1}], v[{DQ}:{DQ+3}]")
            A(f"v_mfma_f32_16x16x16_bf16 v[{DQ+4}:{DQ+7}], v[{a}:{a+1}], v[{b+2}:{b+3}], v[{DQ+4}:{DQ+7}]")

    def publish(pol="sc1", nst=4):
        A("v_lshlrev_b32 v11, 4, v0")
        for r in range(8):
            A(f"v_mov_b32 v{G+2*r+1}, s72")
        for r in range(8):
            A(f"v_mov_b32 v{G+2*r}, v{DQ+r}")
        for st_ in range(nst):
            A(f"buffer_store_dwordx4 v[{G+4*st_}:{G+4*st_+3}], v11, s[64:67], s81 offen offset:{st_*1024} {pol}")

    prod_mfma(20)
    stamp(15)
    publish(qppol)
    A("v_lshlrev_b32 v10, 10, v3")
    A("v_lshl_add_u32 v10, v2, 4, v10")
    A("s_lshl_b32 s82, s29, 15")
    A("s_lshl_b32 s36, s28, 8")
    A("s_add_u32 s82, s82, s36")
    A(f"s_add_u32 s82, s82, {WS_QP}")
    A(f"s_mov_b32 s36, {SPIN}")
    if ACK:
        A("s_waitcnt vmcnt(0)")
    stamp(10)
    A("L_pollq:")
    A("s_mov_b32 s35, s82")
    for n in range(8):
        r = BUF + 4 * n
        A(f"buffer_load_dwordx4 v[{r}:{r+3}], v10, s[64:67], s35 offen {qgpol}")
        if n != 7:
            A("s_add_u32 s35, s35, 4096")
    A("s_waitcnt vmcnt(0)")
    A(f"v_min3_u32 v{T}, v{BUF+1}, v{BUF+3}, v{BUF+5}")
    A(f"v_max3_u32 v{T+1}, v{BUF+1}, v{BUF+3}, v{BUF+5}")
    for q in range(7, 31, 4):
        A(f"v_min3_u32 v{T}, v{T}, v{BUF+q}, v{BUF+q+2}")
        A(f"v_max3_u32 v{T+1}, v{T+1}, v{BUF+q}, v{BUF+q+2}")
    A(f"v_min_u32 v{T}, v{T}, v{BUF+31}")
    A(f"v_max_u32 v{T+1}, v{T+1}, v{BUF+31}")
    A(f"v_cmp_ne_u32 vcc, s72, v{T}")
    A(f"v_cmp_ne_u32_e64 s[74:75], s72, v{T+1}")
    nop(2)
    A("s_or_b64 s[74:75], vcc, s[74:75]")
    A("s_cbranch_scc0 L_pollq_done")
    A("s_sub_u32 s36, s36, 1")
    A("s_cmp_lg_u32 s36, 0")
    A("s_cbranch_scc1 L_pollq")
    A("L_pollq_done:")
    for a in range(4):
        A(f"v_add_f32 v{T+2*a}, v{BUF+8*a}, v{BUF+8*a+4}")
        A(f"v_add_f32 v{T+2*a+1}, v{BUF+8*a+2}, v{BUF+8*a+6}")
    for a in range(2):
        A(f"v_add_f32 v{T+4*a}, v{T+4*a}, v{T+4*a+2}")
        A(f"v_add_f32 v{T+4*a+1}, v{T+4*a+1}, v{T+4*a+3}")
    A(f"v_add_f32 v{T}, v{T}, v{T+4}")
    A(f"v_add_f32 v{T+1}, v{T+1}, v{T+5}")
    A("v_lshlrev_b32 v9, 2, v3")
    A(f"v_cvt_pk_bf16_f32 v{T}, v{T}, v{T+1}")
    A("v_lshl_add_u32 v9, v2, 4, v9")
    A(f"ds_write_b32 v9, v{T} offset:{L_Q}")
    A("s_waitcnt lgkmcnt(0)")
    stamp(13)
    A("s_branch L_b1")
    A("L_idle:")
    if B0:
        A("s_barrier")
    A("L_b1:")
    A("s_barrier")
    stamp(2)
    A("v_lshrrev_b32 v8, 2, v2")
    A("v_lshlrev_b32 v9, 4, v8")
    A(f"ds_read_b128 v[{T}:{T+3}], v9 offset:{L_TAG}")
    A("s_waitcnt lgkmcnt(0)")
    A(f"v_readfirstlane_b32 s72, v{T+3}")
    A("s_cmp_lg_u32 s34, 2")
    A("s_cbranch_scc1 L_common")
    A("s_cmp_ge_u32 s2, 224")
    A("s_cbranch_scc1 L_common")
    if noffn:
        A("s_branch L_common")
    A("s_cmp_ge_u32 s2, 112")
    A("s_cselect_b32 s36, 112, 0")
    A("s_sub_u32 s36, s2, s36")
    A("s_mul_i32 s78, s36, 4682")
    A("s_lshr_b32 s78, s78, 16")
    A("s_mul_i32 s79, s78, 14")
    A("s_sub_u32 s79, s36, s79")
    A("v_mul_u32_u24 v8, 1280, v8")
    A("v_and_b32 v10, 3, v2")
    A("v_lshl_add_u32 v11, v10, 2, v3")
    A("v_lshl_add_u32 v9, v11, 1, v8")
    A("s_mul_i32 s36, s78, 160")
    for q in range(5):
        A(f"buffer_load_ushort v{PC+q}, v9, s[40:43], s36 offen offset:{q*32}")
    A("s_cmp_ge_u32 s2, 112")
    A("s_cbranch_scc1 L_ldU")
    srd(44, 16, 640 * 3456)
    A("s_branch L_ldF2")
    A("L_ldU:")
    srd(44, 18, 640 * 3456)
    A("L_ldF2:")
    A("v_mul_u32_u24 v1, 3456, v3")
    A("v_lshl_add_u32 v1, v2, 4, v1")
    A(f"s_mul_i32 s83, s78, {80*3456}")
    A("s_lshl_b32 s36, s79, 8")
    A("s_add_u32 s83, s83, s36")
    for n in range(20):
        r = BUF + 4 * n
        if FP and n >= FP:
            A(f"s_waitcnt vmcnt({FP-1})")
        if not nofl:
            A(f"buffer_load_dwordx4 v[{r}:{r+3}], v1, s[44:47], s83 offen {apol}")
        if n != 19:
            A(f"s_add_u32 s83, s83, {4*3456}")
    masks2()
    A("s_waitcnt vmcnt(%d)" % (0 if (nofl or FP) else 20))
    for q in range(5):
        A(f"v_lshlrev_b32 v{PC+q}, 16, v{PC+q}")
    normalize([PC + q for q in range(5)])
    prod_mfma(20)
    stamp(15)
    A("L_common:")
    srd(56, 20, 1728 * 1280)
    srd(60, 12, 4096 * 1280)
    srd(68, 22, 4 * 1280)
    A(f"v_mul_u32_u24 v{VW}, 1280, v3")
    A(f"v_lshl_add_u32 v{VW}, v2, 4, v{VW}")
    for r in range(20):
        A(f"v_mov_b32 v{Y+r}, 0")
    A("s_mul_i32 s35, s28, 1280")
    A("s_lshl_b32 s36, s31, 5")
    A("s_add_u32 s35, s35, s36")
    A("v_lshlrev_b32 v10, 2, v0")
    A(f"buffer_load_dword v{VXR}, v10, s[40:43], s35 offen")

    def mkA(setidx, preg, j):
        for r in range(4):
            A(f"v_and_b32_dpp v{AR+4*setidx+r}, v{preg}, v{4+r} row_newbcast:{j} row_mask:0xf bank_mask:0xf")

    def wd_loads():
        A(f"s_mul_i32 s35, s31, {27*1280}")
        for kap in range(7):
            for t in range(5):
                r = BUF + 4 * (kap * 5 + t)
                if WOP and kap * 5 + t >= WOP:
                    A(f"s_waitcnt vmcnt({WOP-1})")
                if not nowd:
                    A(f"buffer_load_dwordx4 v[{r}:{r+3}], v{VW}, s[56:59], s35 offen offset:{t*256} {dpol}")
            if kap != 6:
                A(f"s_add_u32 s35, s35, {4*1280}")

    def wo_loads():
        A("s_lshl_b32 s35, s29, 7")
        A("s_lshl_b32 s36, s34, 5")
        A("s_add_u32 s35, s35, s36")
        A("s_mul_i32 s35, s35, 1280")
        for kap in range(8):
            for t in range(5):
                r = BUF + 4 * (kap * 5 + t)
                if not nowo:
                    if WOP and kap * 5 + t >= WOP:
                        A(f"s_waitcnt vmcnt({WOP-1})")
                    A(f"buffer_load_dwordx4 v[{r}:{r+3}], v{VW}, s[60:63], s35 offen offset:{t*256} {wpol}")
            if kap != 7:
                A(f"s_add_u32 s35, s35, {4*1280}")

    EW = 240
    PS = 236

    def wg_stats(ew):
        A("v_mov_b32 v8, 0")
        A(f"ds_read_b128 v[{T}:{T+3}], v8 offset:{L_ST}")
        A(f"ds_read_b128 v[{T+4}:{T+7}], v8 offset:{L_ST+16}")
        A(f"s_mov_b32 s73, {hex(LOG2E)}")
        A("s_waitcnt lgkmcnt(0)")
        A(f"v_max3_f32 v{T+8}, v{T}, v{T+2}, v{T+4}")
        A(f"v_max_f32 v{T+8}, v{T+8}, v{T+6}")
        for w in range(4):
            A(f"v_sub_f32 v{ew+w}, v{T+2*w}, v{T+8}")
        for w in range(4):
            A(f"v_mul_f32 v{ew+w}, s73, v{ew+w}")
        for w in range(4):
            A(f"v_exp_f32 v{ew+w}, v{ew+w}")
        nop(1)
        A(f"v_mul_f32 v{T+10}, v{ew}, v{T+1}")
        for w in range(1, 4):
            A(f"v_fma_f32 v{T+10}, v{ew+w}, v{T+2*w+1}, v{T+10}")

    A("s_cmp_eq_u32 s34, 1")
    A("s_cbranch_scc1 L_k1")
    if WOAT == 0:
        wo_loads()
    A("s_branch L_kdone")
    A("L_k1:")
    if WDAT == 0 and not noffn:
        wd_loads()
    A("L_kdone:")
    stamp(3)
    A("s_barrier")
    A("s_cmp_eq_u32 s34, 1")
    A("s_cbranch_scc1 L_v1")
    A("s_cmp_eq_u32 s34, 0")
    A("s_cbranch_scc0 L_nostat")
    wg_stats(G)
    A(f"v_mov_b32 v{T+9}, s72")
    A(f"v_mov_b32 v{T+11}, s72")
    A("s_lshl_b32 s35, s30, 7")
    A(f"s_add_u32 s35, s35, {WS_ST}")
    A("s_mov_b64 exec, 1")
    A(f"buffer_store_dwordx4 v[{T+8}:{T+11}], off, s[64:67], s35 {ppol}")
    A("s_mov_b64 exec, -1")
    A("L_nostat:")
    A("s_cmp_lg_u32 s34, 2")
    A("s_cbranch_scc1 L_nofpub")
    A("s_cmp_ge_u32 s2, 224")
    A("s_cbranch_scc1 L_nofpub")
    if not (noffn or nopub):
        A("s_cmp_ge_u32 s2, 112")
        A("s_cselect_b32 s36, 112, 0")
        A("s_sub_u32 s37, s2, s36")
        A("s_mul_i32 s78, s37, 4682")
        A("s_lshr_b32 s78, s78, 16")
        A("s_mul_i32 s79, s78, 14")
        A("s_sub_u32 s79, s37, s79")
        A("s_lshl_b32 s81, s79, 3")
        A("s_add_u32 s81, s81, s78")
        A("s_add_u32 s81, s81, s36")
        A("s_lshl_b32 s81, s81, 12")
        A(f"s_add_u32 s81, s81, {WS_GP}")
        publish(ppol, npub)
    A("L_nofpub:")
    if WOAT == 1:
        wo_loads()
    A("s_branch L_vdone")

    A("L_v1:")
    if WDAT == 1 and not noffn:
        wd_loads()
    wg_stats(EW)
    A("v_and_b32 v8, 7, v2")
    A("v_lshl_add_u32 v8, v8, 2, v3")
    A("v_min_u32 v8, 26, v8")
    A("s_mul_i32 s35, s31, 27")
    A("v_add_u32 v8, s35, v8")
    A("v_lshrrev_b32 v9, 7, v8")
    A("v_lshlrev_b32 v9, 15, v9")
    A("v_lshrrev_b32 v10, 3, v2")
    A(f"v_mul_u32_u24 v10, {112*4096}, v10")
    A("v_add_u32 v9, v9, v10")
    A("v_bfe_u32 v10, v8, 1, 2")
    A("v_lshl_add_u32 v9, v10, 10, v9")
    A("v_bfe_u32 v10, v8, 3, 4")
    A("v_lshl_add_u32 v9, v10, 4, v9")
    A("v_and_b32 v10, 1, v8")
    A("v_lshl_add_u32 v9, v10, 3, v9")
    A("s_lshl_b32 s82, s28, 8")
    A(f"s_add_u32 s82, s82, {WS_GP}")
    A("s_lshl_b32 s83, s30, 7")
    A(f"s_add_u32 s83, s83, {WS_ST}")
    A("s_xor_b32 s83, s83, 128")
    A(f"s_mov_b32 s36, {SPIN}")
    A("L_pollg:")
    A("s_mov_b32 s35, s82")
    A(f"buffer_load_dwordx4 v[{PS}:{PS+3}], off, s[64:67], s83 {gpol}")
    nf = 0 if (noffn or nog) else 8
    for n in range(nf):
        r = G + 2 * n
        A(f"buffer_load_dwordx2 v[{r}:{r+1}], v9, s[64:67], s35 offen {gpol}")
        if n != 7:
            A("s_add_u32 s35, s35, 4096")
    A("s_waitcnt vmcnt(0)")
    if nf and not nopub and npub == 4 and not nofl:
        A(f"v_min3_u32 v8, v{PS+1}, v{PS+3}, v{G+1}")
        A(f"v_max3_u32 v10, v{PS+1}, v{PS+3}, v{G+1}")
        for q in range(3, 15, 4):
            A(f"v_min3_u32 v8, v8, v{G+q}, v{G+q+2}")
            A(f"v_max3_u32 v10, v10, v{G+q}, v{G+q+2}")
        A(f"v_min_u32 v8, v8, v{G+15}")
        A(f"v_max_u32 v10, v10, v{G+15}")
    else:
        A(f"v_min_u32 v8, v{PS+1}, v{PS+3}")
        A(f"v_max_u32 v10, v{PS+1}, v{PS+3}")
    A("v_cmp_ne_u32 vcc, s72, v8")
    A("v_cmp_ne_u32_e64 s[74:75], s72, v10")
    nop(2)
    A("s_or_b64 s[74:75], vcc, s[74:75]")
    A("s_cbranch_scc0 L_pollg_done")
    A("s_sub_u32 s36, s36, 1")
    A("s_cmp_lg_u32 s36, 0")
    A("s_cbranch_scc1 L_pollg")
    A("L_pollg_done:")
    stamp(9)
    A(f"v_max_f32 v{T}, v{T+8}, v{PS}")
    A(f"v_sub_f32 v{T+1}, v{T+8}, v{T}")
    A(f"v_sub_f32 v{T+2}, v{PS}, v{T}")
    A(f"v_mul_f32 v{T+1}, s73, v{T+1}")
    A(f"v_mul_f32 v{T+2}, s73, v{T+2}")
    A(f"v_exp_f32 v{T+1}, v{T+1}")
    A(f"v_exp_f32 v{T+2}, v{T+2}")
    nop(1)
    A(f"v_mul_f32 v{T+3}, v{T+1}, v{T+10}")
    A(f"v_fma_f32 v{T+3}, v{T+2}, v{PS+2}, v{T+3}")
    A(f"v_rcp_f32 v{T+2}, v{T+3}")
    nop(1)
    A(f"v_fma_f32 v{T}, -v{T+3}, v{T+2}, 1.0")
    A(f"v_fma_f32 v{T+2}, v{T}, v{T+2}, v{T+2}")
    A(f"v_mul_f32 v{T+1}, v{T+1}, v{T+2}")
    for w in range(4):
        A(f"v_mul_f32 v{EW+w}, v{EW+w}, v{T+1}")
    A(f"v_mov_b32 v8, {L_F}")
    A(f"ds_write_b128 v8, v[{EW}:{EW+3}]")
    if not noffn:
        for a in range(4):
            A(f"v_add_f32 v{G+4*a}, v{G+4*a}, v{G+4*a+2}")
        for a in range(2):
            A(f"v_add_f32 v{G+8*a}, v{G+8*a}, v{G+8*a+4}")
        A(f"v_add_f32 v{G}, v{G}, v{G+8}")
        A(f"v_cvt_pk_bf16_f32 v{G}, v{G}, v{G}")
        A(f"v_lshlrev_b32 v{G}, 16, v{G}")
        A("v_cmp_ne_u32 vcc, 54, v0")
        nop(1)
        A(f"v_mov_b32_dpp v{G+1}, v{G} row_ror:8 row_mask:0xf bank_mask:0xf")
        A(f"v_max_f32 v{G}, 0, v{G}")
        A(f"v_mul_f32 v{G}, v{G}, v{G+1}")
        A(f"v_cvt_pk_bf16_f32 v{G}, v{G}, v{G}")
        A(f"v_cndmask_b32 v{G}, 0, v{G}, vcc")
        nop(2)
        mkA(0, G, 0)
        for kap in range(7):
            if kap + 1 < 7:
                mkA((kap + 1) & 1, G, kap + 1)
            else:
                nop(2)
            a = AR + 4 * (kap & 1)
            for t in range(5):
                b = BUF + 4 * (kap * 5 + t)
                A(f"v_mfma_f32_16x16x32_bf16 v[{Y+4*t}:{Y+4*t+3}], v[{a}:{a+3}], v[{b}:{b+3}], v[{Y+4*t}:{Y+4*t+3}]")
    stamp(11)
    A("s_waitcnt lgkmcnt(0)")
    wo_loads()
    A("L_vdone:")
    A("v_and_b32 v9, 7, v2")
    A("v_lshl_add_u32 v9, v9, 2, v3")
    A("s_lshl_b32 s35, s34, 5")
    A("v_add_u32 v9, s35, v9")
    A("v_lshlrev_b32 v9, 2, v9")
    A("v_lshlrev_b32 v8, 5, v2")
    A("v_lshl_add_u32 v8, v3, 4, v8")
    A("s_mul_i32 s35, s34, 2560")
    A("v_add_u32 v8, s35, v8")
    A("s_lshl_b32 s35, s34, 6")
    A("v_add_u32 v10, s35, v0")
    A("s_lshl_b32 s35, s34, 4")
    A("s_add_u32 s35, s35, 256")
    A("v_add_u32 v11, s35, v2")
    A(f"v_lshlrev_b32 v{T+12}, 3, v10")
    A(f"v_lshlrev_b32 v{T+13}, 3, v11")
    for (src, dst) in ((10, T + 14), (11, T + 15)):
        A(f"v_lshrrev_b32 v{dst}, 3, v{src}")
        A(f"v_lshlrev_b32 v{dst}, 13, v{dst}")
        A(f"v_and_b32 v{src}, 7, v{src}")
        A(f"v_lshl_add_u32 v{dst}, v{src}, 4, v{dst}")
    A("v_cmp_gt_u32 vcc, 16, v0")
    A(f"v_mov_b32 v10, 0x7ffffff0")
    nop(1)
    A(f"v_cndmask_b32 v{T+15}, v10, v{T+15}, vcc")
    A(f"s_mul_i32 s76, s28, {40*8192}")
    A(f"s_add_u32 s76, s76, {WS_Y}")
    A("s_lshl_b32 s77, s31, 7")
    A("s_add_u32 s77, s77, s76")
    A("s_waitcnt vmcnt(0)")
    stamp(4)
    A("s_barrier")
    stamp(5)
    A(f"v_mov_b32 v10, {L_F}")
    A(f"ds_read_b128 v[{G}:{G+3}], v10")
    for w in range(4):
        A(f"ds_read_b32 v{T+w}, v9 offset:{L_OP+w*512}")
    A("s_waitcnt lgkmcnt(0)")
    A(f"v_mul_f32 v{T}, v{T}, v{G}")
    for w in range(1, 4):
        A(f"v_fma_f32 v{T}, v{T+w}, v{G+w}, v{T}")
    A(f"v_cvt_pk_bf16_f32 v{T}, v{T}, v{T}")
    nop(2)
    mkA(0, T, 0)
    for kap in range(8):
        if kap + 1 < 8:
            mkA((kap + 1) & 1, T, kap + 1)
        else:
            nop(2)
        a = AR + 4 * (kap & 1)
        for t in range(5):
            b = BUF + 4 * (kap * 5 + t)
            A(f"v_mfma_f32_16x16x32_bf16 v[{Y+4*t}:{Y+4*t+3}], v[{a}:{a+3}], v[{b}:{b+3}], v[{Y+4*t}:{Y+4*t+3}]")
    A("s_mov_b32 exec_hi, 0")
    nop(5)
    for t in range(5):
        A(f"ds_write_b128 v8, v[{Y+4*t}:{Y+4*t+3}] offset:{L_YP+t*512}")
    A("s_mov_b64 exec, -1")
    A("s_waitcnt lgkmcnt(0)")
    A("s_barrier")
    for vv in range(4):
        A(f"ds_read_b64 v[{G+2*vv}:{G+2*vv+1}], v{T+12} offset:{L_YP+vv*2560}")
        A(f"ds_read_b64 v[{G+8+2*vv}:{G+8+2*vv+1}], v{T+13} offset:{L_YP+vv*2560}")
    A(f"v_mov_b32 v{T+1}, s72")
    A(f"v_mov_b32 v{T+3}, s72")
    A(f"v_mov_b32 v{T+5}, s72")
    A(f"v_mov_b32 v{T+7}, s72")
    A("s_waitcnt lgkmcnt(0)")
    for (base, dst) in ((G, T), (G + 8, T + 4)):
        A(f"v_add_f32 v{base}, v{base}, v{base+2}")
        A(f"v_add_f32 v{base+1}, v{base+1}, v{base+3}")
        A(f"v_add_f32 v{base+4}, v{base+4}, v{base+6}")
        A(f"v_add_f32 v{base+5}, v{base+5}, v{base+7}")
        A(f"v_add_f32 v{dst}, v{base}, v{base+4}")
        A(f"v_add_f32 v{dst+2}, v{base+1}, v{base+5}")
    A(f"buffer_store_dwordx4 v[{T}:{T+3}], v{T+14}, s[64:67], s77 offen sc1")
    A(f"buffer_store_dwordx4 v[{T+4}:{T+7}], v{T+15}, s[64:67], s77 offen sc1")
    stamp(6)
    A("s_cmp_lg_u32 s34, 0")
    A("s_cbranch_scc1 L_flush")
    A("s_cmp_ge_u32 s31, 40")
    A("s_cbranch_scc1 L_flush")
    A("s_lshl_b32 s35, s31, 13")
    A("s_add_u32 s35, s35, s76")
    A("v_lshlrev_b32 v9, 4, v0")
    A("v_add_u32 v10, 0x1000, v9")
    A(f"s_mov_b32 s36, {SPIN}")
    A("L_poll2:")
    for n in range(8):
        r = BUF + 4 * n
        A(f"buffer_load_dwordx4 v[{r}:{r+3}], v{9 + (n >> 2)}, s[64:67], s35 offen offset:{(n&3)*1024} {ygpol}")
    A("s_waitcnt vmcnt(0)")
    A(f"v_min3_u32 v{T}, v{BUF+1}, v{BUF+3}, v{BUF+5}")
    A(f"v_max3_u32 v{T+1}, v{BUF+1}, v{BUF+3}, v{BUF+5}")
    for q in range(7, 31, 4):
        A(f"v_min3_u32 v{T}, v{T}, v{BUF+q}, v{BUF+q+2}")
        A(f"v_max3_u32 v{T+1}, v{T+1}, v{BUF+q}, v{BUF+q+2}")
    A(f"v_min_u32 v{T}, v{T}, v{BUF+31}")
    A(f"v_max_u32 v{T+1}, v{T+1}, v{BUF+31}")
    A(f"v_cmp_ne_u32 vcc, s72, v{T}")
    A(f"v_cmp_ne_u32_e64 s[74:75], s72, v{T+1}")
    nop(2)
    A("s_or_b64 s[74:75], vcc, s[74:75]")
    A("s_cbranch_scc0 L_poll2_done")
    A("s_sub_u32 s36, s36, 1")
    A("s_cmp_lg_u32 s36, 0")
    A("s_cbranch_scc1 L_poll2")
    A("L_poll2_done:")
    A(f"v_add_f32 v{T}, v{BUF}, v{BUF+4}")
    A(f"v_add_f32 v{T+1}, v{BUF+2}, v{BUF+6}")
    A(f"v_add_f32 v{T+2}, v{BUF+8}, v{BUF+12}")
    A(f"v_add_f32 v{T+3}, v{BUF+10}, v{BUF+14}")
    A(f"v_add_f32 v{T+4}, v{BUF+16}, v{BUF+20}")
    A(f"v_add_f32 v{T+5}, v{BUF+18}, v{BUF+22}")
    A(f"v_add_f32 v{T+6}, v{BUF+24}, v{BUF+28}")
    A(f"v_add_f32 v{T+7}, v{BUF+26}, v{BUF+30}")
    A(f"v_add_f32 v{T}, v{T}, v{T+2}")
    A(f"v_add_f32 v{T+1}, v{T+1}, v{T+3}")
    A(f"v_add_f32 v{T+4}, v{T+4}, v{T+6}")
    A(f"v_add_f32 v{T+5}, v{T+5}, v{T+7}")
    A(f"v_add_f32 v{T}, v{T}, v{T+4}")
    A(f"v_add_f32 v{T+1}, v{T+1}, v{T+5}")
    nop(2)
    A(f"v_permlane32_swap_b32 v{T}, v{T+1}")
    nop(1)
    A(f"v_add_f32 v{T}, v{T}, v{T+1}")
    A(f"v_mov_b32 v{T+1}, v{T}")
    nop(2)
    A(f"v_permlane16_swap_b32 v{T}, v{T+1}")
    nop(1)
    A(f"v_add_f32 v{T}, v{T}, v{T+1}")
    nop(2)
    A(f"v_add_f32_dpp v{T}, v{T}, v{T} row_ror:8 row_mask:0xf bank_mask:0xf")
    A(f"v_mov_b32 v{T+1}, v{T}")
    nop(2)
    A(f"v_permlane32_swap_b32 v{T}, v{T+1}")
    A(f"v_lshlrev_b32 v{T+2}, 16, v{VXR}")
    A(f"v_and_b32 v{T+3}, 0xffff0000, v{VXR}")
    A(f"v_add_f32 v{T}, v{T}, v{T+2}")
    A(f"v_add_f32 v{T+1}, v{T+1}, v{T+3}")
    A(f"v_cvt_pk_bf16_f32 v{T}, v{T}, v{T+1}")
    A("s_mul_i32 s35, s28, 1280")
    A("s_lshl_b32 s36, s31, 5")
    A("s_add_u32 s35, s35, s36")
    A("v_lshlrev_b32 v9, 2, v0")
    A("s_mov_b64 exec, 0xff")
    A(f"buffer_store_dword v{T}, v9, s[68:71], s35 offen")
    A("s_or_b32 s36, s31, s28")
    A("s_cmp_lg_u32 s36, 0")
    A("s_cbranch_scc1 L_fin")
    A("s_mov_b64 exec, 1")
    A(f"v_mov_b32 v{T+1}, s72")
    A(f"buffer_store_dword v{T+1}, off, s[64:67], 0 offset:{WS_E} sc1")
    A("L_fin:")
    stamp(7)
    A("L_flush:")
    stamp_flush()
    A("L_end:")
    A("s_endpgm")

    body = "\n".join(("    " + l) if not l.endswith(":") else l for l in L) + "\n"
    return (HEADER % (LDS_SIZE, NAME, NAME, NAME)) + body + (FOOTER % NAME)


if __name__ == "__main__":
    kw = {}
    out = f"cdna_kernels/{NAME}.s"
    for a in sys.argv[1:]:
        if a.startswith("out="):
            out = a[4:]
            continue
        k, v = a.split("=")
        try:
            v = int(v)
        except ValueError:
            pass
        kw[k] = v
    open(out, "w").write(gen(**kw))
    print("wrote", out)
```

```python
import sys

NAME = "parallel_sum__gqa_block_cached__glu_gated_reglu__decode"

HEADER = """; Fused LN -> {GQA decode attention, ReGLU FFN} -> residual sum.  Generated by gen_kernel.py (hand-designed schedule).
; @launch grid=(256,1,1) block=(512,1,1) lds=%d
.amdgcn_target "amdgcn-amd-amdhsa--gfx950"
.text
.globl %s_kernel
.p2align 8
.type %s_kernel,@function
%s_kernel:
"""

FOOTER = """.section .rodata,"a"
.p2align 6
.amdhsa_kernel %s_kernel
  .amdhsa_next_free_vgpr 256
  .amdhsa_next_free_sgpr 102
  .amdhsa_accum_offset 256
  .amdhsa_group_segment_fixed_size 0
  .amdhsa_kernarg_size 96
  .amdhsa_user_sgpr_count 2
  .amdhsa_user_sgpr_kernarg_segment_ptr 1
  .amdhsa_system_sgpr_workgroup_id_x 1
.end_amdhsa_kernel
"""

L_Q = 0
L_TAG = 256
L_F = 384
L_ST = 2048
L_OP = 2560
L_YP = 4608
LDS_SIZE = 4608 + 4 * 2560

WS_E = 0
WS_ST = 4096
WS_Y = 65536
WS_QP = 0x160000
WS_GP = 0x260000
WS_DBG = 0x480000
WS_SIZE = 0x500000

TAG_A = 1664525
TAG_C = 1013904223
LOG2E = 0x3FB8AA3B
SCALE = 0x3DB504F3
SPIN = 20000


def gen(rot=0, LAL=6, GS=2, PRE=32, PREV=16, prio=0, NPRE=0, stamps=False, kpol="nt", wpol="nt", apol="nt", dpol="nt", LAL2=0, NT1=6, WOAT=0, WOP=12, WDAT=1, FP=8, B0=1, ACK=1, noffn=0, nowo=0, nowq=0, nofl=0, ppol="sc1 nt", gpol="sc1 nt", qgpol="sc1 nt", qppol="sc1 nt", ygpol="sc1", yppol="sc1", npub=4, nopub=0, nowd=0, nog=0, perm=0, pxor=0, newmap=0, hmap=0, BLK=4096, STG=0, sidx=0, ssh=0, smask=0, ATS=0, atpol="sc0 sc1", ATW=4):
    L = []
    A = L.append

    def nop(n):
        assert 1 <= n <= 16
        A(f"s_nop {n-1}")

    def stamp(idx):
        if not stamps:
            return
        A("s_memrealtime s[90:91]")
        A("s_waitcnt lgkmcnt(0)")
        A(f"v_writelane_b32 v62, s90, {idx}")

    def stamp_flush():
        if not stamps:
            return
        A("s_mov_b64 exec, 0xffff")
        A("v_lshlrev_b32 v61, 2, v63")
        A("buffer_store_dword v62, v61, s[84:87], s88 offen")

    A("s_cmp_ge_u32 s2, 256")
    A("s_cbranch_scc1 L_end")
    A("s_load_dwordx16 s[4:19], s[0:1], 0")
    A("s_load_dwordx8 s[20:27], s[0:1], 64")
    A("v_lshrrev_b32 v1, 6, v0")
    A("v_and_b32 v0, 63, v0")
    A("v_readfirstlane_b32 s3, v1")
    if perm:
        A("s_mov_b32 s30, 0")
        for j, ch in enumerate(str(perm)[1:]):
            A(f"s_bfe_u32 s35, s2, {hex((1 << 16) | int(ch))}")
            A(f"s_lshl_b32 s35, s35, {j}")
            A("s_or_b32 s30, s30, s35")
        if pxor:
            d_, s_ = int(str(pxor)[1]), int(str(pxor)[2])
            A(f"s_bfe_u32 s35, s30, {hex((1 << 16) | s_)}")
            A(f"s_lshl_b32 s35, s35, {d_}")
            A("s_xor_b32 s30, s30, s35")
        A("s_and_b32 s38, s30, 1")
        A("s_bfe_u32 s29, s30, 0x50001")
        A("s_lshr_b32 s28, s30, 6")
        A("s_lshl_b32 s33, s28, 1")
        A("s_add_u32 s33, s33, s38")
        A("s_and_b32 s31, s30, 63")
    elif newmap:
        A("s_and_b32 s32, s2, 7")
        A("s_lshr_b32 s35, s2, 3")
        A("s_bfe_u32 s38, s32, 0x10001")
        A("s_mul_i32 s36, s38, 3")
        A("s_xor_b32 s36, s36, s32")
        A("s_and_b32 s37, s36, 1")
        A("s_lshr_b32 s36, s36, 1")
        A("s_or_b32 s36, s36, s37")
        A("s_and_b32 s28, s35, 3")
        A("s_lshr_b32 s35, s35, 2")
        A("s_lshl_b32 s36, s36, 3")
        A("s_add_u32 s29, s36, s35")
        A("s_lshl_b32 s39, s28, 5")
        A("s_add_u32 s39, s39, s29")
        A("s_lshl_b32 s39, s39, 1")
        A("s_add_u32 s30, s39, s38")
        A("s_lshl_b32 s33, s28, 1")
        A("s_add_u32 s33, s33, s38")
        A("s_lshl_b32 s31, s29, 1")
        A("s_add_u32 s31, s31, s38")
    else:
        if rot:
            A(f"s_add_u32 s32, s2, {rot}")
            A("s_and_b32 s32, s32, 7")
        else:
            A("s_and_b32 s32, s2, 7")
        A("s_lshr_b32 s35, s2, 3")
        A("s_lshr_b32 s36, s35, 3")
        A("s_and_b32 s37, s35, 7")
        A("s_lshr_b32 s28, s37, 1")
        A("s_and_b32 s38, s37, 1")
        if hmap == 0:
            A("s_lshl_b32 s39, s36, 3")
            A("s_add_u32 s29, s32, s39")
        elif hmap == 1:
            A("s_lshl_b32 s39, s32, 2")
            A("s_add_u32 s29, s36, s39")
        elif hmap == 2:
            A("s_lshl_b32 s39, s32, 1")
            A("s_and_b32 s29, s36, 1")
            A("s_add_u32 s29, s29, s39")
            A("s_lshr_b32 s39, s36, 1")
            A("s_lshl_b32 s39, s39, 4")
            A("s_add_u32 s29, s29, s39")
        elif hmap == 3:
            A("s_lshl_b32 s39, s36, 3")
            A("s_lshl_b32 s29, s36, 1")
            A("s_xor_b32 s29, s29, s32")
            A("s_add_u32 s29, s29, s39")
        A("s_lshl_b32 s39, s28, 5")
        A("s_add_u32 s39, s39, s29")
        A("s_lshl_b32 s39, s39, 1")
        A("s_add_u32 s30, s39, s38")
        A("s_lshl_b32 s33, s36, 1")
        A("s_add_u32 s33, s33, s38")
        A("s_lshl_b32 s31, s33, 3")
        A("s_add_u32 s31, s31, s32")
    A("v_and_b32 v2, 15, v0")
    A("v_lshrrev_b32 v3, 4, v0")
    A("v_and_b32 v8, 1, v2")
    A("v_lshlrev_b32 v8, 4, v8")
    A("v_mov_b32 v9, 0xffff")
    A("v_lshlrev_b32 v9, v8, v9")
    A("v_lshrrev_b32 v10, 1, v2")
    for r in range(4):
        A(f"v_cmp_eq_u32 vcc, {r}, v10")
        nop(2)
        A(f"v_cndmask_b32 v{4+r}, 0, v9, vcc")
    A("s_waitcnt lgkmcnt(0)")
    if stamps:
        A("s_mov_b32 s84, s26")
        A("s_and_b32 s85, s27, 0xffff")
        A(f"s_mov_b32 s86, {WS_SIZE}")
        A("s_mov_b32 s87, 0x20000")
        A("s_lshl_b32 s88, s2, 3")
        A("s_add_u32 s88, s88, s3")
        A("s_lshl_b32 s88, s88, 6")
        A(f"s_add_u32 s88, s88, {WS_DBG}")
        A("v_mov_b32 v62, 0")
        A("v_mov_b32 v63, v0")
    stamp(0)
    A("s_cmp_ge_u32 s3, 4")
    A("s_cbranch_scc1 L_service")

    RING = 128
    Q = 12
    S = 16
    SC = 32
    AR = 64
    D = 80
    T = 84
    A("s_lshl_b32 s35, s30, 20")
    A("s_lshr_b32 s36, s30, 12")
    A("s_add_u32 s40, s6, s35")
    A("s_addc_u32 s41, s7, s36")
    A("s_and_b32 s41, s41, 0xffff")
    A("s_mov_b32 s42, 0x100000")
    A("s_mov_b32 s43, 0x20000")
    A("s_add_u32 s44, s8, s35")
    A("s_addc_u32 s45, s9, s36")
    A("s_and_b32 s45, s45, 0xffff")
    A(f"s_mul_i32 s35, s3, {BLK}")
    A("v_lshlrev_b32 v11, 4, v0")
    A("v_add_u32 v11, s35, v11")
    if STG:
        if sidx:
            A("s_lshr_b32 s55, s30, 4")
            A("s_and_b32 s35, s30, 1")
            if sidx == 1:
                A("s_lshl_b32 s55, s55, 1")
            else:
                A("s_lshl_b32 s35, s35, 4")
            A("s_add_u32 s55, s55, s35")
            A(f"s_mul_i32 s55, s55, {STG * 4 * BLK}")
        elif smask:
            A(f"s_lshr_b32 s55, s30, {ssh}")
            A(f"s_and_b32 s55, s55, {smask}")
            A(f"s_mul_i32 s55, s55, {STG * 4 * BLK}")
        else:
            A(f"s_mul_i32 s55, s30, {STG * 4 * BLK}")
        A("s_and_b32 s55, s55, 0xfffff")
        A("s_mov_b32 s46, s55")
    else:
        A("s_mov_b32 s46, 0")

    assert PREV % GS == 0 and LAL <= PREV <= 32 and LAL % GS == 0 and PRE % GS == 0 and LAL <= PRE <= 32 and LAL + GS <= 32 and 16 % GS == 0

    def issue_load(m):
        r = RING + (m % 32) * 4
        per = min(BLK // 1024, 4)
        A(f"buffer_load_dwordx4 v[{r}:{r+3}], v11, s[40:43], s46 offen offset:{(m % per)*1024} {kpol}")
        if m % per == per - 1:
            if BLK <= 4096:
                inc = 4 * BLK
            elif BLK == 262144:
                inc = 4096
            else:
                nb = BLK // 1024
                assert nb <= 32
                inc = 4096 if (m % nb) != nb - 1 else 4 * BLK - (BLK - 4096)
            A(f"s_add_u32 s46, s46, {inc}")
            if STG:
                A("s_and_b32 s46, s46, 0xfffff")

    for m in range(LAL):
        if B0 and m == NPRE:
            A("s_barrier")
        issue_load(m)
    if B0 and NPRE >= LAL:
        A("s_barrier")
    for m0 in range(LAL, PRE, GS):
        A(f"s_waitcnt vmcnt({LAL - GS})")
        for m in range(m0, m0 + GS):
            issue_load(m)
    A("s_mov_b32 s48, 0xaaaaaaaa")
    A("s_mov_b32 s49, 0xaaaaaaaa")
    A("s_mov_b32 s50, 0xcccccccc")
    A("s_mov_b32 s51, 0xcccccccc")
    A(f"s_mov_b32 s52, {hex(SCALE)}")
    A(f"s_mov_b32 s53, {hex(LOG2E)}")
    A("v_lshlrev_b32 v10, 5, v2")
    for r in range(4):
        A(f"v_mov_b32 v{D+r}, 0")
    stamp(1)
    A("s_barrier")
    stamp(2)
    A("v_lshlrev_b32 v9, 4, v2")
    A(f"ds_read_b128 v[{Q}:{Q+3}], v9 offset:{L_Q}")
    A("s_waitcnt lgkmcnt(0)")
    A("s_mov_b32 s47, 0")
    nop(2)

    A("s_mov_b64 vcc, -1")
    A("L_ktrip:")
    for half in range(2):
        for n in range(16 * half, 16 * half + 16, GS):
            if n == 32 - LAL:
                A("s_cmp_lg_u32 s47, 7")
                A("s_cbranch_scc1 L_knosw")
                A("s_mov_b32 s40, s44")
                A("s_mov_b32 s41, s45")
                A("s_mov_b32 s46, s55" if STG else "s_mov_b32 s46, 0")
                A("L_knosw:")
            A(f"s_waitcnt vmcnt({LAL - GS})")
            skip = n + LAL < PRE
            if skip:
                A(f"s_cbranch_vccnz L_kskip{n}")
            for m in range(n + LAL, n + LAL + GS):
                issue_load(m)
            if skip:
                A(f"L_kskip{n}:")
            for r in range(4):
                for i in range(GS):
                    src = RING + (n + i) * 4 + r
                    d = S + (n + i) % 16
                    c = "0" if r == 0 else f"v{d}"
                    A(f"v_dot2_f32_bf16 v{d}, v{src}, v{Q+r}, {c}")
        nop(3)
        for j in range(8):
            A(f"v_add_f32_dpp v{S+j}, v{S+j}, v{S+j} row_ror:8 row_mask:0xf bank_mask:0x3")
        for j in range(8):
            A(f"v_add_f32_dpp v{S+j}, v{S+j+8}, v{S+j+8} row_ror:8 row_mask:0xf bank_mask:0xc")
        for j in range(4):
            A(f"v_add_f32_dpp v{S+j}, v{S+j}, v{S+j} row_half_mirror row_mask:0xf bank_mask:0x5")
        for j in range(4):
            A(f"v_add_f32_dpp v{S+j}, v{S+j+4}, v{S+j+4} row_half_mirror row_mask:0xf bank_mask:0xa")
        A(f"v_cndmask_b32_e64 v{T+0}, v{S+2}, v{S+0}, s[50:51]")
        A(f"v_cndmask_b32_e64 v{T+2}, v{S+0}, v{S+2}, s[50:51]")
        A(f"v_cndmask_b32_e64 v{T+1}, v{S+3}, v{S+1}, s[50:51]")
        A(f"v_cndmask_b32_e64 v{T+3}, v{S+1}, v{S+3}, s[50:51]")
        nop(1)
        A(f"v_add_f32_dpp v{T+2}, v{T+0}, v{T+2} quad_perm:[2,3,0,1] row_mask:0xf bank_mask:0xf")
        A(f"v_add_f32_dpp v{T+3}, v{T+1}, v{T+3} quad_perm:[2,3,0,1] row_mask:0xf bank_mask:0xf")
        A(f"v_cndmask_b32_e64 v{T+0}, v{T+3}, v{T+2}, s[48:49]")
        A(f"v_cndmask_b32_e64 v{T+1}, v{T+2}, v{T+3}, s[48:49]")
        nop(2)
        A(f"v_add_f32_dpp v{T+1}, v{T+0}, v{T+1} quad_perm:[1,0,3,2] row_mask:0xf bank_mask:0xf")
        A(f"v_cvt_pk_bf16_f32 v{T+1}, v{T+1}, v{T+1}")
        A(f"v_lshlrev_b32 v{T+1}, 16, v{T+1}")
        A(f"v_mul_f32 v{T+1}, s52, v{T+1}")
        A(f"v_cvt_pk_bf16_f32 v{T+1}, v{T+1}, v{T+1}")
        if half == 0:
            A(f"v_lshlrev_b32 v{T+4}, 16, v{T+1}")
        else:
            for kk in range(14):
                A(f"v_mov_b32 v{SC+kk}, v{SC+kk+2}")
            A(f"v_mov_b32 v{SC+14}, v{T+4}")
            A(f"v_lshlrev_b32 v{SC+15}, 16, v{T+1}")
    if stamps:
        for tt, idx in ((0, 7), (1, 8), (2, 9)):
            A(f"s_cmp_lg_u32 s47, {tt}")
            A(f"s_cbranch_scc1 L_nos{tt}")
            stamp(idx)
            A(f"L_nos{tt}:")
    A("s_mov_b64 vcc, 0")
    A("s_add_u32 s47, s47, 1")
    A("s_cmp_lt_u32 s47, 8")
    A("s_cbranch_scc1 L_ktrip")
    stamp(3)
    for m in range(LAL, PREV):
        issue_load(m)

    def allreduce(op, reg, tmp):
        for sh in (8, 4, 2, 1):
            nop(2)
            A(f"{op}_dpp v{reg}, v{reg}, v{reg} row_ror:{sh} row_mask:0xf bank_mask:0xf")
        A(f"v_mov_b32 v{tmp}, v{reg}")
        nop(2)
        A(f"v_permlane16_swap_b32 v{reg}, v{tmp}")
        nop(1)
        A(f"{op} v{reg}, v{reg}, v{tmp}")
        A(f"v_mov_b32 v{tmp}, v{reg}")
        nop(2)
        A(f"v_permlane32_swap_b32 v{reg}, v{tmp}")
        nop(1)
        A(f"{op} v{reg}, v{reg}, v{tmp}")

    M = T
    A(f"v_max3_f32 v{M}, v{SC}, v{SC+1}, v{SC+2}")
    for kk in range(3, 15, 2):
        A(f"v_max3_f32 v{M}, v{M}, v{SC+kk}, v{SC+kk+1}")
    A(f"v_max_f32 v{M}, v{M}, v{SC+15}")
    allreduce("v_max_f32", M, T + 2)
    for kk in range(16):
        A(f"v_sub_f32 v{SC+kk}, v{SC+kk}, v{M}")
    for kk in range(16):
        A(f"v_mul_f32 v{SC+kk}, s53, v{SC+kk}")
    for kk in range(16):
        A(f"v_exp_f32 v{SC+kk}, v{SC+kk}")
    nop(1)
    LS = T + 1
    A(f"v_add_f32 v{LS}, v{SC}, v{SC+1}")
    for kk in range(2, 16):
        A(f"v_add_f32 v{LS}, v{LS}, v{SC+kk}")
    for kk in range(16):
        A(f"v_cvt_pk_bf16_f32 v{SC+kk}, v{SC+kk}, v{SC+kk}")
    allreduce("v_add_f32", LS, T + 2)
    A("s_lshl_b32 s35, s3, 3")
    A(f"v_mov_b32 v{T+3}, s35")
    A(f"ds_write_b64 v{T+3}, v[{M}:{M+1}] offset:{L_ST}")
    A("s_waitcnt lgkmcnt(0)")
    A("s_barrier")
    stamp(4)

    A("s_mov_b32 s47, 0")
    A("s_mov_b64 vcc, -1")
    if ATS:
        A("s_mov_b32 s56, s26")
        A("s_and_b32 s57, s27, 0xffff")
        A(f"s_mov_b32 s58, {WS_SIZE}")
        A("s_mov_b32 s59, 0x20000")
        A("s_lshr_b32 s54, s30, 1")
        A("s_lshl_b32 s54, s54, 2")
        A("s_add_u32 s54, s54, s3")
        A("s_lshl_b32 s54, s54, 7")
        A("s_add_u32 s54, s54, 0x400000")
        A("v_mov_b32 v48, 0x12345")
    def vloop(label, lal, end, first):
        A(f"{label}:")
        for n in range(0, 32, GS):
            for i in range(GS):
                pr = SC + ((n + i) >> 4)
                j = (n + i) & 15
                for r in range(4):
                    A(f"v_and_b32_dpp v{AR+4*i+r}, v{pr}, v{4+r} row_newbcast:{j} row_mask:0xf bank_mask:0xf")
            if n + GS == 32:
                for kk in range(14):
                    A(f"v_mov_b32 v{SC+kk}, v{SC+kk+2}")
            A(f"s_waitcnt vmcnt({lal - GS})")
            skip = first and n + lal < PREV
            if skip:
                A(f"s_cbranch_vccnz {label}_skip{n}")
            for m in range(n + lal, n + lal + GS):
                issue_load(m)
            if skip:
                A(f"{label}_skip{n}:")
                nop(1)
            if ATS and n % 8 == 2:
                A(f"s_cmp_lt_u32 s47, {8 - ATS}")
                A(f"s_cbranch_scc1 {label}_noat{n}")
                A(f"s_cmp_ge_u32 s3, {ATW}")
                A(f"s_cbranch_scc1 {label}_noat{n}")
                A("s_mov_b64 exec, 1")
                A(f"buffer_atomic_swap v48, off, s[56:59], s54 {atpol}")
                A("s_mov_b64 exec, -1")
                A("s_add_u32 s54, s54, 4")
                A(f"{label}_noat{n}:")
            for i in range(GS):
                src = RING + (n + i) * 4
                A(f"v_mfma_f32_16x16x32_bf16 v[{D}:{D+3}], v[{AR+4*i}:{AR+4*i+3}], v[{src}:{src+3}], v[{D}:{D+3}]")
        if first:
            A("s_mov_b64 vcc, 0")
        A("s_add_u32 s47, s47, 1")
        A(f"s_cmp_lt_u32 s47, {end}")
        A(f"s_cbranch_scc1 {label}")
    if LAL2:
        assert LAL2 % GS == 0 and LAL2 + GS <= 32 and LAL2 >= LAL
        vloop("L_vtrip", LAL, NT1, True)
        for m in range(LAL, LAL2):
            issue_load(m)
        vloop("L_vtripb", LAL2, 8, False)
    else:
        vloop("L_vtrip", LAL, 8, True)
    stamp(5)
    A("s_lshl_b32 s35, s3, 9")
    A("v_lshlrev_b32 v8, 4, v3")
    A("v_add3_u32 v8, v8, v10, s35")
    A("s_mov_b32 exec_hi, 0")
    nop(4)
    A(f"ds_write_b128 v8, v[{D}:{D+3}] offset:{L_OP}")
    A("s_waitcnt lgkmcnt(0)")
    A("s_barrier")
    stamp(6)
    stamp_flush()
    A("s_endpgm")

    A("L_service:")
    if prio:
        A(f"s_setprio {prio}")
    VW = 1
    M2 = 12
    PC = 14
    VE = 19
    DQ = 20
    A2 = 28
    Y = 32
    AR = 52
    VXR = 60
    G = 64
    T = 80
    BUF = 96
    XU = 176
    XS = 216
    A("s_sub_u32 s34, s3, 4")
    def srd(base, ptr, size):
        A(f"s_mov_b32 s{base}, s{ptr}")
        A(f"s_and_b32 s{base+1}, s{ptr+1}, 0xffff")
        A(f"s_mov_b32 s{base+2}, {size}")
        A(f"s_mov_b32 s{base+3}, 0x20000")
    srd(64, 26, WS_SIZE)
    srd(40, 4, 4 * 1280)
    A("s_cmp_eq_u32 s34, 0")
    A("s_cbranch_scc0 L_idle")
    A(f"buffer_load_dword v{VE}, off, s[64:67], 0 offset:{WS_E} sc1")
    A("v_lshrrev_b32 v8, 2, v2")
    A("v_mul_u32_u24 v8, 1280, v8")
    A("v_and_b32 v10, 3, v2")
    A("v_lshl_add_u32 v11, v10, 2, v3")
    A("v_lshl_add_u32 v9, v11, 1, v8")
    A("v_lshl_add_u32 v11, v3, 2, v10")
    A("v_lshl_add_u32 v8, v11, 4, v8")
    if newmap or perm:
        A("s_mov_b32 s80, s33")
    else:
        A("s_lshr_b32 s80, s2, 3")
        A("s_and_b32 s80, s80, 7")
    A("s_mul_i32 s36, s80, 160")
    for i in range(5):
        A(f"buffer_load_dwordx4 v[{XS+4*i}:{XS+4*i+3}], v8, s[40:43], 0 offen offset:{i*256}")
    for q in range(5):
        A(f"buffer_load_ushort v{PC+q}, v9, s[40:43], s36 offen offset:{q*32}")
    srd(44, 10, 640 * 8192)
    A("v_lshlrev_b32 v10, 13, v3")
    A("v_lshl_add_u32 v10, v2, 4, v10")
    A(f"s_mul_i32 s35, s80, {80*8192}")
    A("s_lshl_b32 s36, s29, 8")
    A("s_add_u32 s35, s35, s36")
    for n in range(20):
        r = BUF + 4 * n
        if not nowq:
            A(f"buffer_load_dwordx4 v[{r}:{r+3}], v10, s[44:47], s35 offen {apol}")
        if n != 19:
            A(f"s_add_u32 s35, s35, {4*8192}")
    if B0:
        A("s_barrier")
    stamp(12)
    A("s_lshl_b32 s81, s29, 15")
    A("s_lshl_b32 s36, s80, 12")
    A("s_add_u32 s81, s81, s36")
    A(f"s_add_u32 s81, s81, {WS_QP}")
    def masks2():
        A("v_and_b32 v8, 1, v2")
        A("v_lshlrev_b32 v8, 4, v8")
        A("v_mov_b32 v9, 0xffff")
        A("v_lshlrev_b32 v9, v8, v9")
        A("v_and_b32 v10, 2, v2")
        A("v_cmp_eq_u32 vcc, 0, v10")
        for r in range(8):
            A(f"v_mov_b32 v{DQ+r}, 0")
        A(f"v_cndmask_b32 v{M2}, 0, v9, vcc")
        A("v_cmp_ne_u32 vcc, 0, v10")
        nop(2)
        A(f"v_cndmask_b32 v{M2+1}, 0, v9, vcc")
    masks2()
    A("s_waitcnt vmcnt(%d)" % (0 if nowq else 20))
    stamp(1)
    for r in range(20):
        A(f"v_lshlrev_b32 v{XU+2*r}, 16, v{XS+r}")
        A(f"v_and_b32 v{XU+2*r+1}, 0xffff0000, v{XS+r}")
    A(f"v_readfirstlane_b32 s72, v{VE}")
    for a in range(4):
        A(f"v_pk_add_f32 v[{G+2*a}:{G+2*a+1}], v[{XU+2*a}:{XU+2*a+1}], v[{XU+8+2*a}:{XU+8+2*a+1}]")
    for r in range(8, 20):
        a = r & 3
        A(f"v_pk_add_f32 v[{G+2*a}:{G+2*a+1}], v[{G+2*a}:{G+2*a+1}], v[{XU+2*r}:{XU+2*r+1}]")
    A(f"v_pk_add_f32 v[{G}:{G+1}], v[{G}:{G+1}], v[{G+2}:{G+3}]")
    A(f"v_pk_add_f32 v[{G+4}:{G+5}], v[{G+4}:{G+5}], v[{G+6}:{G+7}]")
    A(f"s_mul_i32 s72, s72, {TAG_A}")
    A(f"v_pk_add_f32 v[{G}:{G+1}], v[{G}:{G+1}], v[{G+4}:{G+5}]")
    A(f"s_add_u32 s72, s72, {TAG_C}")
    A(f"v_add_f32 v{T}, v{G}, v{G+1}")

    def breduce(reg, tmp):
        nop(2)
        A(f"v_add_f32_dpp v{reg}, v{reg}, v{reg} quad_perm:[1,0,3,2] row_mask:0xf bank_mask:0xf")
        nop(2)
        A(f"v_add_f32_dpp v{reg}, v{reg}, v{reg} quad_perm:[2,3,0,1] row_mask:0xf bank_mask:0xf")
        A(f"v_mov_b32 v{tmp}, v{reg}")
        nop(2)
        A(f"v_permlane16_swap_b32 v{reg}, v{tmp}")
        nop(1)
        A(f"v_add_f32 v{reg}, v{reg}, v{tmp}")
        A(f"v_mov_b32 v{tmp}, v{reg}")
        nop(2)
        A(f"v_permlane32_swap_b32 v{reg}, v{tmp}")
        nop(1)
        A(f"v_add_f32 v{reg}, v{reg}, v{tmp}")

    breduce(T, T + 1)
    A(f"v_mul_f32 v{T}, 0x3acccccd, v{T}")
    A(f"v_mov_b32 v{T+1}, v{T}")
    for r in range(20):
        A(f"v_pk_add_f32 v[{XU+2*r}:{XU+2*r+1}], v[{XU+2*r}:{XU+2*r+1}], v[{T}:{T+1}] neg_lo:[0,1] neg_hi:[0,1]")
    for a in range(4):
        A(f"v_pk_mul_f32 v[{G+2*a}:{G+2*a+1}], v[{XU+2*a}:{XU+2*a+1}], v[{XU+2*a}:{XU+2*a+1}]")
    for r in range(4, 20):
        a = r & 3
        A(f"v_pk_fma_f32 v[{G+2*a}:{G+2*a+1}], v[{XU+2*r}:{XU+2*r+1}], v[{XU+2*r}:{XU+2*r+1}], v[{G+2*a}:{G+2*a+1}]")
    A(f"v_pk_add_f32 v[{G}:{G+1}], v[{G}:{G+1}], v[{G+2}:{G+3}]")
    A(f"v_pk_add_f32 v[{G+4}:{G+5}], v[{G+4}:{G+5}], v[{G+6}:{G+7}]")
    A(f"v_pk_add_f32 v[{G}:{G+1}], v[{G}:{G+1}], v[{G+4}:{G+5}]")
    A(f"v_add_f32 v{T+1}, v{G}, v{G+1}")
    breduce(T + 1, T + 2)
    A(f"v_mul_f32 v{T+1}, 0x3acccccd, v{T+1}")
    A(f"v_cvt_pk_bf16_f32 v{T}, v{T}, v{T}")
    A(f"v_cvt_pk_bf16_f32 v{T+1}, v{T+1}, v{T+1}")
    A(f"v_lshlrev_b32 v{T}, 16, v{T}")
    A(f"v_lshlrev_b32 v{T+1}, 16, v{T+1}")
    A(f"v_add_f32 v{T+1}, 0x3727c5ac, v{T+1}")
    A(f"v_cvt_pk_bf16_f32 v{T+1}, v{T+1}, v{T+1}")
    A(f"v_lshlrev_b32 v{T+1}, 16, v{T+1}")
    A(f"v_sqrt_f32 v{T+1}, v{T+1}")
    for q in range(5):
        A(f"v_lshlrev_b32 v{PC+q}, 16, v{PC+q}")
    A(f"v_cvt_pk_bf16_f32 v{T+1}, v{T+1}, v{T+1}")
    A(f"v_lshlrev_b32 v{T+1}, 16, v{T+1}")
    A(f"v_rcp_f32 v{T+2}, v{T+1}")

    def normalize(regs):
        for r in regs:
            A(f"v_sub_f32 v{r}, v{r}, v{T}")
        for r in regs:
            A(f"v_cvt_pk_bf16_f32 v{r}, v{r}, v{r}")
        for r in regs:
            A(f"v_lshlrev_b32 v{r}, 16, v{r}")
        for k, r in enumerate(regs):
            A(f"v_mul_f32 v{T+4+k}, v{r}, v{T+2}")
        for k, r in enumerate(regs):
            A(f"v_fma_f32 v{r}, -v{T+4+k}, v{T+1}, v{r}")
        for k, r in enumerate(regs):
            A(f"v_fma_f32 v{r}, v{r}, v{T+2}, v{T+4+k}")
        for r in regs:
            A(f"v_cvt_pk_bf16_f32 v{r}, v{r}, v{r}")
    normalize([PC + q for q in range(5)])
    A(f"v_mov_b32 v{T+3}, s72")
    A("v_lshrrev_b32 v8, 2, v2")
    A("v_lshlrev_b32 v8, 4, v8")
    A(f"ds_write_b128 v8, v[{T}:{T+3}] offset:{L_TAG}")
    stamp(14)

    def mkA2(setidx, n):
        q, jj = n >> 2, n & 3
        for r in range(2):
            A(f"v_and_b32_dpp v{A2+2*setidx+r}, v{PC+q}, v{M2+r} quad_perm:[{jj},{jj},{jj},{jj}] row_mask:0xf bank_mask:0xf")

    def prod_mfma(NW):
        nop(2)
        mkA2(0, 0)
        for n in range(NW):
            if n + 1 < NW:
                mkA2((n + 1) & 1, n + 1)
            else:
                nop(2)
            if (n & 1) == 0:
                A(f"s_waitcnt vmcnt({NW - 2 - n})")
            b = BUF + 4 * n
            a = A2 + 2 * (n & 1)
            A(f"v_mfma_f32_16x16x16_bf16 v[{DQ}:{DQ+3}], v[{a}:{a+1}], v[{b}:{b+1}], v[{DQ}:{DQ+3}]")
            A(f"v_mfma_f32_16x16x16_bf16 v[{DQ+4}:{DQ+7}], v[{a}:{a+1}], v[{b+2}:{b+3}], v[{DQ+4}:{DQ+7}]")

    def publish(pol="sc1", nst=4):
        A("v_lshlrev_b32 v11, 4, v0")
        for r in range(8):
            A(f"v_mov_b32 v{G+2*r+1}, s72")
        for r in range(8):
            A(f"v_mov_b32 v{G+2*r}, v{DQ+r}")
        for st_ in range(nst):
            A(f"buffer_store_dwordx4 v[{G+4*st_}:{G+4*st_+3}], v11, s[64:67], s81 offen offset:{st_*1024} {pol}")

    prod_mfma(20)
    stamp(15)
    publish(qppol)
    A("v_lshlrev_b32 v10, 10, v3")
    A("v_lshl_add_u32 v10, v2, 4, v10")
    A("s_lshl_b32 s82, s29, 15")
    A("s_lshl_b32 s36, s28, 8")
    A("s_add_u32 s82, s82, s36")
    A(f"s_add_u32 s82, s82, {WS_QP}")
    A(f"s_mov_b32 s36, {SPIN}")
    if ACK:
        A("s_waitcnt vmcnt(0)")
    stamp(10)
    A("L_pollq:")
    A("s_mov_b32 s35, s82")
    for n in range(8):
        r = BUF + 4 * n
        A(f"buffer_load_dwordx4 v[{r}:{r+3}], v10, s[64:67], s35 offen {qgpol}")
        if n != 7:
            A("s_add_u32 s35, s35, 4096")
    A("s_waitcnt vmcnt(0)")
    A(f"v_min3_u32 v{T}, v{BUF+1}, v{BUF+3}, v{BUF+5}")
    A(f"v_max3_u32 v{T+1}, v{BUF+1}, v{BUF+3}, v{BUF+5}")
    for q in range(7, 31, 4):
        A(f"v_min3_u32 v{T}, v{T}, v{BUF+q}, v{BUF+q+2}")
        A(f"v_max3_u32 v{T+1}, v{T+1}, v{BUF+q}, v{BUF+q+2}")
    A(f"v_min_u32 v{T}, v{T}, v{BUF+31}")
    A(f"v_max_u32 v{T+1}, v{T+1}, v{BUF+31}")
    A(f"v_cmp_ne_u32 vcc, s72, v{T}")
    A(f"v_cmp_ne_u32_e64 s[74:75], s72, v{T+1}")
    nop(2)
    A("s_or_b64 s[74:75], vcc, s[74:75]")
    A("s_cbranch_scc0 L_pollq_done")
    A("s_sub_u32 s36, s36, 1")
    A("s_cmp_lg_u32 s36, 0")
    A("s_cbranch_scc1 L_pollq")
    A("L_pollq_done:")
    for a in range(4):
        A(f"v_add_f32 v{T+2*a}, v{BUF+8*a}, v{BUF+8*a+4}")
        A(f"v_add_f32 v{T+2*a+1}, v{BUF+8*a+2}, v{BUF+8*a+6}")
    for a in range(2):
        A(f"v_add_f32 v{T+4*a}, v{T+4*a}, v{T+4*a+2}")
        A(f"v_add_f32 v{T+4*a+1}, v{T+4*a+1}, v{T+4*a+3}")
    A(f"v_add_f32 v{T}, v{T}, v{T+4}")
    A(f"v_add_f32 v{T+1}, v{T+1}, v{T+5}")
    A("v_lshlrev_b32 v9, 2, v3")
    A(f"v_cvt_pk_bf16_f32 v{T}, v{T}, v{T+1}")
    A("v_lshl_add_u32 v9, v2, 4, v9")
    A(f"ds_write_b32 v9, v{T} offset:{L_Q}")
    A("s_waitcnt lgkmcnt(0)")
    stamp(13)
    A("s_branch L_b1")
    A("L_idle:")
    if B0:
        A("s_barrier")
    A("L_b1:")
    A("s_barrier")
    stamp(2)
    A("v_lshrrev_b32 v8, 2, v2")
    A("v_lshlrev_b32 v9, 4, v8")
    A(f"ds_read_b128 v[{T}:{T+3}], v9 offset:{L_TAG}")
    A("s_waitcnt lgkmcnt(0)")
    A(f"v_readfirstlane_b32 s72, v{T+3}")
    A("s_cmp_lg_u32 s34, 2")
    A("s_cbranch_scc1 L_common")
    A("s_cmp_ge_u32 s2, 224")
    A("s_cbranch_scc1 L_common")
    if noffn:
        A("s_branch L_common")
    A("s_cmp_ge_u32 s2, 112")
    A("s_cselect_b32 s36, 112, 0")
    A("s_sub_u32 s36, s2, s36")
    A("s_mul_i32 s78, s36, 4682")
    A("s_lshr_b32 s78, s78, 16")
    A("s_mul_i32 s79, s78, 14")
    A("s_sub_u32 s79, s36, s79")
    A("v_mul_u32_u24 v8, 1280, v8")
    A("v_and_b32 v10, 3, v2")
    A("v_lshl_add_u32 v11, v10, 2, v3")
    A("v_lshl_add_u32 v9, v11, 1, v8")
    A("s_mul_i32 s36, s78, 160")
    for q in range(5):
        A(f"buffer_load_ushort v{PC+q}, v9, s[40:43], s36 offen offset:{q*32}")
    A("s_cmp_ge_u32 s2, 112")
    A("s_cbranch_scc1 L_ldU")
    srd(44, 16, 640 * 3456)
    A("s_branch L_ldF2")
    A("L_ldU:")
    srd(44, 18, 640 * 3456)
    A("L_ldF2:")
    A("v_mul_u32_u24 v1, 3456, v3")
    A("v_lshl_add_u32 v1, v2, 4, v1")
    A(f"s_mul_i32 s83, s78, {80*3456}")
    A("s_lshl_b32 s36, s79, 8")
    A("s_add_u32 s83, s83, s36")
    for n in range(20):
        r = BUF + 4 * n
        if FP and n >= FP:
            A(f"s_waitcnt vmcnt({FP-1})")
        if not nofl:
            A(f"buffer_load_dwordx4 v[{r}:{r+3}], v1, s[44:47], s83 offen {apol}")
        if n != 19:
            A(f"s_add_u32 s83, s83, {4*3456}")
    masks2()
    A("s_waitcnt vmcnt(%d)" % (0 if (nofl or FP) else 20))
    for q in range(5):
        A(f"v_lshlrev_b32 v{PC+q}, 16, v{PC+q}")
    normalize([PC + q for q in range(5)])
    prod_mfma(20)
    stamp(15)
    A("L_common:")
    srd(56, 20, 1728 * 1280)
    srd(60, 12, 4096 * 1280)
    srd(68, 22, 4 * 1280)
    A(f"v_mul_u32_u24 v{VW}, 1280, v3")
    A(f"v_lshl_add_u32 v{VW}, v2, 4, v{VW}")
    for r in range(20):
        A(f"v_mov_b32 v{Y+r}, 0")
    A("s_mul_i32 s35, s28, 1280")
    A("s_lshl_b32 s36, s31, 5")
    A("s_add_u32 s35, s35, s36")
    A("v_lshlrev_b32 v10, 2, v0")
    A(f"buffer_load_dword v{VXR}, v10, s[40:43], s35 offen")

    def mkA(setidx, preg, j):
        for r in range(4):
            A(f"v_and_b32_dpp v{AR+4*setidx+r}, v{preg}, v{4+r} row_newbcast:{j} row_mask:0xf bank_mask:0xf")

    def wd_loads():
        A(f"s_mul_i32 s35, s31, {27*1280}")
        for kap in range(7):
            for t in range(5):
                r = BUF + 4 * (kap * 5 + t)
                if WOP and kap * 5 + t >= WOP:
                    A(f"s_waitcnt vmcnt({WOP-1})")
                if not nowd:
                    A(f"buffer_load_dwordx4 v[{r}:{r+3}], v{VW}, s[56:59], s35 offen offset:{t*256} {dpol}")
            if kap != 6:
                A(f"s_add_u32 s35, s35, {4*1280}")

    def wo_loads():
        A("s_lshl_b32 s35, s29, 7")
        A("s_lshl_b32 s36, s34, 5")
        A("s_add_u32 s35, s35, s36")
        A("s_mul_i32 s35, s35, 1280")
        for kap in range(8):
            for t in range(5):
                r = BUF + 4 * (kap * 5 + t)
                if not nowo:
                    if WOP and kap * 5 + t >= WOP:
                        A(f"s_waitcnt vmcnt({WOP-1})")
                    A(f"buffer_load_dwordx4 v[{r}:{r+3}], v{VW}, s[60:63], s35 offen offset:{t*256} {wpol}")
            if kap != 7:
                A(f"s_add_u32 s35, s35, {4*1280}")

    EW = 240
    PS = 236

    def wg_stats(ew):
        A("v_mov_b32 v8, 0")
        A(f"ds_read_b128 v[{T}:{T+3}], v8 offset:{L_ST}")
        A(f"ds_read_b128 v[{T+4}:{T+7}], v8 offset:{L_ST+16}")
        A(f"s_mov_b32 s73, {hex(LOG2E)}")
        A("s_waitcnt lgkmcnt(0)")
        A(f"v_max3_f32 v{T+8}, v{T}, v{T+2}, v{T+4}")
        A(f"v_max_f32 v{T+8}, v{T+8}, v{T+6}")
        for w in range(4):
            A(f"v_sub_f32 v{ew+w}, v{T+2*w}, v{T+8}")
        for w in range(4):
            A(f"v_mul_f32 v{ew+w}, s73, v{ew+w}")
        for w in range(4):
            A(f"v_exp_f32 v{ew+w}, v{ew+w}")
        nop(1)
        A(f"v_mul_f32 v{T+10}, v{ew}, v{T+1}")
        for w in range(1, 4):
            A(f"v_fma_f32 v{T+10}, v{ew+w}, v{T+2*w+1}, v{T+10}")

    A("s_cmp_eq_u32 s34, 1")
    A("s_cbranch_scc1 L_k1")
    if WOAT == 0:
        wo_loads()
    A("s_branch L_kdone")
    A("L_k1:")
    if WDAT == 0 and not noffn:
        wd_loads()
    A("L_kdone:")
    stamp(3)
    A("s_barrier")
    A("s_cmp_eq_u32 s34, 1")
    A("s_cbranch_scc1 L_v1")
    A("s_cmp_eq_u32 s34, 0")
    A("s_cbranch_scc0 L_nostat")
    wg_stats(G)
    A(f"v_mov_b32 v{T+9}, s72")
    A(f"v_mov_b32 v{T+11}, s72")
    A("s_lshl_b32 s35, s30, 7")
    A(f"s_add_u32 s35, s35, {WS_ST}")
    A("s_mov_b64 exec, 1")
    A(f"buffer_store_dwordx4 v[{T+8}:{T+11}], off, s[64:67], s35 {ppol}")
    A("s_mov_b64 exec, -1")
    A("L_nostat:")
    A("s_cmp_lg_u32 s34, 2")
    A("s_cbranch_scc1 L_nofpub")
    A("s_cmp_ge_u32 s2, 224")
    A("s_cbranch_scc1 L_nofpub")
    if not (noffn or nopub):
        A("s_cmp_ge_u32 s2, 112")
        A("s_cselect_b32 s36, 112, 0")
        A("s_sub_u32 s37, s2, s36")
        A("s_mul_i32 s78, s37, 4682")
        A("s_lshr_b32 s78, s78, 16")
        A("s_mul_i32 s79, s78, 14")
        A("s_sub_u32 s79, s37, s79")
        A("s_lshl_b32 s81, s79, 3")
        A("s_add_u32 s81, s81, s78")
        A("s_add_u32 s81, s81, s36")
        A("s_lshl_b32 s81, s81, 12")
        A(f"s_add_u32 s81, s81, {WS_GP}")
        publish(ppol, npub)
    A("L_nofpub:")
    if WOAT == 1:
        wo_loads()
    A("s_branch L_vdone")

    A("L_v1:")
    if WDAT == 1 and not noffn:
        wd_loads()
    wg_stats(EW)
    A("v_and_b32 v8, 7, v2")
    A("v_lshl_add_u32 v8, v8, 2, v3")
    A("v_min_u32 v8, 26, v8")
    A("s_mul_i32 s35, s31, 27")
    A("v_add_u32 v8, s35, v8")
    A("v_lshrrev_b32 v9, 7, v8")
    A("v_lshlrev_b32 v9, 15, v9")
    A("v_lshrrev_b32 v10, 3, v2")
    A(f"v_mul_u32_u24 v10, {112*4096}, v10")
    A("v_add_u32 v9, v9, v10")
    A("v_bfe_u32 v10, v8, 1, 2")
    A("v_lshl_add_u32 v9, v10, 10, v9")
    A("v_bfe_u32 v10, v8, 3, 4")
    A("v_lshl_add_u32 v9, v10, 4, v9")
    A("v_and_b32 v10, 1, v8")
    A("v_lshl_add_u32 v9, v10, 3, v9")
    A("s_lshl_b32 s82, s28, 8")
    A(f"s_add_u32 s82, s82, {WS_GP}")
    A("s_lshl_b32 s83, s30, 7")
    A(f"s_add_u32 s83, s83, {WS_ST}")
    A("s_xor_b32 s83, s83, 128")
    A(f"s_mov_b32 s36, {SPIN}")
    A("L_pollg:")
    A("s_mov_b32 s35, s82")
    A(f"buffer_load_dwordx4 v[{PS}:{PS+3}], off, s[64:67], s83 {gpol}")
    nf = 0 if (noffn or nog) else 8
    for n in range(nf):
        r = G + 2 * n
        A(f"buffer_load_dwordx2 v[{r}:{r+1}], v9, s[64:67], s35 offen {gpol}")
        if n != 7:
            A("s_add_u32 s35, s35, 4096")
    A("s_waitcnt vmcnt(0)")
    if nf and not nopub and npub == 4 and not nofl:
        A(f"v_min3_u32 v8, v{PS+1}, v{PS+3}, v{G+1}")
        A(f"v_max3_u32 v10, v{PS+1}, v{PS+3}, v{G+1}")
        for q in range(3, 15, 4):
            A(f"v_min3_u32 v8, v8, v{G+q}, v{G+q+2}")
            A(f"v_max3_u32 v10, v10, v{G+q}, v{G+q+2}")
        A(f"v_min_u32 v8, v8, v{G+15}")
        A(f"v_max_u32 v10, v10, v{G+15}")
    else:
        A(f"v_min_u32 v8, v{PS+1}, v{PS+3}")
        A(f"v_max_u32 v10, v{PS+1}, v{PS+3}")
    A("v_cmp_ne_u32 vcc, s72, v8")
    A("v_cmp_ne_u32_e64 s[74:75], s72, v10")
    nop(2)
    A("s_or_b64 s[74:75], vcc, s[74:75]")
    A("s_cbranch_scc0 L_pollg_done")
    A("s_sub_u32 s36, s36, 1")
    A("s_cmp_lg_u32 s36, 0")
    A("s_cbranch_scc1 L_pollg")
    A("L_pollg_done:")
    stamp(9)
    A(f"v_max_f32 v{T}, v{T+8}, v{PS}")
    A(f"v_sub_f32 v{T+1}, v{T+8}, v{T}")
    A(f"v_sub_f32 v{T+2}, v{PS}, v{T}")
    A(f"v_mul_f32 v{T+1}, s73, v{T+1}")
    A(f"v_mul_f32 v{T+2}, s73, v{T+2}")
    A(f"v_exp_f32 v{T+1}, v{T+1}")
    A(f"v_exp_f32 v{T+2}, v{T+2}")
    nop(1)
    A(f"v_mul_f32 v{T+3}, v{T+1}, v{T+10}")
    A(f"v_fma_f32 v{T+3}, v{T+2}, v{PS+2}, v{T+3}")
    A(f"v_rcp_f32 v{T+2}, v{T+3}")
    nop(1)
    A(f"v_fma_f32 v{T}, -v{T+3}, v{T+2}, 1.0")
    A(f"v_fma_f32 v{T+2}, v{T}, v{T+2}, v{T+2}")
    A(f"v_mul_f32 v{T+1}, v{T+1}, v{T+2}")
    for w in range(4):
        A(f"v_mul_f32 v{EW+w}, v{EW+w}, v{T+1}")
    A(f"v_mov_b32 v8, {L_F}")
    A(f"ds_write_b128 v8, v[{EW}:{EW+3}]")
    if not noffn:
        for a in range(4):
            A(f"v_add_f32 v{G+4*a}, v{G+4*a}, v{G+4*a+2}")
        for a in range(2):
            A(f"v_add_f32 v{G+8*a}, v{G+8*a}, v{G+8*a+4}")
        A(f"v_add_f32 v{G}, v{G}, v{G+8}")
        A(f"v_cvt_pk_bf16_f32 v{G}, v{G}, v{G}")
        A(f"v_lshlrev_b32 v{G}, 16, v{G}")
        A("v_cmp_ne_u32 vcc, 54, v0")
        nop(1)
        A(f"v_mov_b32_dpp v{G+1}, v{G} row_ror:8 row_mask:0xf bank_mask:0xf")
        A(f"v_max_f32 v{G}, 0, v{G}")
        A(f"v_mul_f32 v{G}, v{G}, v{G+1}")
        A(f"v_cvt_pk_bf16_f32 v{G}, v{G}, v{G}")
        A(f"v_cndmask_b32 v{G}, 0, v{G}, vcc")
        nop(2)
        mkA(0, G, 0)
        for kap in range(7):
            if kap + 1 < 7:
                mkA((kap + 1) & 1, G, kap + 1)
            else:
                nop(2)
            a = AR + 4 * (kap & 1)
            for t in range(5):
                b = BUF + 4 * (kap * 5 + t)
                A(f"v_mfma_f32_16x16x32_bf16 v[{Y+4*t}:{Y+4*t+3}], v[{a}:{a+3}], v[{b}:{b+3}], v[{Y+4*t}:{Y+4*t+3}]")
    stamp(11)
    A("s_waitcnt lgkmcnt(0)")
    wo_loads()
    A("L_vdone:")
    A("v_and_b32 v9, 7, v2")
    A("v_lshl_add_u32 v9, v9, 2, v3")
    A("s_lshl_b32 s35, s34, 5")
    A("v_add_u32 v9, s35, v9")
    A("v_lshlrev_b32 v9, 2, v9")
    A("v_lshlrev_b32 v8, 5, v2")
    A("v_lshl_add_u32 v8, v3, 4, v8")
    A("s_mul_i32 s35, s34, 2560")
    A("v_add_u32 v8, s35, v8")
    A("s_lshl_b32 s35, s34, 6")
    A("v_add_u32 v10, s35, v0")
    A("s_lshl_b32 s35, s34, 4")
    A("s_add_u32 s35, s35, 256")
    A("v_add_u32 v11, s35, v2")
    A(f"v_lshlrev_b32 v{T+12}, 3, v10")
    A(f"v_lshlrev_b32 v{T+13}, 3, v11")
    for (src, dst) in ((10, T + 14), (11, T + 15)):
        A(f"v_lshrrev_b32 v{dst}, 3, v{src}")
        A(f"v_lshlrev_b32 v{dst}, 13, v{dst}")
        A(f"v_and_b32 v{src}, 7, v{src}")
        A(f"v_lshl_add_u32 v{dst}, v{src}, 4, v{dst}")
    A("v_cmp_gt_u32 vcc, 16, v0")
    A(f"v_mov_b32 v10, 0x7ffffff0")
    nop(1)
    A(f"v_cndmask_b32 v{T+15}, v10, v{T+15}, vcc")
    A(f"s_mul_i32 s76, s28, {40*8192}")
    A(f"s_add_u32 s76, s76, {WS_Y}")
    A("s_lshl_b32 s77, s31, 7")
    A("s_add_u32 s77, s77, s76")
    A("s_waitcnt vmcnt(0)")
    stamp(4)
    A("s_barrier")
    stamp(5)
    A(f"v_mov_b32 v10, {L_F}")
    A(f"ds_read_b128 v[{G}:{G+3}], v10")
    for w in range(4):
        A(f"ds_read_b32 v{T+w}, v9 offset:{L_OP+w*512}")
    A("s_waitcnt lgkmcnt(0)")
    A(f"v_mul_f32 v{T}, v{T}, v{G}")
    for w in range(1, 4):
        A(f"v_fma_f32 v{T}, v{T+w}, v{G+w}, v{T}")
    A(f"v_cvt_pk_bf16_f32 v{T}, v{T}, v{T}")
    nop(2)
    mkA(0, T, 0)
    for kap in range(8):
        if kap + 1 < 8:
            mkA((kap + 1) & 1, T, kap + 1)
        else:
            nop(2)
        a = AR + 4 * (kap & 1)
        for t in range(5):
            b = BUF + 4 * (kap * 5 + t)
            A(f"v_mfma_f32_16x16x32_bf16 v[{Y+4*t}:{Y+4*t+3}], v[{a}:{a+3}], v[{b}:{b+3}], v[{Y+4*t}:{Y+4*t+3}]")
    A("s_mov_b32 exec_hi, 0")
    nop(5)
    for t in range(5):
        A(f"ds_write_b128 v8, v[{Y+4*t}:{Y+4*t+3}] offset:{L_YP+t*512}")
    A("s_mov_b64 exec, -1")
    A("s_waitcnt lgkmcnt(0)")
    A("s_barrier")
    for vv in range(4):
        A(f"ds_read_b64 v[{G+2*vv}:{G+2*vv+1}], v{T+12} offset:{L_YP+vv*2560}")
        A(f"ds_read_b64 v[{G+8+2*vv}:{G+8+2*vv+1}], v{T+13} offset:{L_YP+vv*2560}")
    A(f"v_mov_b32 v{T+1}, s72")
    A(f"v_mov_b32 v{T+3}, s72")
    A(f"v_mov_b32 v{T+5}, s72")
    A(f"v_mov_b32 v{T+7}, s72")
    A("s_waitcnt lgkmcnt(0)")
    for (base, dst) in ((G, T), (G + 8, T + 4)):
        A(f"v_add_f32 v{base}, v{base}, v{base+2}")
        A(f"v_add_f32 v{base+1}, v{base+1}, v{base+3}")
        A(f"v_add_f32 v{base+4}, v{base+4}, v{base+6}")
        A(f"v_add_f32 v{base+5}, v{base+5}, v{base+7}")
        A(f"v_add_f32 v{dst}, v{base}, v{base+4}")
        A(f"v_add_f32 v{dst+2}, v{base+1}, v{base+5}")
    A(f"buffer_store_dwordx4 v[{T}:{T+3}], v{T+14}, s[64:67], s77 offen {yppol}")
    A(f"buffer_store_dwordx4 v[{T+4}:{T+7}], v{T+15}, s[64:67], s77 offen {yppol}")
    stamp(6)
    A("s_cmp_lg_u32 s34, 0")
    A("s_cbranch_scc1 L_flush")
    A("s_cmp_ge_u32 s31, 40")
    A("s_cbranch_scc1 L_flush")
    A("s_lshl_b32 s35, s31, 13")
    A("s_add_u32 s35, s35, s76")
    A("v_lshlrev_b32 v9, 4, v0")
    A("v_add_u32 v10, 0x1000, v9")
    A(f"s_mov_b32 s36, {SPIN}")
    A("L_poll2:")
    for n in range(8):
        r = BUF + 4 * n
        A(f"buffer_load_dwordx4 v[{r}:{r+3}], v{9 + (n >> 2)}, s[64:67], s35 offen offset:{(n&3)*1024} {ygpol}")
    A("s_waitcnt vmcnt(0)")
    A(f"v_min3_u32 v{T}, v{BUF+1}, v{BUF+3}, v{BUF+5}")
    A(f"v_max3_u32 v{T+1}, v{BUF+1}, v{BUF+3}, v{BUF+5}")
    for q in range(7, 31, 4):
        A(f"v_min3_u32 v{T}, v{T}, v{BUF+q}, v{BUF+q+2}")
        A(f"v_max3_u32 v{T+1}, v{T+1}, v{BUF+q}, v{BUF+q+2}")
    A(f"v_min_u32 v{T}, v{T}, v{BUF+31}")
    A(f"v_max_u32 v{T+1}, v{T+1}, v{BUF+31}")
    A(f"v_cmp_ne_u32 vcc, s72, v{T}")
    A(f"v_cmp_ne_u32_e64 s[74:75], s72, v{T+1}")
    nop(2)
    A("s_or_b64 s[74:75], vcc, s[74:75]")
    A("s_cbranch_scc0 L_poll2_done")
    A("s_sub_u32 s36, s36, 1")
    A("s_cmp_lg_u32 s36, 0")
    A("s_cbranch_scc1 L_poll2")
    A("L_poll2_done:")
    A(f"v_add_f32 v{T}, v{BUF}, v{BUF+4}")
    A(f"v_add_f32 v{T+1}, v{BUF+2}, v{BUF+6}")
    A(f"v_add_f32 v{T+2}, v{BUF+8}, v{BUF+12}")
    A(f"v_add_f32 v{T+3}, v{BUF+10}, v{BUF+14}")
    A(f"v_add_f32 v{T+4}, v{BUF+16}, v{BUF+20}")
    A(f"v_add_f32 v{T+5}, v{BUF+18}, v{BUF+22}")
    A(f"v_add_f32 v{T+6}, v{BUF+24}, v{BUF+28}")
    A(f"v_add_f32 v{T+7}, v{BUF+26}, v{BUF+30}")
    A(f"v_add_f32 v{T}, v{T}, v{T+2}")
    A(f"v_add_f32 v{T+1}, v{T+1}, v{T+3}")
    A(f"v_add_f32 v{T+4}, v{T+4}, v{T+6}")
    A(f"v_add_f32 v{T+5}, v{T+5}, v{T+7}")
    A(f"v_add_f32 v{T}, v{T}, v{T+4}")
    A(f"v_add_f32 v{T+1}, v{T+1}, v{T+5}")
    nop(2)
    A(f"v_permlane32_swap_b32 v{T}, v{T+1}")
    nop(1)
    A(f"v_add_f32 v{T}, v{T}, v{T+1}")
    A(f"v_mov_b32 v{T+1}, v{T}")
    nop(2)
    A(f"v_permlane16_swap_b32 v{T}, v{T+1}")
    nop(1)
    A(f"v_add_f32 v{T}, v{T}, v{T+1}")
    nop(2)
    A(f"v_add_f32_dpp v{T}, v{T}, v{T} row_ror:8 row_mask:0xf bank_mask:0xf")
    A(f"v_mov_b32 v{T+1}, v{T}")
    nop(2)
    A(f"v_permlane32_swap_b32 v{T}, v{T+1}")
    A(f"v_lshlrev_b32 v{T+2}, 16, v{VXR}")
    A(f"v_and_b32 v{T+3}, 0xffff0000, v{VXR}")
    A(f"v_add_f32 v{T}, v{T}, v{T+2}")
    A(f"v_add_f32 v{T+1}, v{T+1}, v{T+3}")
    A(f"v_cvt_pk_bf16_f32 v{T}, v{T}, v{T+1}")
    A("s_mul_i32 s35, s28, 1280")
    A("s_lshl_b32 s36, s31, 5")
    A("s_add_u32 s35, s35, s36")
    A("v_lshlrev_b32 v9, 2, v0")
    A("s_mov_b64 exec, 0xff")
    A(f"buffer_store_dword v{T}, v9, s[68:71], s35 offen")
    A("s_or_b32 s36, s31, s28")
    A("s_cmp_lg_u32 s36, 0")
    A("s_cbranch_scc1 L_fin")
    A("s_mov_b64 exec, 1")
    A(f"v_mov_b32 v{T+1}, s72")
    A(f"buffer_store_dword v{T+1}, off, s[64:67], 0 offset:{WS_E} sc1")
    A("L_fin:")
    stamp(7)
    A("L_flush:")
    stamp_flush()
    A("L_end:")
    A("s_endpgm")

    body = "\n".join(("    " + l) if not l.endswith(":") else l for l in L) + "\n"
    return (HEADER % (LDS_SIZE, NAME, NAME, NAME)) + body + (FOOTER % NAME)


if __name__ == "__main__":
    kw = {}
    out = f"cdna_kernels/{NAME}.s"
    for a in sys.argv[1:]:
        if a.startswith("out="):
            out = a[4:]
            continue
        k, v = a.split("=")
        try:
            v = int(v)
        except ValueError:
            pass
        kw[k] = v
    open(out, "w").write(gen(**kw))
    print("wrote", out)
```

```python
import sys

NAME = "parallel_sum__gqa_block_cached__glu_gated_reglu__decode"

HEADER = """; Fused LN -> {GQA decode attention, ReGLU FFN} -> residual sum.  Generated by gen_kernel.py (hand-designed schedule).
; @launch grid=(256,1,1) block=(512,1,1) lds=%d
.amdgcn_target "amdgcn-amd-amdhsa--gfx950"
.text
.globl %s_kernel
.p2align 8
.type %s_kernel,@function
%s_kernel:
"""

FOOTER = """.section .rodata,"a"
.p2align 6
.amdhsa_kernel %s_kernel
  .amdhsa_next_free_vgpr 256
  .amdhsa_next_free_sgpr 102
  .amdhsa_accum_offset 256
  .amdhsa_group_segment_fixed_size 0
  .amdhsa_kernarg_size 96
  .amdhsa_user_sgpr_count 2
  .amdhsa_user_sgpr_kernarg_segment_ptr 1
  .amdhsa_system_sgpr_workgroup_id_x 1
.end_amdhsa_kernel
"""

L_Q = 0
L_TAG = 256
L_F = 384
L_ST = 2048
L_OP = 2560
L_YP = 4608
LDS_SIZE = 4608 + 4 * 2560

WS_E = 0
WS_ST = 4096
WS_Y = 65536
WS_QP = 0x160000
WS_GP = 0x260000
WS_DBG = 0x480000
WS_SIZE = 0x500000

TAG_A = 1664525
TAG_C = 1013904223
LOG2E = 0x3FB8AA3B
SCALE = 0x3DB504F3
SPIN = 20000


def gen(rot=0, LAL=6, GS=2, PRE=32, PREV=16, prio=0, NPRE=0, stamps=False, kpol="nt", wpol="nt", apol="nt", dpol="nt", LAL2=0, NT1=6, WOAT=0, WOP=4, WDAT=1, FP=0, B0=1, ACK=1, noffn=0, nowo=0, nowq=0, nofl=0, ppol="sc1 nt", gpol="sc1 nt", qgpol="sc1 nt", qppol="sc1", ygpol="sc1", yppol="sc1", npub=4, nopub=0, nowd=0, nog=0, FQ=1, FF=1, FY=1, perm=0, pxor=0, newmap=0, hmap=0, BLK=4096, STG=0, sidx=0, ssh=0, smask=0, ATS=0, atpol="sc0 sc1", ATW=4):
    L = []
    A = L.append

    def nop(n):
        assert 1 <= n <= 16
        A(f"s_nop {n-1}")

    def stamp(idx):
        if not stamps:
            return
        A("s_memrealtime s[90:91]")
        A("s_waitcnt lgkmcnt(0)")
        A(f"v_writelane_b32 v62, s90, {idx}")

    def stamp_flush():
        if not stamps:
            return
        A("s_mov_b64 exec, 0xffff")
        A("v_lshlrev_b32 v61, 2, v63")
        A("buffer_store_dword v62, v61, s[84:87], s88 offen")

    A("s_cmp_ge_u32 s2, 256")
    A("s_cbranch_scc1 L_end")
    A("s_load_dwordx16 s[4:19], s[0:1], 0")
    A("s_load_dwordx8 s[20:27], s[0:1], 64")
    A("v_lshrrev_b32 v1, 6, v0")
    A("v_and_b32 v0, 63, v0")
    A("v_readfirstlane_b32 s3, v1")
    if perm:
        A("s_mov_b32 s30, 0")
        for j, ch in enumerate(str(perm)[1:]):
            A(f"s_bfe_u32 s35, s2, {hex((1 << 16) | int(ch))}")
            A(f"s_lshl_b32 s35, s35, {j}")
            A("s_or_b32 s30, s30, s35")
        if pxor:
            d_, s_ = int(str(pxor)[1]), int(str(pxor)[2])
            A(f"s_bfe_u32 s35, s30, {hex((1 << 16) | s_)}")
            A(f"s_lshl_b32 s35, s35, {d_}")
            A("s_xor_b32 s30, s30, s35")
        A("s_and_b32 s38, s30, 1")
        A("s_bfe_u32 s29, s30, 0x50001")
        A("s_lshr_b32 s28, s30, 6")
        A("s_lshl_b32 s33, s28, 1")
        A("s_add_u32 s33, s33, s38")
        A("s_and_b32 s31, s30, 63")
    elif newmap:
        A("s_and_b32 s32, s2, 7")
        A("s_lshr_b32 s35, s2, 3")
        A("s_bfe_u32 s38, s32, 0x10001")
        A("s_mul_i32 s36, s38, 3")
        A("s_xor_b32 s36, s36, s32")
        A("s_and_b32 s37, s36, 1")
        A("s_lshr_b32 s36, s36, 1")
        A("s_or_b32 s36, s36, s37")
        A("s_and_b32 s28, s35, 3")
        A("s_lshr_b32 s35, s35, 2")
        A("s_lshl_b32 s36, s36, 3")
        A("s_add_u32 s29, s36, s35")
        A("s_lshl_b32 s39, s28, 5")
        A("s_add_u32 s39, s39, s29")
        A("s_lshl_b32 s39, s39, 1")
        A("s_add_u32 s30, s39, s38")
        A("s_lshl_b32 s33, s28, 1")
        A("s_add_u32 s33, s33, s38")
        A("s_lshl_b32 s31, s29, 1")
        A("s_add_u32 s31, s31, s38")
    else:
        if rot:
            A(f"s_add_u32 s32, s2, {rot}")
            A("s_and_b32 s32, s32, 7")
        else:
            A("s_and_b32 s32, s2, 7")
        A("s_lshr_b32 s35, s2, 3")
        A("s_lshr_b32 s36, s35, 3")
        A("s_and_b32 s37, s35, 7")
        A("s_lshr_b32 s28, s37, 1")
        A("s_and_b32 s38, s37, 1")
        if hmap == 0:
            A("s_lshl_b32 s39, s36, 3")
            A("s_add_u32 s29, s32, s39")
        elif hmap == 1:
            A("s_lshl_b32 s39, s32, 2")
            A("s_add_u32 s29, s36, s39")
        elif hmap == 2:
            A("s_lshl_b32 s39, s32, 1")
            A("s_and_b32 s29, s36, 1")
            A("s_add_u32 s29, s29, s39")
            A("s_lshr_b32 s39, s36, 1")
            A("s_lshl_b32 s39, s39, 4")
            A("s_add_u32 s29, s29, s39")
        elif hmap == 3:
            A("s_lshl_b32 s39, s36, 3")
            A("s_lshl_b32 s29, s36, 1")
            A("s_xor_b32 s29, s29, s32")
            A("s_add_u32 s29, s29, s39")
        A("s_lshl_b32 s39, s28, 5")
        A("s_add_u32 s39, s39, s29")
        A("s_lshl_b32 s39, s39, 1")
        A("s_add_u32 s30, s39, s38")
        A("s_lshl_b32 s33, s36, 1")
        A("s_add_u32 s33, s33, s38")
        A("s_lshl_b32 s31, s33, 3")
        A("s_add_u32 s31, s31, s32")
    A("v_and_b32 v2, 15, v0")
    A("v_lshrrev_b32 v3, 4, v0")
    A("v_and_b32 v8, 1, v2")
    A("v_lshlrev_b32 v8, 4, v8")
    A("v_mov_b32 v9, 0xffff")
    A("v_lshlrev_b32 v9, v8, v9")
    A("v_lshrrev_b32 v10, 1, v2")
    for r in range(4):
        A(f"v_cmp_eq_u32 vcc, {r}, v10")
        nop(2)
        A(f"v_cndmask_b32 v{4+r}, 0, v9, vcc")
    A("s_waitcnt lgkmcnt(0)")
    if stamps:
        A("s_mov_b32 s84, s26")
        A("s_and_b32 s85, s27, 0xffff")
        A(f"s_mov_b32 s86, {WS_SIZE}")
        A("s_mov_b32 s87, 0x20000")
        A("s_lshl_b32 s88, s2, 3")
        A("s_add_u32 s88, s88, s3")
        A("s_lshl_b32 s88, s88, 6")
        A(f"s_add_u32 s88, s88, {WS_DBG}")
        A("v_mov_b32 v62, 0")
        A("v_mov_b32 v63, v0")
    stamp(0)
    A("s_cmp_ge_u32 s3, 4")
    A("s_cbranch_scc1 L_service")

    RING = 128
    Q = 12
    S = 16
    SC = 32
    AR = 64
    D = 80
    T = 84
    A("s_lshl_b32 s35, s30, 20")
    A("s_lshr_b32 s36, s30, 12")
    A("s_add_u32 s40, s6, s35")
    A("s_addc_u32 s41, s7, s36")
    A("s_and_b32 s41, s41, 0xffff")
    A("s_mov_b32 s42, 0x100000")
    A("s_mov_b32 s43, 0x20000")
    A("s_add_u32 s44, s8, s35")
    A("s_addc_u32 s45, s9, s36")
    A("s_and_b32 s45, s45, 0xffff")
    A(f"s_mul_i32 s35, s3, {BLK}")
    A("v_lshlrev_b32 v11, 4, v0")
    A("v_add_u32 v11, s35, v11")
    if STG:
        if sidx:
            A("s_lshr_b32 s55, s30, 4")
            A("s_and_b32 s35, s30, 1")
            if sidx == 1:
                A("s_lshl_b32 s55, s55, 1")
            else:
                A("s_lshl_b32 s35, s35, 4")
            A("s_add_u32 s55, s55, s35")
            A(f"s_mul_i32 s55, s55, {STG * 4 * BLK}")
        elif smask:
            A(f"s_lshr_b32 s55, s30, {ssh}")
            A(f"s_and_b32 s55, s55, {smask}")
            A(f"s_mul_i32 s55, s55, {STG * 4 * BLK}")
        else:
            A(f"s_mul_i32 s55, s30, {STG * 4 * BLK}")
        A("s_and_b32 s55, s55, 0xfffff")
        A("s_mov_b32 s46, s55")
    else:
        A("s_mov_b32 s46, 0")

    assert PREV % GS == 0 and LAL <= PREV <= 32 and LAL % GS == 0 and PRE % GS == 0 and LAL <= PRE <= 32 and LAL + GS <= 32 and 16 % GS == 0

    def issue_load(m):
        r = RING + (m % 32) * 4
        per = min(BLK // 1024, 4)
        A(f"buffer_load_dwordx4 v[{r}:{r+3}], v11, s[40:43], s46 offen offset:{(m % per)*1024} {kpol}")
        if m % per == per - 1:
            if BLK <= 4096:
                inc = 4 * BLK
            elif BLK == 262144:
                inc = 4096
            else:
                nb = BLK // 1024
                assert nb <= 32
                inc = 4096 if (m % nb) != nb - 1 else 4 * BLK - (BLK - 4096)
            A(f"s_add_u32 s46, s46, {inc}")
            if STG:
                A("s_and_b32 s46, s46, 0xfffff")

    for m in range(LAL):
        if B0 and m == NPRE:
            A("s_barrier")
        issue_load(m)
    if B0 and NPRE >= LAL:
        A("s_barrier")
    for m0 in range(LAL, PRE, GS):
        A(f"s_waitcnt vmcnt({LAL - GS})")
        for m in range(m0, m0 + GS):
            issue_load(m)
    A("s_mov_b32 s48, 0xaaaaaaaa")
    A("s_mov_b32 s49, 0xaaaaaaaa")
    A("s_mov_b32 s50, 0xcccccccc")
    A("s_mov_b32 s51, 0xcccccccc")
    A(f"s_mov_b32 s52, {hex(SCALE)}")
    A(f"s_mov_b32 s53, {hex(LOG2E)}")
    A("v_lshlrev_b32 v10, 5, v2")
    for r in range(4):
        A(f"v_mov_b32 v{D+r}, 0")
    stamp(1)
    A("s_barrier")
    stamp(2)
    A("v_lshlrev_b32 v9, 4, v2")
    A(f"ds_read_b128 v[{Q}:{Q+3}], v9 offset:{L_Q}")
    A("s_waitcnt lgkmcnt(0)")
    A("s_mov_b32 s47, 0")
    nop(2)

    A("s_mov_b64 vcc, -1")
    A("L_ktrip:")
    for half in range(2):
        for n in range(16 * half, 16 * half + 16, GS):
            if n == 32 - LAL:
                A("s_cmp_lg_u32 s47, 7")
                A("s_cbranch_scc1 L_knosw")
                A("s_mov_b32 s40, s44")
                A("s_mov_b32 s41, s45")
                A("s_mov_b32 s46, s55" if STG else "s_mov_b32 s46, 0")
                A("L_knosw:")
            A(f"s_waitcnt vmcnt({LAL - GS})")
            skip = n + LAL < PRE
            if skip:
                A(f"s_cbranch_vccnz L_kskip{n}")
            for m in range(n + LAL, n + LAL + GS):
                issue_load(m)
            if skip:
                A(f"L_kskip{n}:")
            for r in range(4):
                for i in range(GS):
                    src = RING + (n + i) * 4 + r
                    d = S + (n + i) % 16
                    c = "0" if r == 0 else f"v{d}"
                    A(f"v_dot2_f32_bf16 v{d}, v{src}, v{Q+r}, {c}")
        nop(3)
        for j in range(8):
            A(f"v_add_f32_dpp v{S+j}, v{S+j}, v{S+j} row_ror:8 row_mask:0xf bank_mask:0x3")
        for j in range(8):
            A(f"v_add_f32_dpp v{S+j}, v{S+j+8}, v{S+j+8} row_ror:8 row_mask:0xf bank_mask:0xc")
        for j in range(4):
            A(f"v_add_f32_dpp v{S+j}, v{S+j}, v{S+j} row_half_mirror row_mask:0xf bank_mask:0x5")
        for j in range(4):
            A(f"v_add_f32_dpp v{S+j}, v{S+j+4}, v{S+j+4} row_half_mirror row_mask:0xf bank_mask:0xa")
        A(f"v_cndmask_b32_e64 v{T+0}, v{S+2}, v{S+0}, s[50:51]")
        A(f"v_cndmask_b32_e64 v{T+2}, v{S+0}, v{S+2}, s[50:51]")
        A(f"v_cndmask_b32_e64 v{T+1}, v{S+3}, v{S+1}, s[50:51]")
        A(f"v_cndmask_b32_e64 v{T+3}, v{S+1}, v{S+3}, s[50:51]")
        nop(1)
        A(f"v_add_f32_dpp v{T+2}, v{T+0}, v{T+2} quad_perm:[2,3,0,1] row_mask:0xf bank_mask:0xf")
        A(f"v_add_f32_dpp v{T+3}, v{T+1}, v{T+3} quad_perm:[2,3,0,1] row_mask:0xf bank_mask:0xf")
        A(f"v_cndmask_b32_e64 v{T+0}, v{T+3}, v{T+2}, s[48:49]")
        A(f"v_cndmask_b32_e64 v{T+1}, v{T+2}, v{T+3}, s[48:49]")
        nop(2)
        A(f"v_add_f32_dpp v{T+1}, v{T+0}, v{T+1} quad_perm:[1,0,3,2] row_mask:0xf bank_mask:0xf")
        A(f"v_cvt_pk_bf16_f32 v{T+1}, v{T+1}, v{T+1}")
        A(f"v_lshlrev_b32 v{T+1}, 16, v{T+1}")
        A(f"v_mul_f32 v{T+1}, s52, v{T+1}")
        A(f"v_cvt_pk_bf16_f32 v{T+1}, v{T+1}, v{T+1}")
        if half == 0:
            A(f"v_lshlrev_b32 v{T+4}, 16, v{T+1}")
        else:
            for kk in range(14):
                A(f"v_mov_b32 v{SC+kk}, v{SC+kk+2}")
            A(f"v_mov_b32 v{SC+14}, v{T+4}")
            A(f"v_lshlrev_b32 v{SC+15}, 16, v{T+1}")
    if stamps:
        for tt, idx in ((0, 7), (1, 8), (2, 9)):
            A(f"s_cmp_lg_u32 s47, {tt}")
            A(f"s_cbranch_scc1 L_nos{tt}")
            stamp(idx)
            A(f"L_nos{tt}:")
    A("s_mov_b64 vcc, 0")
    A("s_add_u32 s47, s47, 1")
    A("s_cmp_lt_u32 s47, 8")
    A("s_cbranch_scc1 L_ktrip")
    stamp(3)
    for m in range(LAL, PREV):
        issue_load(m)

    def allreduce(op, reg, tmp):
        for sh in (8, 4, 2, 1):
            nop(2)
            A(f"{op}_dpp v{reg}, v{reg}, v{reg} row_ror:{sh} row_mask:0xf bank_mask:0xf")
        A(f"v_mov_b32 v{tmp}, v{reg}")
        nop(2)
        A(f"v_permlane16_swap_b32 v{reg}, v{tmp}")
        nop(1)
        A(f"{op} v{reg}, v{reg}, v{tmp}")
        A(f"v_mov_b32 v{tmp}, v{reg}")
        nop(2)
        A(f"v_permlane32_swap_b32 v{reg}, v{tmp}")
        nop(1)
        A(f"{op} v{reg}, v{reg}, v{tmp}")

    M = T
    A(f"v_max3_f32 v{M}, v{SC}, v{SC+1}, v{SC+2}")
    for kk in range(3, 15, 2):
        A(f"v_max3_f32 v{M}, v{M}, v{SC+kk}, v{SC+kk+1}")
    A(f"v_max_f32 v{M}, v{M}, v{SC+15}")
    allreduce("v_max_f32", M, T + 2)
    for kk in range(16):
        A(f"v_sub_f32 v{SC+kk}, v{SC+kk}, v{M}")
    for kk in range(16):
        A(f"v_mul_f32 v{SC+kk}, s53, v{SC+kk}")
    for kk in range(16):
        A(f"v_exp_f32 v{SC+kk}, v{SC+kk}")
    nop(1)
    LS = T + 1
    A(f"v_add_f32 v{LS}, v{SC}, v{SC+1}")
    for kk in range(2, 16):
        A(f"v_add_f32 v{LS}, v{LS}, v{SC+kk}")
    for kk in range(16):
        A(f"v_cvt_pk_bf16_f32 v{SC+kk}, v{SC+kk}, v{SC+kk}")
    allreduce("v_add_f32", LS, T + 2)
    A("s_lshl_b32 s35, s3, 3")
    A(f"v_mov_b32 v{T+3}, s35")
    A(f"ds_write_b64 v{T+3}, v[{M}:{M+1}] offset:{L_ST}")
    A("s_waitcnt lgkmcnt(0)")
    A("s_barrier")
    stamp(4)

    A("s_mov_b32 s47, 0")
    A("s_mov_b64 vcc, -1")
    if ATS:
        A("s_mov_b32 s56, s26")
        A("s_and_b32 s57, s27, 0xffff")
        A(f"s_mov_b32 s58, {WS_SIZE}")
        A("s_mov_b32 s59, 0x20000")
        A("s_lshr_b32 s54, s30, 1")
        A("s_lshl_b32 s54, s54, 2")
        A("s_add_u32 s54, s54, s3")
        A("s_lshl_b32 s54, s54, 7")
        A("s_add_u32 s54, s54, 0x400000")
        A("v_mov_b32 v48, 0x12345")
    def vloop(label, lal, end, first):
        A(f"{label}:")
        for n in range(0, 32, GS):
            for i in range(GS):
                pr = SC + ((n + i) >> 4)
                j = (n + i) & 15
                for r in range(4):
                    A(f"v_and_b32_dpp v{AR+4*i+r}, v{pr}, v{4+r} row_newbcast:{j} row_mask:0xf bank_mask:0xf")
            if n + GS == 32:
                for kk in range(14):
                    A(f"v_mov_b32 v{SC+kk}, v{SC+kk+2}")
            A(f"s_waitcnt vmcnt({lal - GS})")
            skip = first and n + lal < PREV
            if skip:
                A(f"s_cbranch_vccnz {label}_skip{n}")
            for m in range(n + lal, n + lal + GS):
                issue_load(m)
            if skip:
                A(f"{label}_skip{n}:")
                nop(1)
            if ATS and n % 8 == 2:
                A(f"s_cmp_lt_u32 s47, {8 - ATS}")
                A(f"s_cbranch_scc1 {label}_noat{n}")
                A(f"s_cmp_ge_u32 s3, {ATW}")
                A(f"s_cbranch_scc1 {label}_noat{n}")
                A("s_mov_b64 exec, 1")
                A(f"buffer_atomic_swap v48, off, s[56:59], s54 {atpol}")
                A("s_mov_b64 exec, -1")
                A("s_add_u32 s54, s54, 4")
                A(f"{label}_noat{n}:")
            for i in range(GS):
                src = RING + (n + i) * 4
                A(f"v_mfma_f32_16x16x32_bf16 v[{D}:{D+3}], v[{AR+4*i}:{AR+4*i+3}], v[{src}:{src+3}], v[{D}:{D+3}]")
        if first:
            A("s_mov_b64 vcc, 0")
        A("s_add_u32 s47, s47, 1")
        A(f"s_cmp_lt_u32 s47, {end}")
        A(f"s_cbranch_scc1 {label}")
    if LAL2:
        assert LAL2 % GS == 0 and LAL2 + GS <= 32 and LAL2 >= LAL
        vloop("L_vtrip", LAL, NT1, True)
        for m in range(LAL, LAL2):
            issue_load(m)
        vloop("L_vtripb", LAL2, 8, False)
    else:
        vloop("L_vtrip", LAL, 8, True)
    stamp(5)
    A("s_lshl_b32 s35, s3, 9")
    A("v_lshlrev_b32 v8, 4, v3")
    A("v_add3_u32 v8, v8, v10, s35")
    A("s_mov_b32 exec_hi, 0")
    nop(4)
    A(f"ds_write_b128 v8, v[{D}:{D+3}] offset:{L_OP}")
    A("s_waitcnt lgkmcnt(0)")
    A("s_barrier")
    stamp(6)
    stamp_flush()
    A("s_endpgm")

    A("L_service:")
    if prio:
        A(f"s_setprio {prio}")
    VW = 1
    M2 = 12
    PC = 14
    VE = 19
    DQ = 20
    A2 = 28
    Y = 32
    AR = 52
    VXR = 60
    VXR2 = 60
    G = 64
    T = 80
    BUF = 96
    XU = 176
    XS = 216
    A("s_sub_u32 s34, s3, 4")
    def srd(base, ptr, size):
        A(f"s_mov_b32 s{base}, s{ptr}")
        A(f"s_and_b32 s{base+1}, s{ptr+1}, 0xffff")
        A(f"s_mov_b32 s{base+2}, {size}")
        A(f"s_mov_b32 s{base+3}, 0x20000")
    srd(64, 26, WS_SIZE)
    srd(40, 4, 4 * 1280)
    for j in range(4):
        A(f"s_mov_b32 s{92+j}, {hex(0x07060500 + j)}")
    A("s_mov_b32 s96, 0x0c0c0400")
    A("s_mov_b32 s97, 0x0c040100")
    A("s_mov_b32 s98, 0x04020100")

    def embed(dst, src, vtag, n):
        for r in range(n):
            A(f"v_perm_b32 v{dst+r}, v{src+r}, v{vtag}, s{92 + (r & 3)}")

    def extract(dst, w):
        A(f"v_perm_b32 v{dst}, v{w+1}, v{w}, s96")
        A(f"v_perm_b32 v{dst}, v{w+2}, v{dst}, s97")
        A(f"v_perm_b32 v{dst}, v{w+3}, v{dst}, s98")

    def strip(w, n):
        for r in range(n):
            A(f"v_and_b32 v{w+r}, 0xffffff00, v{w+r}")

    def xsum(regs, tmps, steps):
        for st_ in steps:
            if st_ == "r8":
                nop(2)
                for r in regs:
                    A(f"v_add_f32_dpp v{r}, v{r}, v{r} row_ror:8 row_mask:0xf bank_mask:0xf")
            else:
                for r, t_ in zip(regs, tmps):
                    A(f"v_mov_b32 v{t_}, v{r}")
                nop(2)
                for r, t_ in zip(regs, tmps):
                    A(f"v_permlane{st_[1:]}_swap_b32 v{r}, v{t_}")
                nop(1)
                for r, t_ in zip(regs, tmps):
                    A(f"v_add_f32 v{r}, v{r}, v{t_}")
    A("s_cmp_eq_u32 s34, 0")
    A("s_cbranch_scc0 L_idle")
    A(f"buffer_load_dword v{VE}, off, s[64:67], 0 offset:{WS_E} sc1")
    A("v_lshrrev_b32 v8, 2, v2")
    A("v_mul_u32_u24 v8, 1280, v8")
    A("v_and_b32 v10, 3, v2")
    A("v_lshl_add_u32 v11, v10, 2, v3")
    A("v_lshl_add_u32 v9, v11, 1, v8")
    A("v_lshl_add_u32 v11, v3, 2, v10")
    A("v_lshl_add_u32 v8, v11, 4, v8")
    if newmap or perm:
        A("s_mov_b32 s80, s33")
    else:
        A("s_lshr_b32 s80, s2, 3")
        A("s_and_b32 s80, s80, 7")
    A("s_mul_i32 s36, s80, 160")
    for i in range(5):
        A(f"buffer_load_dwordx4 v[{XS+4*i}:{XS+4*i+3}], v8, s[40:43], 0 offen offset:{i*256}")
    for q in range(5):
        A(f"buffer_load_ushort v{PC+q}, v9, s[40:43], s36 offen offset:{q*32}")
    srd(44, 10, 640 * 8192)
    A("v_lshlrev_b32 v10, 13, v3")
    A("v_lshl_add_u32 v10, v2, 4, v10")
    A(f"s_mul_i32 s35, s80, {80*8192}")
    A("s_lshl_b32 s36, s29, 8")
    A("s_add_u32 s35, s35, s36")
    for n in range(20):
        r = BUF + 4 * n
        if not nowq:
            A(f"buffer_load_dwordx4 v[{r}:{r+3}], v10, s[44:47], s35 offen {apol}")
        if n != 19:
            A(f"s_add_u32 s35, s35, {4*8192}")
    if B0:
        A("s_barrier")
    stamp(12)
    A(f"s_lshl_b32 s81, s29, {14 if FQ else 15}")
    A(f"s_lshl_b32 s36, s80, {11 if FQ else 12}")
    A("s_add_u32 s81, s81, s36")
    A(f"s_add_u32 s81, s81, {WS_QP}")
    def masks2():
        A("v_and_b32 v8, 1, v2")
        A("v_lshlrev_b32 v8, 4, v8")
        A("v_mov_b32 v9, 0xffff")
        A("v_lshlrev_b32 v9, v8, v9")
        A("v_and_b32 v10, 2, v2")
        A("v_cmp_eq_u32 vcc, 0, v10")
        for r in range(8):
            A(f"v_mov_b32 v{DQ+r}, 0")
        A(f"v_cndmask_b32 v{M2}, 0, v9, vcc")
        A("v_cmp_ne_u32 vcc, 0, v10")
        nop(2)
        A(f"v_cndmask_b32 v{M2+1}, 0, v9, vcc")
    masks2()
    A("s_waitcnt vmcnt(%d)" % (0 if nowq else 20))
    stamp(1)
    for r in range(20):
        A(f"v_lshlrev_b32 v{XU+2*r}, 16, v{XS+r}")
        A(f"v_and_b32 v{XU+2*r+1}, 0xffff0000, v{XS+r}")
    A(f"v_readfirstlane_b32 s72, v{VE}")
    for a in range(4):
        A(f"v_pk_add_f32 v[{G+2*a}:{G+2*a+1}], v[{XU+2*a}:{XU+2*a+1}], v[{XU+8+2*a}:{XU+8+2*a+1}]")
    for r in range(8, 20):
        a = r & 3
        A(f"v_pk_add_f32 v[{G+2*a}:{G+2*a+1}], v[{G+2*a}:{G+2*a+1}], v[{XU+2*r}:{XU+2*r+1}]")
    A(f"v_pk_add_f32 v[{G}:{G+1}], v[{G}:{G+1}], v[{G+2}:{G+3}]")
    A(f"v_pk_add_f32 v[{G+4}:{G+5}], v[{G+4}:{G+5}], v[{G+6}:{G+7}]")
    A(f"s_mul_i32 s72, s72, {TAG_A}")
    A(f"v_pk_add_f32 v[{G}:{G+1}], v[{G}:{G+1}], v[{G+4}:{G+5}]")
    A(f"s_add_u32 s72, s72, {TAG_C}")
    A(f"v_add_f32 v{T}, v{G}, v{G+1}")

    def breduce(reg, tmp):
        nop(2)
        A(f"v_add_f32_dpp v{reg}, v{reg}, v{reg} quad_perm:[1,0,3,2] row_mask:0xf bank_mask:0xf")
        nop(2)
        A(f"v_add_f32_dpp v{reg}, v{reg}, v{reg} quad_perm:[2,3,0,1] row_mask:0xf bank_mask:0xf")
        A(f"v_mov_b32 v{tmp}, v{reg}")
        nop(2)
        A(f"v_permlane16_swap_b32 v{reg}, v{tmp}")
        nop(1)
        A(f"v_add_f32 v{reg}, v{reg}, v{tmp}")
        A(f"v_mov_b32 v{tmp}, v{reg}")
        nop(2)
        A(f"v_permlane32_swap_b32 v{reg}, v{tmp}")
        nop(1)
        A(f"v_add_f32 v{reg}, v{reg}, v{tmp}")

    breduce(T, T + 1)
    A(f"v_mul_f32 v{T}, 0x3acccccd, v{T}")
    A(f"v_mov_b32 v{T+1}, v{T}")
    for r in range(20):
        A(f"v_pk_add_f32 v[{XU+2*r}:{XU+2*r+1}], v[{XU+2*r}:{XU+2*r+1}], v[{T}:{T+1}] neg_lo:[0,1] neg_hi:[0,1]")
    for a in range(4):
        A(f"v_pk_mul_f32 v[{G+2*a}:{G+2*a+1}], v[{XU+2*a}:{XU+2*a+1}], v[{XU+2*a}:{XU+2*a+1}]")
    for r in range(4, 20):
        a = r & 3
        A(f"v_pk_fma_f32 v[{G+2*a}:{G+2*a+1}], v[{XU+2*r}:{XU+2*r+1}], v[{XU+2*r}:{XU+2*r+1}], v[{G+2*a}:{G+2*a+1}]")
    A(f"v_pk_add_f32 v[{G}:{G+1}], v[{G}:{G+1}], v[{G+2}:{G+3}]")
    A(f"v_pk_add_f32 v[{G+4}:{G+5}], v[{G+4}:{G+5}], v[{G+6}:{G+7}]")
    A(f"v_pk_add_f32 v[{G}:{G+1}], v[{G}:{G+1}], v[{G+4}:{G+5}]")
    A(f"v_add_f32 v{T+1}, v{G}, v{G+1}")
    breduce(T + 1, T + 2)
    A(f"v_mul_f32 v{T+1}, 0x3acccccd, v{T+1}")
    A(f"v_cvt_pk_bf16_f32 v{T}, v{T}, v{T}")
    A(f"v_cvt_pk_bf16_f32 v{T+1}, v{T+1}, v{T+1}")
    A(f"v_lshlrev_b32 v{T}, 16, v{T}")
    A(f"v_lshlrev_b32 v{T+1}, 16, v{T+1}")
    A(f"v_add_f32 v{T+1}, 0x3727c5ac, v{T+1}")
    A(f"v_cvt_pk_bf16_f32 v{T+1}, v{T+1}, v{T+1}")
    A(f"v_lshlrev_b32 v{T+1}, 16, v{T+1}")
    A(f"v_sqrt_f32 v{T+1}, v{T+1}")
    for q in range(5):
        A(f"v_lshlrev_b32 v{PC+q}, 16, v{PC+q}")
    A(f"v_cvt_pk_bf16_f32 v{T+1}, v{T+1}, v{T+1}")
    A(f"v_lshlrev_b32 v{T+1}, 16, v{T+1}")
    A(f"v_rcp_f32 v{T+2}, v{T+1}")

    def normalize(regs):
        for r in regs:
            A(f"v_sub_f32 v{r}, v{r}, v{T}")
        for r in regs:
            A(f"v_cvt_pk_bf16_f32 v{r}, v{r}, v{r}")
        for r in regs:
            A(f"v_lshlrev_b32 v{r}, 16, v{r}")
        for k, r in enumerate(regs):
            A(f"v_mul_f32 v{T+4+k}, v{r}, v{T+2}")
        for k, r in enumerate(regs):
            A(f"v_fma_f32 v{r}, -v{T+4+k}, v{T+1}, v{r}")
        for k, r in enumerate(regs):
            A(f"v_fma_f32 v{r}, v{r}, v{T+2}, v{T+4+k}")
        for r in regs:
            A(f"v_cvt_pk_bf16_f32 v{r}, v{r}, v{r}")
    normalize([PC + q for q in range(5)])
    A(f"v_mov_b32 v{T+3}, s72")
    A("v_lshrrev_b32 v8, 2, v2")
    A("v_lshlrev_b32 v8, 4, v8")
    A(f"ds_write_b128 v8, v[{T}:{T+3}] offset:{L_TAG}")
    stamp(14)

    def mkA2(setidx, n):
        q, jj = n >> 2, n & 3
        for r in range(2):
            A(f"v_and_b32_dpp v{A2+2*setidx+r}, v{PC+q}, v{M2+r} quad_perm:[{jj},{jj},{jj},{jj}] row_mask:0xf bank_mask:0xf")

    def prod_mfma(NW):
        nop(2)
        mkA2(0, 0)
        for n in range(NW):
            if n + 1 < NW:
                mkA2((n + 1) & 1, n + 1)
            else:
                nop(2)
            if (n & 1) == 0:
                A(f"s_waitcnt vmcnt({NW - 2 - n})")
            b = BUF + 4 * n
            a = A2 + 2 * (n & 1)
            A(f"v_mfma_f32_16x16x16_bf16 v[{DQ}:{DQ+3}], v[{a}:{a+1}], v[{b}:{b+1}], v[{DQ}:{DQ+3}]")
            A(f"v_mfma_f32_16x16x16_bf16 v[{DQ+4}:{DQ+7}], v[{a}:{a+1}], v[{b+2}:{b+3}], v[{DQ+4}:{DQ+7}]")

    def publish(pol="sc1", nst=4, fmt=0):
        A("v_lshlrev_b32 v11, 4, v0")
        if fmt:
            A(f"v_mov_b32 v{G+8}, s72")
            nop(10)
            embed(G, DQ, G + 8, 8)
            for st_ in range(2):
                A(f"buffer_store_dwordx4 v[{G+4*st_}:{G+4*st_+3}], v11, s[64:67], s81 offen offset:{st_*1024} {pol}")
            return
        for r in range(8):
            A(f"v_mov_b32 v{G+2*r+1}, s72")
        for r in range(8):
            A(f"v_mov_b32 v{G+2*r}, v{DQ+r}")
        for st_ in range(nst):
            A(f"buffer_store_dwordx4 v[{G+4*st_}:{G+4*st_+3}], v11, s[64:67], s81 offen offset:{st_*1024} {pol}")

    prod_mfma(20)
    stamp(15)
    publish(qppol, 4, FQ)
    if FQ:
        A("v_and_b32 v10, 1, v3")
        A("v_lshlrev_b32 v10, 10, v10")
        A("v_lshrrev_b32 v9, 1, v3")
        A("v_lshl_add_u32 v10, v9, 11, v10")
        A("v_lshl_add_u32 v10, v2, 4, v10")
        A("s_lshl_b32 s82, s29, 14")
        A("s_lshl_b32 s36, s28, 8")
        A("s_add_u32 s82, s82, s36")
        A(f"s_add_u32 s82, s82, {WS_QP}")
        A(f"s_mov_b32 s36, {SPIN}")
        if ACK:
            A("s_waitcnt vmcnt(0)")
        stamp(10)
        A("L_pollq:")
        A("s_mov_b32 s35, s82")
        for n in range(4):
            r = BUF + 4 * n
            A(f"buffer_load_dwordx4 v[{r}:{r+3}], v10, s[64:67], s35 offen {qgpol}")
            if n != 3:
                A("s_add_u32 s35, s35, 4096")
        A("s_waitcnt vmcnt(0)")
        for n in range(4):
            extract(T + n, BUF + 4 * n)
        A(f"v_min3_u32 v{T+4}, v{T}, v{T+1}, v{T+2}")
        A(f"v_max3_u32 v{T+5}, v{T}, v{T+1}, v{T+2}")
        A(f"v_min_u32 v{T+4}, v{T+4}, v{T+3}")
        A(f"v_max_u32 v{T+5}, v{T+5}, v{T+3}")
        A(f"v_cmp_ne_u32 vcc, s72, v{T+4}")
        A(f"v_cmp_ne_u32_e64 s[74:75], s72, v{T+5}")
        nop(2)
        A("s_or_b64 s[74:75], vcc, s[74:75]")
        A("s_cbranch_scc0 L_pollq_done")
        A("s_sub_u32 s36, s36, 1")
        A("s_cmp_lg_u32 s36, 0")
        A("s_cbranch_scc1 L_pollq")
        A("L_pollq_done:")
        strip(BUF, 16)
        for j in range(4):
            A(f"v_add_f32 v{T+j}, v{BUF+j}, v{BUF+4+j}")
            A(f"v_add_f32 v{T+4+j}, v{BUF+8+j}, v{BUF+12+j}")
        for j in range(4):
            A(f"v_add_f32 v{T+j}, v{T+j}, v{T+4+j}")
        xsum([T + j for j in range(4)], [T + 4 + j for j in range(4)], ["s32"])
        A("v_and_b32 v9, 1, v3")
        A("v_lshlrev_b32 v9, 3, v9")
        A(f"v_cvt_pk_bf16_f32 v{T}, v{T}, v{T+1}")
        A(f"v_cvt_pk_bf16_f32 v{T+1}, v{T+2}, v{T+3}")
        A("v_lshl_add_u32 v9, v2, 4, v9")
        A(f"ds_write_b64 v9, v[{T}:{T+1}] offset:{L_Q}")
    else:
        A("v_lshlrev_b32 v10, 10, v3")
        A("v_lshl_add_u32 v10, v2, 4, v10")
        A("s_lshl_b32 s82, s29, 15")
        A("s_lshl_b32 s36, s28, 8")
        A("s_add_u32 s82, s82, s36")
        A(f"s_add_u32 s82, s82, {WS_QP}")
        A(f"s_mov_b32 s36, {SPIN}")
        if ACK:
            A("s_waitcnt vmcnt(0)")
        stamp(10)
        A("L_pollq:")
        A("s_mov_b32 s35, s82")
        for n in range(8):
            r = BUF + 4 * n
            A(f"buffer_load_dwordx4 v[{r}:{r+3}], v10, s[64:67], s35 offen {qgpol}")
            if n != 7:
                A("s_add_u32 s35, s35, 4096")
        A("s_waitcnt vmcnt(0)")
        A(f"v_min3_u32 v{T}, v{BUF+1}, v{BUF+3}, v{BUF+5}")
        A(f"v_max3_u32 v{T+1}, v{BUF+1}, v{BUF+3}, v{BUF+5}")
        for q in range(7, 31, 4):
            A(f"v_min3_u32 v{T}, v{T}, v{BUF+q}, v{BUF+q+2}")
            A(f"v_max3_u32 v{T+1}, v{T+1}, v{BUF+q}, v{BUF+q+2}")
        A(f"v_min_u32 v{T}, v{T}, v{BUF+31}")
        A(f"v_max_u32 v{T+1}, v{T+1}, v{BUF+31}")
        A(f"v_cmp_ne_u32 vcc, s72, v{T}")
        A(f"v_cmp_ne_u32_e64 s[74:75], s72, v{T+1}")
        nop(2)
        A("s_or_b64 s[74:75], vcc, s[74:75]")
        A("s_cbranch_scc0 L_pollq_done")
        A("s_sub_u32 s36, s36, 1")
        A("s_cmp_lg_u32 s36, 0")
        A("s_cbranch_scc1 L_pollq")
        A("L_pollq_done:")
        for a in range(4):
            A(f"v_add_f32 v{T+2*a}, v{BUF+8*a}, v{BUF+8*a+4}")
            A(f"v_add_f32 v{T+2*a+1}, v{BUF+8*a+2}, v{BUF+8*a+6}")
        for a in range(2):
            A(f"v_add_f32 v{T+4*a}, v{T+4*a}, v{T+4*a+2}")
            A(f"v_add_f32 v{T+4*a+1}, v{T+4*a+1}, v{T+4*a+3}")
        A(f"v_add_f32 v{T}, v{T}, v{T+4}")
        A(f"v_add_f32 v{T+1}, v{T+1}, v{T+5}")
        A("v_lshlrev_b32 v9, 2, v3")
        A(f"v_cvt_pk_bf16_f32 v{T}, v{T}, v{T+1}")
        A("v_lshl_add_u32 v9, v2, 4, v9")
        A(f"ds_write_b32 v9, v{T} offset:{L_Q}")
    A("s_waitcnt lgkmcnt(0)")
    stamp(13)
    A("s_branch L_b1")
    A("L_idle:")
    if B0:
        A("s_barrier")
    A("L_b1:")
    A("s_barrier")
    stamp(2)
    A("v_lshrrev_b32 v8, 2, v2")
    A("v_lshlrev_b32 v9, 4, v8")
    A(f"ds_read_b128 v[{T}:{T+3}], v9 offset:{L_TAG}")
    A("s_waitcnt lgkmcnt(0)")
    A(f"v_readfirstlane_b32 s72, v{T+3}")
    A("s_cmp_lg_u32 s34, 2")
    A("s_cbranch_scc1 L_common")
    A("s_cmp_ge_u32 s2, 224")
    A("s_cbranch_scc1 L_common")
    if noffn:
        A("s_branch L_common")
    A("s_cmp_ge_u32 s2, 112")
    A("s_cselect_b32 s36, 112, 0")
    A("s_sub_u32 s36, s2, s36")
    A("s_mul_i32 s78, s36, 4682")
    A("s_lshr_b32 s78, s78, 16")
    A("s_mul_i32 s79, s78, 14")
    A("s_sub_u32 s79, s36, s79")
    A("v_mul_u32_u24 v8, 1280, v8")
    A("v_and_b32 v10, 3, v2")
    A("v_lshl_add_u32 v11, v10, 2, v3")
    A("v_lshl_add_u32 v9, v11, 1, v8")
    A("s_mul_i32 s36, s78, 160")
    for q in range(5):
        A(f"buffer_load_ushort v{PC+q}, v9, s[40:43], s36 offen offset:{q*32}")
    A("s_cmp_ge_u32 s2, 112")
    A("s_cbranch_scc1 L_ldU")
    srd(44, 16, 640 * 3456)
    A("s_branch L_ldF2")
    A("L_ldU:")
    srd(44, 18, 640 * 3456)
    A("L_ldF2:")
    A("v_mul_u32_u24 v1, 3456, v3")
    A("v_lshl_add_u32 v1, v2, 4, v1")
    A(f"s_mul_i32 s83, s78, {80*3456}")
    A("s_lshl_b32 s36, s79, 8")
    A("s_add_u32 s83, s83, s36")
    for n in range(20):
        r = BUF + 4 * n
        if FP and n >= FP:
            A(f"s_waitcnt vmcnt({FP-1})")
        if not nofl:
            A(f"buffer_load_dwordx4 v[{r}:{r+3}], v1, s[44:47], s83 offen {apol}")
        if n != 19:
            A(f"s_add_u32 s83, s83, {4*3456}")
    masks2()
    A("s_waitcnt vmcnt(%d)" % (0 if (nofl or FP) else 20))
    for q in range(5):
        A(f"v_lshlrev_b32 v{PC+q}, 16, v{PC+q}")
    normalize([PC + q for q in range(5)])
    prod_mfma(20)
    stamp(15)
    A("L_common:")
    srd(56, 20, 1728 * 1280)
    srd(60, 12, 4096 * 1280)
    srd(68, 22, 4 * 1280)
    A(f"v_mul_u32_u24 v{VW}, 1280, v3")
    A(f"v_lshl_add_u32 v{VW}, v2, 4, v{VW}")
    for r in range(20):
        A(f"v_mov_b32 v{Y+r}, 0")
    A("s_mul_i32 s35, s28, 1280")
    if FY:
        A("s_min_u32 s36, s31, 19")
        A("s_lshl_b32 s36, s36, 6")
        A("s_add_u32 s35, s35, s36")
        A("v_and_b32 v10, 7, v0")
        A("v_lshlrev_b32 v10, 3, v10")
        A(f"buffer_load_dwordx2 v[{VXR2}:{VXR2+1}], v10, s[40:43], s35 offen")
    else:
        A("s_lshl_b32 s36, s31, 5")
        A("s_add_u32 s35, s35, s36")
        A("v_lshlrev_b32 v10, 2, v0")
        A(f"buffer_load_dword v{VXR}, v10, s[40:43], s35 offen")

    def mkA(setidx, preg, j):
        for r in range(4):
            A(f"v_and_b32_dpp v{AR+4*setidx+r}, v{preg}, v{4+r} row_newbcast:{j} row_mask:0xf bank_mask:0xf")

    def wd_first():
        A("s_mul_i32 s37, s31, 28")
        A("s_mul_i32 s36, s31, 24")
        A("s_add_u32 s36, s36, 192")
        A("s_cmp_lt_u32 s31, 48")
        A("s_cselect_b32 s37, s37, s36")

    def wd_loads():
        if FF:
            wd_first()
            A("s_mul_i32 s35, s37, 1280")
        else:
            A(f"s_mul_i32 s35, s31, {27*1280}")
        for kap in range(7):
            if FF and kap == 6:
                A(f"s_sub_u32 s36, s35, {4*1280}")
                A("s_cmp_lt_u32 s31, 48")
                A("s_cselect_b32 s35, s35, s36")
            for t in range(5):
                r = BUF + 4 * (kap * 5 + t)
                if WOP and kap * 5 + t >= WOP:
                    A(f"s_waitcnt vmcnt({WOP-1})")
                if not nowd:
                    A(f"buffer_load_dwordx4 v[{r}:{r+3}], v{VW}, s[56:59], s35 offen offset:{t*256} {dpol}")
            if kap != 6:
                A(f"s_add_u32 s35, s35, {4*1280}")

    def wo_loads():
        A("s_lshl_b32 s35, s29, 7")
        A("s_lshl_b32 s36, s34, 5")
        A("s_add_u32 s35, s35, s36")
        A("s_mul_i32 s35, s35, 1280")
        for kap in range(8):
            for t in range(5):
                r = BUF + 4 * (kap * 5 + t)
                if not nowo:
                    if WOP and kap * 5 + t >= WOP:
                        A(f"s_waitcnt vmcnt({WOP-1})")
                    A(f"buffer_load_dwordx4 v[{r}:{r+3}], v{VW}, s[60:63], s35 offen offset:{t*256} {wpol}")
            if kap != 7:
                A(f"s_add_u32 s35, s35, {4*1280}")

    EW = 240
    PS = 236

    def wg_stats(ew):
        A("v_mov_b32 v8, 0")
        A(f"ds_read_b128 v[{T}:{T+3}], v8 offset:{L_ST}")
        A(f"ds_read_b128 v[{T+4}:{T+7}], v8 offset:{L_ST+16}")
        A(f"s_mov_b32 s73, {hex(LOG2E)}")
        A("s_waitcnt lgkmcnt(0)")
        A(f"v_max3_f32 v{T+8}, v{T}, v{T+2}, v{T+4}")
        A(f"v_max_f32 v{T+8}, v{T+8}, v{T+6}")
        for w in range(4):
            A(f"v_sub_f32 v{ew+w}, v{T+2*w}, v{T+8}")
        for w in range(4):
            A(f"v_mul_f32 v{ew+w}, s73, v{ew+w}")
        for w in range(4):
            A(f"v_exp_f32 v{ew+w}, v{ew+w}")
        nop(1)
        A(f"v_mul_f32 v{T+10}, v{ew}, v{T+1}")
        for w in range(1, 4):
            A(f"v_fma_f32 v{T+10}, v{ew+w}, v{T+2*w+1}, v{T+10}")

    A("s_cmp_eq_u32 s34, 1")
    A("s_cbranch_scc1 L_k1")
    if WOAT == 0:
        wo_loads()
    A("s_branch L_kdone")
    A("L_k1:")
    if WDAT == 0 and not noffn:
        wd_loads()
    A("L_kdone:")
    stamp(3)
    A("s_barrier")
    A("s_cmp_eq_u32 s34, 1")
    A("s_cbranch_scc1 L_v1")
    A("s_cmp_eq_u32 s34, 0")
    A("s_cbranch_scc0 L_nostat")
    wg_stats(G)
    A(f"v_mov_b32 v{T+9}, s72")
    A(f"v_mov_b32 v{T+11}, s72")
    A("s_lshl_b32 s35, s30, 7")
    A(f"s_add_u32 s35, s35, {WS_ST}")
    A("s_mov_b64 exec, 1")
    A(f"buffer_store_dwordx4 v[{T+8}:{T+11}], off, s[64:67], s35 {ppol}")
    A("s_mov_b64 exec, -1")
    A("L_nostat:")
    A("s_cmp_lg_u32 s34, 2")
    A("s_cbranch_scc1 L_nofpub")
    A("s_cmp_ge_u32 s2, 224")
    A("s_cbranch_scc1 L_nofpub")
    if not (noffn or nopub):
        A("s_cmp_ge_u32 s2, 112")
        A("s_cselect_b32 s36, 112, 0")
        A("s_sub_u32 s37, s2, s36")
        A("s_mul_i32 s78, s37, 4682")
        A("s_lshr_b32 s78, s78, 16")
        A("s_mul_i32 s79, s78, 14")
        A("s_sub_u32 s79, s37, s79")
        A("s_lshl_b32 s81, s79, 3")
        A("s_add_u32 s81, s81, s78")
        A("s_add_u32 s81, s81, s36")
        A(f"s_lshl_b32 s81, s81, {11 if FF else 12}")
        A(f"s_add_u32 s81, s81, {WS_GP}")
        publish(ppol, npub, FF)
    A("L_nofpub:")
    if WOAT == 1:
        wo_loads()
    A("s_branch L_vdone")

    A("L_v1:")
    if WDAT == 1 and not noffn:
        wd_loads()
    wg_stats(EW)
    if FF:
        wd_first()
        A("v_and_b32 v8, 7, v2")
        A("v_min_u32 v8, 6, v8")
        A("v_lshlrev_b32 v8, 2, v8")
        A("v_add_u32 v8, s37, v8")
        A("v_lshrrev_b32 v9, 7, v8")
        A("v_lshlrev_b32 v9, 14, v9")
        A("v_lshrrev_b32 v10, 3, v2")
        A("v_lshl_add_u32 v10, v3, 1, v10")
        A("v_lshl_add_u32 v9, v10, 11, v9")
        A("v_bfe_u32 v10, v8, 2, 1")
        A("v_lshl_add_u32 v9, v10, 10, v9")
        A("v_bfe_u32 v10, v8, 3, 4")
        A("v_lshl_add_u32 v9, v10, 4, v9")
        A("s_lshl_b32 s82, s28, 8")
        A(f"s_add_u32 s82, s82, {WS_GP}")
        A("s_lshl_b32 s83, s30, 7")
        A(f"s_add_u32 s83, s83, {WS_ST}")
        A("s_xor_b32 s83, s83, 128")
        A(f"s_mov_b32 s36, {SPIN}")
        A("L_pollg:")
        A(f"buffer_load_dwordx4 v[{PS}:{PS+3}], off, s[64:67], s83 {gpol}")
        chk = not (noffn or nog or nopub or nofl)
        if not (noffn or nog):
            A(f"s_add_u32 s35, s82, {112*2048}")
            A(f"buffer_load_dwordx4 v[{G}:{G+3}], v9, s[64:67], s82 offen {gpol}")
            A(f"buffer_load_dwordx4 v[{G+4}:{G+7}], v9, s[64:67], s35 offen {gpol}")
        A("s_waitcnt vmcnt(0)")
        if chk:
            extract(G + 8, G)
            extract(G + 9, G + 4)
            A(f"v_min3_u32 v8, v{PS+1}, v{PS+3}, v{G+8}")
            A(f"v_max3_u32 v10, v{PS+1}, v{PS+3}, v{G+8}")
            A(f"v_min_u32 v8, v8, v{G+9}")
            A(f"v_max_u32 v10, v10, v{G+9}")
        else:
            A(f"v_min_u32 v8, v{PS+1}, v{PS+3}")
            A(f"v_max_u32 v10, v{PS+1}, v{PS+3}")
        A("v_cmp_ne_u32 vcc, s72, v8")
        A("v_cmp_ne_u32_e64 s[74:75], s72, v10")
        nop(2)
        A("s_or_b64 s[74:75], vcc, s[74:75]")
        A("s_cbranch_scc0 L_pollg_done")
        A("s_sub_u32 s36, s36, 1")
        A("s_cmp_lg_u32 s36, 0")
        A("s_cbranch_scc1 L_pollg")
        A("L_pollg_done:")
    else:
        A("v_and_b32 v8, 7, v2")
        A("v_lshl_add_u32 v8, v8, 2, v3")
        A("v_min_u32 v8, 26, v8")
        A("s_mul_i32 s35, s31, 27")
        A("v_add_u32 v8, s35, v8")
        A("v_lshrrev_b32 v9, 7, v8")
        A("v_lshlrev_b32 v9, 15, v9")
        A("v_lshrrev_b32 v10, 3, v2")
        A(f"v_mul_u32_u24 v10, {112*4096}, v10")
        A("v_add_u32 v9, v9, v10")
        A("v_bfe_u32 v10, v8, 1, 2")
        A("v_lshl_add_u32 v9, v10, 10, v9")
        A("v_bfe_u32 v10, v8, 3, 4")
        A("v_lshl_add_u32 v9, v10, 4, v9")
        A("v_and_b32 v10, 1, v8")
        A("v_lshl_add_u32 v9, v10, 3, v9")
        A("s_lshl_b32 s82, s28, 8")
        A(f"s_add_u32 s82, s82, {WS_GP}")
        A("s_lshl_b32 s83, s30, 7")
        A(f"s_add_u32 s83, s83, {WS_ST}")
        A("s_xor_b32 s83, s83, 128")
        A(f"s_mov_b32 s36, {SPIN}")
        A("L_pollg:")
        A("s_mov_b32 s35, s82")
        A(f"buffer_load_dwordx4 v[{PS}:{PS+3}], off, s[64:67], s83 {gpol}")
        nf = 0 if (noffn or nog) else 8
        for n in range(nf):
            r = G + 2 * n
            A(f"buffer_load_dwordx2 v[{r}:{r+1}], v9, s[64:67], s35 offen {gpol}")
            if n != 7:
                A("s_add_u32 s35, s35, 4096")
        A("s_waitcnt vmcnt(0)")
        if nf and not nopub and npub == 4 and not nofl:
            A(f"v_min3_u32 v8, v{PS+1}, v{PS+3}, v{G+1}")
            A(f"v_max3_u32 v10, v{PS+1}, v{PS+3}, v{G+1}")
            for q in range(3, 15, 4):
                A(f"v_min3_u32 v8, v8, v{G+q}, v{G+q+2}")
                A(f"v_max3_u32 v10, v10, v{G+q}, v{G+q+2}")
            A(f"v_min_u32 v8, v8, v{G+15}")
            A(f"v_max_u32 v10, v10, v{G+15}")
        else:
            A(f"v_min_u32 v8, v{PS+1}, v{PS+3}")
            A(f"v_max_u32 v10, v{PS+1}, v{PS+3}")
        A("v_cmp_ne_u32 vcc, s72, v8")
        A("v_cmp_ne_u32_e64 s[74:75], s72, v10")
        nop(2)
        A("s_or_b64 s[74:75], vcc, s[74:75]")
        A("s_cbranch_scc0 L_pollg_done")
        A("s_sub_u32 s36, s36, 1")
        A("s_cmp_lg_u32 s36, 0")
        A("s_cbranch_scc1 L_pollg")
        A("L_pollg_done:")
    stamp(9)
    A(f"v_max_f32 v{T}, v{T+8}, v{PS}")
    A(f"v_sub_f32 v{T+1}, v{T+8}, v{T}")
    A(f"v_sub_f32 v{T+2}, v{PS}, v{T}")
    A(f"v_mul_f32 v{T+1}, s73, v{T+1}")
    A(f"v_mul_f32 v{T+2}, s73, v{T+2}")
    A(f"v_exp_f32 v{T+1}, v{T+1}")
    A(f"v_exp_f32 v{T+2}, v{T+2}")
    nop(1)
    A(f"v_mul_f32 v{T+3}, v{T+1}, v{T+10}")
    A(f"v_fma_f32 v{T+3}, v{T+2}, v{PS+2}, v{T+3}")
    A(f"v_rcp_f32 v{T+2}, v{T+3}")
    nop(1)
    A(f"v_fma_f32 v{T}, -v{T+3}, v{T+2}, 1.0")
    A(f"v_fma_f32 v{T+2}, v{T}, v{T+2}, v{T+2}")
    A(f"v_mul_f32 v{T+1}, v{T+1}, v{T+2}")
    for w in range(4):
        A(f"v_mul_f32 v{EW+w}, v{EW+w}, v{T+1}")
    A(f"v_mov_b32 v8, {L_F}")
    A(f"ds_write_b128 v8, v[{EW}:{EW+3}]")
    if FF and not noffn:
        strip(G, 8)
        xsum([G + r for r in range(8)], [G + 8 + r for r in range(8)], ["r8", "s16", "s32"])
        A("s_mov_b32 s74, 0xffff0000")
        A("s_mov_b32 s75, 0xffff0000")
        A("s_mov_b32 s76, 0")
        A("s_mov_b32 s77, -1")
        for q in (G, G + 4):
            A(f"v_cndmask_b32_e64 v{q}, v{q}, v{q+1}, s[74:75]")
            A(f"v_cndmask_b32_e64 v{q+2}, v{q+2}, v{q+3}, s[74:75]")
        for q in (G, G + 4):
            A(f"v_cndmask_b32_e64 v{q}, v{q}, v{q+2}, s[76:77]")
        A(f"v_cvt_pk_bf16_f32 v{G}, v{G}, v{G}")
        A(f"v_cvt_pk_bf16_f32 v{G+4}, v{G+4}, v{G+4}")
        A(f"v_lshlrev_b32 v{G}, 16, v{G}")
        A(f"v_lshlrev_b32 v{G+4}, 16, v{G+4}")
        A("v_cmp_ne_u32 vcc, 6, v2")
        A("s_cmp_lt_u32 s31, 48")
        A("s_cselect_b64 s[74:75], -1, 0")
        A(f"v_max_f32 v{G}, 0, v{G}")
        A(f"v_mul_f32 v{G}, v{G}, v{G+4}")
        A("s_or_b64 vcc, vcc, s[74:75]")
        A(f"v_cvt_pk_bf16_f32 v{G}, v{G}, v{G}")
        A(f"v_cndmask_b32 v{G}, 0, v{G}, vcc")
        nop(2)
        mkA(0, G, 0)
        for kap in range(7):
            if kap + 1 < 7:
                mkA((kap + 1) & 1, G, kap + 1)
            else:
                nop(2)
            a = AR + 4 * (kap & 1)
            for t in range(5):
                b = BUF + 4 * (kap * 5 + t)
                A(f"v_mfma_f32_16x16x32_bf16 v[{Y+4*t}:{Y+4*t+3}], v[{a}:{a+3}], v[{b}:{b+3}], v[{Y+4*t}:{Y+4*t+3}]")
    elif not noffn:
        for a in range(4):
            A(f"v_add_f32 v{G+4*a}, v{G+4*a}, v{G+4*a+2}")
        for a in range(2):
            A(f"v_add_f32 v{G+8*a}, v{G+8*a}, v{G+8*a+4}")
        A(f"v_add_f32 v{G}, v{G}, v{G+8}")
        A(f"v_cvt_pk_bf16_f32 v{G}, v{G}, v{G}")
        A(f"v_lshlrev_b32 v{G}, 16, v{G}")
        A("v_cmp_ne_u32 vcc, 54, v0")
        nop(1)
        A(f"v_mov_b32_dpp v{G+1}, v{G} row_ror:8 row_mask:0xf bank_mask:0xf")
        A(f"v_max_f32 v{G}, 0, v{G}")
        A(f"v_mul_f32 v{G}, v{G}, v{G+1}")
        A(f"v_cvt_pk_bf16_f32 v{G}, v{G}, v{G}")
        A(f"v_cndmask_b32 v{G}, 0, v{G}, vcc")
        nop(2)
        mkA(0, G, 0)
        for kap in range(7):
            if kap + 1 < 7:
                mkA((kap + 1) & 1, G, kap + 1)
            else:
                nop(2)
            a = AR + 4 * (kap & 1)
            for t in range(5):
                b = BUF + 4 * (kap * 5 + t)
                A(f"v_mfma_f32_16x16x32_bf16 v[{Y+4*t}:{Y+4*t+3}], v[{a}:{a+3}], v[{b}:{b+3}], v[{Y+4*t}:{Y+4*t+3}]")
    stamp(11)
    A("s_waitcnt lgkmcnt(0)")
    wo_loads()
    A("L_vdone:")
    A("v_and_b32 v9, 7, v2")
    A("v_lshl_add_u32 v9, v9, 2, v3")
    A("s_lshl_b32 s35, s34, 5")
    A("v_add_u32 v9, s35, v9")
    A("v_lshlrev_b32 v9, 2, v9")
    A("v_lshlrev_b32 v8, 5, v2")
    A("v_lshl_add_u32 v8, v3, 4, v8")
    A("s_mul_i32 s35, s34, 2560")
    A("v_add_u32 v8, s35, v8")
    if FY:
        A("s_mul_i32 s35, s34, 40")
        A("v_add_u32 v10, s35, v0")
        A(f"v_lshlrev_b32 v{T+12}, 4, v10")
        A(f"v_lshrrev_b32 v{T+14}, 3, v10")
        A(f"v_lshlrev_b32 v{T+14}, 13, v{T+14}")
        A("v_and_b32 v10, 7, v10")
        A(f"v_lshl_add_u32 v{T+14}, v10, 4, v{T+14}")
        A(f"s_mul_i32 s76, s28, {20*8192}")
        A(f"s_add_u32 s76, s76, {WS_Y}")
        A("s_lshl_b32 s77, s31, 7")
        A("s_add_u32 s77, s77, s76")
    else:
        A("s_lshl_b32 s35, s34, 6")
        A("v_add_u32 v10, s35, v0")
        A("s_lshl_b32 s35, s34, 4")
        A("s_add_u32 s35, s35, 256")
        A("v_add_u32 v11, s35, v2")
        A(f"v_lshlrev_b32 v{T+12}, 3, v10")
        A(f"v_lshlrev_b32 v{T+13}, 3, v11")
        for (src, dst) in ((10, T + 14), (11, T + 15)):
            A(f"v_lshrrev_b32 v{dst}, 3, v{src}")
            A(f"v_lshlrev_b32 v{dst}, 13, v{dst}")
            A(f"v_and_b32 v{src}, 7, v{src}")
            A(f"v_lshl_add_u32 v{dst}, v{src}, 4, v{dst}")
        A("v_cmp_gt_u32 vcc, 16, v0")
        A(f"v_mov_b32 v10, 0x7ffffff0")
        nop(1)
        A(f"v_cndmask_b32 v{T+15}, v10, v{T+15}, vcc")
        A(f"s_mul_i32 s76, s28, {40*8192}")
        A(f"s_add_u32 s76, s76, {WS_Y}")
        A("s_lshl_b32 s77, s31, 7")
        A("s_add_u32 s77, s77, s76")
    A("s_waitcnt vmcnt(0)")
    stamp(4)
    A("s_barrier")
    stamp(5)
    A(f"v_mov_b32 v10, {L_F}")
    A(f"ds_read_b128 v[{G}:{G+3}], v10")
    for w in range(4):
        A(f"ds_read_b32 v{T+w}, v9 offset:{L_OP+w*512}")
    A("s_waitcnt lgkmcnt(0)")
    A(f"v_mul_f32 v{T}, v{T}, v{G}")
    for w in range(1, 4):
        A(f"v_fma_f32 v{T}, v{T+w}, v{G+w}, v{T}")
    A(f"v_cvt_pk_bf16_f32 v{T}, v{T}, v{T}")
    nop(2)
    mkA(0, T, 0)
    for kap in range(8):
        if kap + 1 < 8:
            mkA((kap + 1) & 1, T, kap + 1)
        else:
            nop(2)
        a = AR + 4 * (kap & 1)
        for t in range(5):
            b = BUF + 4 * (kap * 5 + t)
            A(f"v_mfma_f32_16x16x32_bf16 v[{Y+4*t}:{Y+4*t+3}], v[{a}:{a+3}], v[{b}:{b+3}], v[{Y+4*t}:{Y+4*t+3}]")
    A("s_mov_b32 exec_hi, 0")
    nop(5)
    for t in range(5):
        A(f"ds_write_b128 v8, v[{Y+4*t}:{Y+4*t+3}] offset:{L_YP+t*512}")
    A("s_mov_b64 exec, -1")
    A("s_waitcnt lgkmcnt(0)")
    A("s_barrier")
    if FY:
        A("s_mov_b32 exec_lo, -1")
        A("s_mov_b32 exec_hi, 0xff")
        for vv in range(4):
            A(f"ds_read_b128 v[{G+4*vv}:{G+4*vv+3}], v{T+12} offset:{L_YP+vv*2560}")
        A(f"v_mov_b32 v{T+8}, s72")
        A("s_waitcnt lgkmcnt(0)")
        for j in range(4):
            A(f"v_add_f32 v{G+j}, v{G+j}, v{G+4+j}")
            A(f"v_add_f32 v{G+8+j}, v{G+8+j}, v{G+12+j}")
        for j in range(4):
            A(f"v_add_f32 v{G+j}, v{G+j}, v{G+8+j}")
        embed(T, G, T + 8, 4)
        A(f"buffer_store_dwordx4 v[{T}:{T+3}], v{T+14}, s[64:67], s77 offen {yppol}")
        A("s_mov_b64 exec, -1")
    else:
        for vv in range(4):
            A(f"ds_read_b64 v[{G+2*vv}:{G+2*vv+1}], v{T+12} offset:{L_YP+vv*2560}")
            A(f"ds_read_b64 v[{G+8+2*vv}:{G+8+2*vv+1}], v{T+13} offset:{L_YP+vv*2560}")
        A(f"v_mov_b32 v{T+1}, s72")
        A(f"v_mov_b32 v{T+3}, s72")
        A(f"v_mov_b32 v{T+5}, s72")
        A(f"v_mov_b32 v{T+7}, s72")
        A("s_waitcnt lgkmcnt(0)")
        for (base, dst) in ((G, T), (G + 8, T + 4)):
            A(f"v_add_f32 v{base}, v{base}, v{base+2}")
            A(f"v_add_f32 v{base+1}, v{base+1}, v{base+3}")
            A(f"v_add_f32 v{base+4}, v{base+4}, v{base+6}")
            A(f"v_add_f32 v{base+5}, v{base+5}, v{base+7}")
            A(f"v_add_f32 v{dst}, v{base}, v{base+4}")
            A(f"v_add_f32 v{dst+2}, v{base+1}, v{base+5}")
        A(f"buffer_store_dwordx4 v[{T}:{T+3}], v{T+14}, s[64:67], s77 offen {yppol}")
        A(f"buffer_store_dwordx4 v[{T+4}:{T+7}], v{T+15}, s[64:67], s77 offen {yppol}")
    stamp(6)
    A("s_cmp_lg_u32 s34, 0")
    A("s_cbranch_scc1 L_flush")
    A(f"s_cmp_ge_u32 s31, {20 if FY else 40}")
    A("s_cbranch_scc1 L_flush")
    A("s_lshl_b32 s35, s31, 13")
    A("s_add_u32 s35, s35, s76")
    A("v_lshlrev_b32 v9, 4, v0")
    A("v_add_u32 v10, 0x1000, v9")
    A(f"s_mov_b32 s36, {SPIN}")
    A("L_poll2:")
    for n in range(8):
        r = BUF + 4 * n
        A(f"buffer_load_dwordx4 v[{r}:{r+3}], v{9 + (n >> 2)}, s[64:67], s35 offen offset:{(n&3)*1024} {ygpol}")
    A("s_waitcnt vmcnt(0)")
    if FY:
        for n in range(8):
            extract(G + n, BUF + 4 * n)
        A(f"v_min3_u32 v{T}, v{G}, v{G+1}, v{G+2}")
        A(f"v_max3_u32 v{T+1}, v{G}, v{G+1}, v{G+2}")
        for q in (3, 5):
            A(f"v_min3_u32 v{T}, v{T}, v{G+q}, v{G+q+1}")
            A(f"v_max3_u32 v{T+1}, v{T+1}, v{G+q}, v{G+q+1}")
        A(f"v_min_u32 v{T}, v{T}, v{G+7}")
        A(f"v_max_u32 v{T+1}, v{T+1}, v{G+7}")
    else:
        A(f"v_min3_u32 v{T}, v{BUF+1}, v{BUF+3}, v{BUF+5}")
        A(f"v_max3_u32 v{T+1}, v{BUF+1}, v{BUF+3}, v{BUF+5}")
        for q in range(7, 31, 4):
            A(f"v_min3_u32 v{T}, v{T}, v{BUF+q}, v{BUF+q+2}")
            A(f"v_max3_u32 v{T+1}, v{T+1}, v{BUF+q}, v{BUF+q+2}")
        A(f"v_min_u32 v{T}, v{T}, v{BUF+31}")
        A(f"v_max_u32 v{T+1}, v{T+1}, v{BUF+31}")
    A(f"v_cmp_ne_u32 vcc, s72, v{T}")
    A(f"v_cmp_ne_u32_e64 s[74:75], s72, v{T+1}")
    nop(2)
    A("s_or_b64 s[74:75], vcc, s[74:75]")
    A("s_cbranch_scc0 L_poll2_done")
    A("s_sub_u32 s36, s36, 1")
    A("s_cmp_lg_u32 s36, 0")
    A("s_cbranch_scc1 L_poll2")
    A("L_poll2_done:")
    if FY:
        strip(BUF, 32)
        for j in range(4):
            for n in range(4):
                A(f"v_add_f32 v{BUF+8*n+j}, v{BUF+8*n+j}, v{BUF+8*n+4+j}")
        for j in range(4):
            A(f"v_add_f32 v{BUF+j}, v{BUF+j}, v{BUF+8+j}")
            A(f"v_add_f32 v{BUF+16+j}, v{BUF+16+j}, v{BUF+24+j}")
        for j in range(4):
            A(f"v_add_f32 v{T+j}, v{BUF+j}, v{BUF+16+j}")
        xsum([T + j for j in range(4)], [T + 4 + j for j in range(4)], ["r8", "s16", "s32"])
        A(f"v_lshlrev_b32 v{T+4}, 16, v{VXR2}")
        A(f"v_and_b32 v{T+5}, 0xffff0000, v{VXR2}")
        A(f"v_lshlrev_b32 v{T+6}, 16, v{VXR2+1}")
        A(f"v_and_b32 v{T+7}, 0xffff0000, v{VXR2+1}")
        for j in range(4):
            A(f"v_add_f32 v{T+j}, v{T+j}, v{T+4+j}")
        A(f"v_cvt_pk_bf16_f32 v{T}, v{T}, v{T+1}")
        A(f"v_cvt_pk_bf16_f32 v{T+1}, v{T+2}, v{T+3}")
        A("s_mul_i32 s35, s28, 1280")
        A("s_lshl_b32 s36, s31, 6")
        A("s_add_u32 s35, s35, s36")
        A("v_lshlrev_b32 v9, 3, v0")
        A("s_mov_b64 exec, 0xff")
        A(f"buffer_store_dwordx2 v[{T}:{T+1}], v9, s[68:71], s35 offen")
    else:
        A(f"v_add_f32 v{T}, v{BUF}, v{BUF+4}")
        A(f"v_add_f32 v{T+1}, v{BUF+2}, v{BUF+6}")
        A(f"v_add_f32 v{T+2}, v{BUF+8}, v{BUF+12}")
        A(f"v_add_f32 v{T+3}, v{BUF+10}, v{BUF+14}")
        A(f"v_add_f32 v{T+4}, v{BUF+16}, v{BUF+20}")
        A(f"v_add_f32 v{T+5}, v{BUF+18}, v{BUF+22}")
        A(f"v_add_f32 v{T+6}, v{BUF+24}, v{BUF+28}")
        A(f"v_add_f32 v{T+7}, v{BUF+26}, v{BUF+30}")
        A(f"v_add_f32 v{T}, v{T}, v{T+2}")
        A(f"v_add_f32 v{T+1}, v{T+1}, v{T+3}")
        A(f"v_add_f32 v{T+4}, v{T+4}, v{T+6}")
        A(f"v_add_f32 v{T+5}, v{T+5}, v{T+7}")
        A(f"v_add_f32 v{T}, v{T}, v{T+4}")
        A(f"v_add_f32 v{T+1}, v{T+1}, v{T+5}")
        nop(2)
        A(f"v_permlane32_swap_b32 v{T}, v{T+1}")
        nop(1)
        A(f"v_add_f32 v{T}, v{T}, v{T+1}")
        A(f"v_mov_b32 v{T+1}, v{T}")
        nop(2)
        A(f"v_permlane16_swap_b32 v{T}, v{T+1}")
        nop(1)
        A(f"v_add_f32 v{T}, v{T}, v{T+1}")
        nop(2)
        A(f"v_add_f32_dpp v{T}, v{T}, v{T} row_ror:8 row_mask:0xf bank_mask:0xf")
        A(f"v_mov_b32 v{T+1}, v{T}")
        nop(2)
        A(f"v_permlane32_swap_b32 v{T}, v{T+1}")
        A(f"v_lshlrev_b32 v{T+2}, 16, v{VXR}")
        A(f"v_and_b32 v{T+3}, 0xffff0000, v{VXR}")
        A(f"v_add_f32 v{T}, v{T}, v{T+2}")
        A(f"v_add_f32 v{T+1}, v{T+1}, v{T+3}")
        A(f"v_cvt_pk_bf16_f32 v{T}, v{T}, v{T+1}")
        A("s_mul_i32 s35, s28, 1280")
        A("s_lshl_b32 s36, s31, 5")
        A("s_add_u32 s35, s35, s36")
        A("v_lshlrev_b32 v9, 2, v0")
        A("s_mov_b64 exec, 0xff")
        A(f"buffer_store_dword v{T}, v9, s[68:71], s35 offen")
    A("s_or_b32 s36, s31, s28")
    A("s_cmp_lg_u32 s36, 0")
    A("s_cbranch_scc1 L_fin")
    A("s_mov_b64 exec, 1")
    A(f"v_mov_b32 v{T+1}, s72")
    A(f"buffer_store_dword v{T+1}, off, s[64:67], 0 offset:{WS_E} sc1")
    A("L_fin:")
    stamp(7)
    A("L_flush:")
    stamp_flush()
    A("L_end:")
    A("s_endpgm")

    body = "\n".join(("    " + l) if not l.endswith(":") else l for l in L) + "\n"
    return (HEADER % (LDS_SIZE, NAME, NAME, NAME)) + body + (FOOTER % NAME)


if __name__ == "__main__":
    kw = {}
    out = f"cdna_kernels/{NAME}.s"
    for a in sys.argv[1:]:
        if a.startswith("out="):
            out = a[4:]
            continue
        k, v = a.split("=")
        try:
            v = int(v)
        except ValueError:
            pass
        kw[k] = v
    open(out, "w").write(gen(**kw))
    print("wrote", out)
```

```python
import sys

NAME = "parallel_sum__gqa_block_cached__glu_gated_reglu__decode"

HEADER = """; Fused LN -> {GQA decode attention, ReGLU FFN} -> residual sum.  Generated by gen_kernel.py (hand-designed schedule).
; @launch grid=(256,1,1) block=(512,1,1) lds=%d
.amdgcn_target "amdgcn-amd-amdhsa--gfx950"
.text
.globl %s_kernel
.p2align 8
.type %s_kernel,@function
%s_kernel:
"""

FOOTER = """.section .rodata,"a"
.p2align 6
.amdhsa_kernel %s_kernel
  .amdhsa_next_free_vgpr 256
  .amdhsa_next_free_sgpr 102
  .amdhsa_accum_offset 256
  .amdhsa_group_segment_fixed_size 0
  .amdhsa_kernarg_size 96
  .amdhsa_user_sgpr_count 2
  .amdhsa_user_sgpr_kernarg_segment_ptr 1
  .amdhsa_system_sgpr_workgroup_id_x 1
.end_amdhsa_kernel
"""

L_Q = 0
L_TAG = 256
L_F = 384
L_ST = 2048
L_OP = 2560
L_YP = 4608
LDS_SIZE = 4608 + 4 * 2560

WS_E = 0
WS_ST = 4096
WS_Y = 65536
WS_QP = 0x160000
WS_GP = 0x260000
WS_DBG = 0x480000
WS_SIZE = 0x500000

TAG_A = 1664525
TAG_C = 1013904223
LOG2E = 0x3FB8AA3B
SCALE = 0x3DB504F3
SPIN = 20000


def gen(rot=0, LAL=6, GS=2, PRE=32, PREV=16, prio=0, NPRE=0, stamps=False, kpol="nt", wpol="nt", apol="nt", dpol="nt", LAL2=0, NT1=6, WOAT=0, WOP=4, WDAT=1, FP=0, B0=1, ACK=1, noffn=0, nowo=0, nowq=0, nofl=0, ppol="sc1 nt", gpol="sc1 nt", qgpol="sc1 nt", qppol="sc1", ygpol="sc1", yppol="sc1", npub=4, nopub=0, nowd=0, nog=0, FQ=1, FF=1, FY=1, RND=1, F4=1, Q4=1, perm=0, pxor=0, newmap=0, hmap=0, BLK=4096, STG=0, sidx=0, ssh=0, smask=0, ATS=0, atpol="sc0 sc1", ATW=4):
    L = []
    A = L.append

    def nop(n):
        assert 1 <= n <= 16
        A(f"s_nop {n-1}")

    def stamp(idx):
        if not stamps:
            return
        A("s_memrealtime s[90:91]")
        A("s_waitcnt lgkmcnt(0)")
        A(f"v_writelane_b32 v62, s90, {idx}")

    def stamp_flush():
        if not stamps:
            return
        A("s_mov_b64 exec, 0xffff")
        A("v_lshlrev_b32 v61, 2, v63")
        A("buffer_store_dword v62, v61, s[84:87], s88 offen")

    A("s_cmp_ge_u32 s2, 256")
    A("s_cbranch_scc1 L_end")
    A("s_load_dwordx16 s[4:19], s[0:1], 0")
    A("s_load_dwordx8 s[20:27], s[0:1], 64")
    A("v_lshrrev_b32 v1, 6, v0")
    A("v_and_b32 v0, 63, v0")
    A("v_readfirstlane_b32 s3, v1")
    if perm:
        A("s_mov_b32 s30, 0")
        for j, ch in enumerate(str(perm)[1:]):
            A(f"s_bfe_u32 s35, s2, {hex((1 << 16) | int(ch))}")
            A(f"s_lshl_b32 s35, s35, {j}")
            A("s_or_b32 s30, s30, s35")
        if pxor:
            d_, s_ = int(str(pxor)[1]), int(str(pxor)[2])
            A(f"s_bfe_u32 s35, s30, {hex((1 << 16) | s_)}")
            A(f"s_lshl_b32 s35, s35, {d_}")
            A("s_xor_b32 s30, s30, s35")
        A("s_and_b32 s38, s30, 1")
        A("s_bfe_u32 s29, s30, 0x50001")
        A("s_lshr_b32 s28, s30, 6")
        A("s_lshl_b32 s33, s28, 1")
        A("s_add_u32 s33, s33, s38")
        A("s_and_b32 s31, s30, 63")
    elif newmap:
        A("s_and_b32 s32, s2, 7")
        A("s_lshr_b32 s35, s2, 3")
        A("s_bfe_u32 s38, s32, 0x10001")
        A("s_mul_i32 s36, s38, 3")
        A("s_xor_b32 s36, s36, s32")
        A("s_and_b32 s37, s36, 1")
        A("s_lshr_b32 s36, s36, 1")
        A("s_or_b32 s36, s36, s37")
        A("s_and_b32 s28, s35, 3")
        A("s_lshr_b32 s35, s35, 2")
        A("s_lshl_b32 s36, s36, 3")
        A("s_add_u32 s29, s36, s35")
        A("s_lshl_b32 s39, s28, 5")
        A("s_add_u32 s39, s39, s29")
        A("s_lshl_b32 s39, s39, 1")
        A("s_add_u32 s30, s39, s38")
        A("s_lshl_b32 s33, s28, 1")
        A("s_add_u32 s33, s33, s38")
        A("s_lshl_b32 s31, s29, 1")
        A("s_add_u32 s31, s31, s38")
    else:
        if rot:
            A(f"s_add_u32 s32, s2, {rot}")
            A("s_and_b32 s32, s32, 7")
        else:
            A("s_and_b32 s32, s2, 7")
        A("s_lshr_b32 s35, s2, 3")
        A("s_lshr_b32 s36, s35, 3")
        A("s_and_b32 s37, s35, 7")
        A("s_lshr_b32 s28, s37, 1")
        A("s_and_b32 s38, s37, 1")
        if hmap == 0:
            A("s_lshl_b32 s39, s36, 3")
            A("s_add_u32 s29, s32, s39")
        elif hmap == 1:
            A("s_lshl_b32 s39, s32, 2")
            A("s_add_u32 s29, s36, s39")
        elif hmap == 2:
            A("s_lshl_b32 s39, s32, 1")
            A("s_and_b32 s29, s36, 1")
            A("s_add_u32 s29, s29, s39")
            A("s_lshr_b32 s39, s36, 1")
            A("s_lshl_b32 s39, s39, 4")
            A("s_add_u32 s29, s29, s39")
        elif hmap == 3:
            A("s_lshl_b32 s39, s36, 3")
            A("s_lshl_b32 s29, s36, 1")
            A("s_xor_b32 s29, s29, s32")
            A("s_add_u32 s29, s29, s39")
        A("s_lshl_b32 s39, s28, 5")
        A("s_add_u32 s39, s39, s29")
        A("s_lshl_b32 s39, s39, 1")
        A("s_add_u32 s30, s39, s38")
        A("s_lshl_b32 s33, s36, 1")
        A("s_add_u32 s33, s33, s38")
        A("s_lshl_b32 s31, s33, 3")
        A("s_add_u32 s31, s31, s32")
    A("v_and_b32 v2, 15, v0")
    A("v_lshrrev_b32 v3, 4, v0")
    A("v_and_b32 v8, 1, v2")
    A("v_lshlrev_b32 v8, 4, v8")
    A("v_mov_b32 v9, 0xffff")
    A("v_lshlrev_b32 v9, v8, v9")
    A("v_lshrrev_b32 v10, 1, v2")
    for r in range(4):
        A(f"v_cmp_eq_u32 vcc, {r}, v10")
        nop(2)
        A(f"v_cndmask_b32 v{4+r}, 0, v9, vcc")
    A("s_waitcnt lgkmcnt(0)")
    if stamps:
        A("s_mov_b32 s84, s26")
        A("s_and_b32 s85, s27, 0xffff")
        A(f"s_mov_b32 s86, {WS_SIZE}")
        A("s_mov_b32 s87, 0x20000")
        A("s_lshl_b32 s88, s2, 3")
        A("s_add_u32 s88, s88, s3")
        A("s_lshl_b32 s88, s88, 6")
        A(f"s_add_u32 s88, s88, {WS_DBG}")
        A("v_mov_b32 v62, 0")
        A("v_mov_b32 v63, v0")
    stamp(0)
    A("s_cmp_ge_u32 s3, 4")
    A("s_cbranch_scc1 L_service")

    RING = 128
    Q = 12
    S = 16
    SC = 32
    AR = 64
    D = 80
    T = 84
    A("s_lshl_b32 s35, s30, 20")
    A("s_lshr_b32 s36, s30, 12")
    A("s_add_u32 s40, s6, s35")
    A("s_addc_u32 s41, s7, s36")
    A("s_and_b32 s41, s41, 0xffff")
    A("s_mov_b32 s42, 0x100000")
    A("s_mov_b32 s43, 0x20000")
    A("s_add_u32 s44, s8, s35")
    A("s_addc_u32 s45, s9, s36")
    A("s_and_b32 s45, s45, 0xffff")
    A(f"s_mul_i32 s35, s3, {BLK}")
    A("v_lshlrev_b32 v11, 4, v0")
    A("v_add_u32 v11, s35, v11")
    if STG:
        if sidx:
            A("s_lshr_b32 s55, s30, 4")
            A("s_and_b32 s35, s30, 1")
            if sidx == 1:
                A("s_lshl_b32 s55, s55, 1")
            else:
                A("s_lshl_b32 s35, s35, 4")
            A("s_add_u32 s55, s55, s35")
            A(f"s_mul_i32 s55, s55, {STG * 4 * BLK}")
        elif smask:
            A(f"s_lshr_b32 s55, s30, {ssh}")
            A(f"s_and_b32 s55, s55, {smask}")
            A(f"s_mul_i32 s55, s55, {STG * 4 * BLK}")
        else:
            A(f"s_mul_i32 s55, s30, {STG * 4 * BLK}")
        A("s_and_b32 s55, s55, 0xfffff")
        A("s_mov_b32 s46, s55")
    else:
        A("s_mov_b32 s46, 0")

    assert PREV % GS == 0 and LAL <= PREV <= 32 and LAL % GS == 0 and PRE % GS == 0 and LAL <= PRE <= 32 and LAL + GS <= 32 and 16 % GS == 0

    def issue_load(m):
        r = RING + (m % 32) * 4
        per = min(BLK // 1024, 4)
        A(f"buffer_load_dwordx4 v[{r}:{r+3}], v11, s[40:43], s46 offen offset:{(m % per)*1024} {kpol}")
        if m % per == per - 1:
            if BLK <= 4096:
                inc = 4 * BLK
            elif BLK == 262144:
                inc = 4096
            else:
                nb = BLK // 1024
                assert nb <= 32
                inc = 4096 if (m % nb) != nb - 1 else 4 * BLK - (BLK - 4096)
            A(f"s_add_u32 s46, s46, {inc}")
            if STG:
                A("s_and_b32 s46, s46, 0xfffff")

    for m in range(LAL):
        if B0 and m == NPRE:
            A("s_barrier")
        issue_load(m)
    if B0 and NPRE >= LAL:
        A("s_barrier")
    for m0 in range(LAL, PRE, GS):
        A(f"s_waitcnt vmcnt({LAL - GS})")
        for m in range(m0, m0 + GS):
            issue_load(m)
    A("s_mov_b32 s48, 0xaaaaaaaa")
    A("s_mov_b32 s49, 0xaaaaaaaa")
    A("s_mov_b32 s50, 0xcccccccc")
    A("s_mov_b32 s51, 0xcccccccc")
    A(f"s_mov_b32 s52, {hex(SCALE)}")
    A(f"s_mov_b32 s53, {hex(LOG2E)}")
    A("v_lshlrev_b32 v10, 5, v2")
    for r in range(4):
        A(f"v_mov_b32 v{D+r}, 0")
    stamp(1)
    A("s_barrier")
    stamp(2)
    A("v_lshlrev_b32 v9, 4, v2")
    A(f"ds_read_b128 v[{Q}:{Q+3}], v9 offset:{L_Q}")
    A("s_waitcnt lgkmcnt(0)")
    A("s_mov_b32 s47, 0")
    nop(2)

    A("s_mov_b64 vcc, -1")
    A("L_ktrip:")
    for half in range(2):
        for n in range(16 * half, 16 * half + 16, GS):
            if n == 32 - LAL:
                A("s_cmp_lg_u32 s47, 7")
                A("s_cbranch_scc1 L_knosw")
                A("s_mov_b32 s40, s44")
                A("s_mov_b32 s41, s45")
                A("s_mov_b32 s46, s55" if STG else "s_mov_b32 s46, 0")
                A("L_knosw:")
            A(f"s_waitcnt vmcnt({LAL - GS})")
            skip = n + LAL < PRE
            if skip:
                A(f"s_cbranch_vccnz L_kskip{n}")
            for m in range(n + LAL, n + LAL + GS):
                issue_load(m)
            if skip:
                A(f"L_kskip{n}:")
            for r in range(4):
                for i in range(GS):
                    src = RING + (n + i) * 4 + r
                    d = S + (n + i) % 16
                    c = "0" if r == 0 else f"v{d}"
                    A(f"v_dot2_f32_bf16 v{d}, v{src}, v{Q+r}, {c}")
        nop(3)
        for j in range(8):
            A(f"v_add_f32_dpp v{S+j}, v{S+j}, v{S+j} row_ror:8 row_mask:0xf bank_mask:0x3")
        for j in range(8):
            A(f"v_add_f32_dpp v{S+j}, v{S+j+8}, v{S+j+8} row_ror:8 row_mask:0xf bank_mask:0xc")
        for j in range(4):
            A(f"v_add_f32_dpp v{S+j}, v{S+j}, v{S+j} row_half_mirror row_mask:0xf bank_mask:0x5")
        for j in range(4):
            A(f"v_add_f32_dpp v{S+j}, v{S+j+4}, v{S+j+4} row_half_mirror row_mask:0xf bank_mask:0xa")
        A(f"v_cndmask_b32_e64 v{T+0}, v{S+2}, v{S+0}, s[50:51]")
        A(f"v_cndmask_b32_e64 v{T+2}, v{S+0}, v{S+2}, s[50:51]")
        A(f"v_cndmask_b32_e64 v{T+1}, v{S+3}, v{S+1}, s[50:51]")
        A(f"v_cndmask_b32_e64 v{T+3}, v{S+1}, v{S+3}, s[50:51]")
        nop(1)
        A(f"v_add_f32_dpp v{T+2}, v{T+0}, v{T+2} quad_perm:[2,3,0,1] row_mask:0xf bank_mask:0xf")
        A(f"v_add_f32_dpp v{T+3}, v{T+1}, v{T+3} quad_perm:[2,3,0,1] row_mask:0xf bank_mask:0xf")
        A(f"v_cndmask_b32_e64 v{T+0}, v{T+3}, v{T+2}, s[48:49]")
        A(f"v_cndmask_b32_e64 v{T+1}, v{T+2}, v{T+3}, s[48:49]")
        nop(2)
        A(f"v_add_f32_dpp v{T+1}, v{T+0}, v{T+1} quad_perm:[1,0,3,2] row_mask:0xf bank_mask:0xf")
        A(f"v_cvt_pk_bf16_f32 v{T+1}, v{T+1}, v{T+1}")
        A(f"v_lshlrev_b32 v{T+1}, 16, v{T+1}")
        A(f"v_mul_f32 v{T+1}, s52, v{T+1}")
        A(f"v_cvt_pk_bf16_f32 v{T+1}, v{T+1}, v{T+1}")
        if half == 0:
            A(f"v_lshlrev_b32 v{T+4}, 16, v{T+1}")
        else:
            for kk in range(14):
                A(f"v_mov_b32 v{SC+kk}, v{SC+kk+2}")
            A(f"v_mov_b32 v{SC+14}, v{T+4}")
            A(f"v_lshlrev_b32 v{SC+15}, 16, v{T+1}")
    if stamps:
        for tt, idx in ((0, 7), (1, 8), (2, 9)):
            A(f"s_cmp_lg_u32 s47, {tt}")
            A(f"s_cbranch_scc1 L_nos{tt}")
            stamp(idx)
            A(f"L_nos{tt}:")
    A("s_mov_b64 vcc, 0")
    A("s_add_u32 s47, s47, 1")
    A("s_cmp_lt_u32 s47, 8")
    A("s_cbranch_scc1 L_ktrip")
    stamp(3)
    for m in range(LAL, PREV):
        issue_load(m)

    def allreduce(op, reg, tmp):
        for sh in (8, 4, 2, 1):
            nop(2)
            A(f"{op}_dpp v{reg}, v{reg}, v{reg} row_ror:{sh} row_mask:0xf bank_mask:0xf")
        A(f"v_mov_b32 v{tmp}, v{reg}")
        nop(2)
        A(f"v_permlane16_swap_b32 v{reg}, v{tmp}")
        nop(1)
        A(f"{op} v{reg}, v{reg}, v{tmp}")
        A(f"v_mov_b32 v{tmp}, v{reg}")
        nop(2)
        A(f"v_permlane32_swap_b32 v{reg}, v{tmp}")
        nop(1)
        A(f"{op} v{reg}, v{reg}, v{tmp}")

    M = T
    A(f"v_max3_f32 v{M}, v{SC}, v{SC+1}, v{SC+2}")
    for kk in range(3, 15, 2):
        A(f"v_max3_f32 v{M}, v{M}, v{SC+kk}, v{SC+kk+1}")
    A(f"v_max_f32 v{M}, v{M}, v{SC+15}")
    allreduce("v_max_f32", M, T + 2)
    for kk in range(16):
        A(f"v_sub_f32 v{SC+kk}, v{SC+kk}, v{M}")
    for kk in range(16):
        A(f"v_mul_f32 v{SC+kk}, s53, v{SC+kk}")
    for kk in range(16):
        A(f"v_exp_f32 v{SC+kk}, v{SC+kk}")
    nop(1)
    LS = T + 1
    A(f"v_add_f32 v{LS}, v{SC}, v{SC+1}")
    for kk in range(2, 16):
        A(f"v_add_f32 v{LS}, v{LS}, v{SC+kk}")
    for kk in range(16):
        A(f"v_cvt_pk_bf16_f32 v{SC+kk}, v{SC+kk}, v{SC+kk}")
    allreduce("v_add_f32", LS, T + 2)
    A("s_lshl_b32 s35, s3, 3")
    A(f"v_mov_b32 v{T+3}, s35")
    A(f"ds_write_b64 v{T+3}, v[{M}:{M+1}] offset:{L_ST}")
    A("s_waitcnt lgkmcnt(0)")
    A("s_barrier")
    stamp(4)

    A("s_mov_b32 s47, 0")
    A("s_mov_b64 vcc, -1")
    if ATS:
        A("s_mov_b32 s56, s26")
        A("s_and_b32 s57, s27, 0xffff")
        A(f"s_mov_b32 s58, {WS_SIZE}")
        A("s_mov_b32 s59, 0x20000")
        A("s_lshr_b32 s54, s30, 1")
        A("s_lshl_b32 s54, s54, 2")
        A("s_add_u32 s54, s54, s3")
        A("s_lshl_b32 s54, s54, 7")
        A("s_add_u32 s54, s54, 0x400000")
        A("v_mov_b32 v48, 0x12345")
    def vloop(label, lal, end, first):
        A(f"{label}:")
        for n in range(0, 32, GS):
            for i in range(GS):
                pr = SC + ((n + i) >> 4)
                j = (n + i) & 15
                for r in range(4):
                    A(f"v_and_b32_dpp v{AR+4*i+r}, v{pr}, v{4+r} row_newbcast:{j} row_mask:0xf bank_mask:0xf")
            if n + GS == 32:
                for kk in range(14):
                    A(f"v_mov_b32 v{SC+kk}, v{SC+kk+2}")
            A(f"s_waitcnt vmcnt({lal - GS})")
            skip = first and n + lal < PREV
            if skip:
                A(f"s_cbranch_vccnz {label}_skip{n}")
            for m in range(n + lal, n + lal + GS):
                issue_load(m)
            if skip:
                A(f"{label}_skip{n}:")
                nop(1)
            if ATS and n % 8 == 2:
                A(f"s_cmp_lt_u32 s47, {8 - ATS}")
                A(f"s_cbranch_scc1 {label}_noat{n}")
                A(f"s_cmp_ge_u32 s3, {ATW}")
                A(f"s_cbranch_scc1 {label}_noat{n}")
                A("s_mov_b64 exec, 1")
                A(f"buffer_atomic_swap v48, off, s[56:59], s54 {atpol}")
                A("s_mov_b64 exec, -1")
                A("s_add_u32 s54, s54, 4")
                A(f"{label}_noat{n}:")
            for i in range(GS):
                src = RING + (n + i) * 4
                A(f"v_mfma_f32_16x16x32_bf16 v[{D}:{D+3}], v[{AR+4*i}:{AR+4*i+3}], v[{src}:{src+3}], v[{D}:{D+3}]")
        if first:
            A("s_mov_b64 vcc, 0")
        A("s_add_u32 s47, s47, 1")
        A(f"s_cmp_lt_u32 s47, {end}")
        A(f"s_cbranch_scc1 {label}")
    if LAL2:
        assert LAL2 % GS == 0 and LAL2 + GS <= 32 and LAL2 >= LAL
        vloop("L_vtrip", LAL, NT1, True)
        for m in range(LAL, LAL2):
            issue_load(m)
        vloop("L_vtripb", LAL2, 8, False)
    else:
        vloop("L_vtrip", LAL, 8, True)
    stamp(5)
    A("s_lshl_b32 s35, s3, 9")
    A("v_lshlrev_b32 v8, 4, v3")
    A("v_add3_u32 v8, v8, v10, s35")
    A("s_mov_b32 exec_hi, 0")
    nop(4)
    A(f"ds_write_b128 v8, v[{D}:{D+3}] offset:{L_OP}")
    A("s_waitcnt lgkmcnt(0)")
    A("s_barrier")
    stamp(6)
    stamp_flush()
    A("s_endpgm")

    A("L_service:")
    if prio:
        A(f"s_setprio {prio}")
    VW = 1
    M2 = 12
    PC = 14
    VE = 19
    DQ = 20
    A2 = 28
    Y = 32
    AR = 52
    VXR = 60
    VXR2 = 60
    G = 64
    T = 80
    BUF = 96
    XU = 176
    XS = 216
    A("s_sub_u32 s34, s3, 4")
    def srd(base, ptr, size):
        A(f"s_mov_b32 s{base}, s{ptr}")
        A(f"s_and_b32 s{base+1}, s{ptr+1}, 0xffff")
        A(f"s_mov_b32 s{base+2}, {size}")
        A(f"s_mov_b32 s{base+3}, 0x20000")
    srd(64, 26, WS_SIZE)
    srd(40, 4, 4 * 1280)
    for j in range(4):
        A(f"s_mov_b32 s{92+j}, {hex(0x07060500 + j)}")
    A("s_mov_b32 s96, 0x0c0c0400")
    A("s_mov_b32 s97, 0x0c040100")
    A("s_mov_b32 s98, 0x04020100")

    def embed(dst, src, vtag, n):
        if RND:
            for r in range(n):
                A(f"v_add_u32 v{dst+r}, 0x80, v{src+r}")
            src = dst
        for r in range(n):
            A(f"v_perm_b32 v{dst+r}, v{src+r}, v{vtag}, s{92 + (r & 3)}")

    def extract(dst, w):
        A(f"v_perm_b32 v{dst}, v{w+1}, v{w}, s96")
        A(f"v_perm_b32 v{dst}, v{w+2}, v{dst}, s97")
        A(f"v_perm_b32 v{dst}, v{w+3}, v{dst}, s98")

    def strip(w, n):
        for r in range(n):
            A(f"v_and_b32 v{w+r}, 0xffffff00, v{w+r}")

    def xsum(regs, tmps, steps):
        for st_ in steps:
            if st_ == "r8":
                nop(2)
                for r in regs:
                    A(f"v_add_f32_dpp v{r}, v{r}, v{r} row_ror:8 row_mask:0xf bank_mask:0xf")
            else:
                for r, t_ in zip(regs, tmps):
                    A(f"v_mov_b32 v{t_}, v{r}")
                nop(2)
                for r, t_ in zip(regs, tmps):
                    A(f"v_permlane{st_[1:]}_swap_b32 v{r}, v{t_}")
                nop(1)
                for r, t_ in zip(regs, tmps):
                    A(f"v_add_f32 v{r}, v{r}, v{t_}")
    A("s_cmp_eq_u32 s34, 0")
    A("s_cbranch_scc0 L_idle")
    A(f"buffer_load_dword v{VE}, off, s[64:67], 0 offset:{WS_E} sc1")
    A("v_lshrrev_b32 v8, 2, v2")
    A("v_mul_u32_u24 v8, 1280, v8")
    A("v_and_b32 v10, 3, v2")
    A("v_lshl_add_u32 v11, v10, 2, v3")
    A("v_lshl_add_u32 v9, v11, 1, v8")
    A("v_lshl_add_u32 v11, v3, 2, v10")
    A("v_lshl_add_u32 v8, v11, 4, v8")
    if newmap or perm:
        A("s_mov_b32 s80, s33")
    else:
        A("s_lshr_b32 s80, s2, 3")
        A("s_and_b32 s80, s80, 7")
    Q4 = Q4 and FQ
    NQ = 10 if Q4 else 5
    PQ = Y if Q4 else PC
    if Q4:
        A("s_lshr_b32 s80, s80, 1")
    A(f"s_mul_i32 s36, s80, {32*NQ}")
    XG = [44, 48, 52, 56, 72] if Q4 else [XS + 4 * i for i in range(5)]
    for i in range(5):
        A(f"buffer_load_dwordx4 v[{XG[i]}:{XG[i]+3}], v8, s[40:43], 0 offen offset:{i*256}")
    if Q4:
        A("s_bitcmp1_b32 s2, 3")
        A("s_cbranch_scc0 L_noq1")
    for q in range(NQ):
        A(f"buffer_load_ushort v{PQ+q}, v9, s[40:43], s36 offen offset:{q*32}")
    srd(44, 10, 640 * 8192)
    A("v_lshlrev_b32 v10, 13, v3")
    A("v_lshl_add_u32 v10, v2, 4, v10")
    A(f"s_mul_i32 s35, s80, {16*NQ*8192}")
    A("s_lshl_b32 s36, s29, 8")
    A("s_add_u32 s35, s35, s36")
    for n in range(4 * NQ):
        r = BUF + 4 * n
        if not nowq:
            A(f"buffer_load_dwordx4 v[{r}:{r+3}], v10, s[44:47], s35 offen {apol}")
        if n != 4 * NQ - 1:
            A(f"s_add_u32 s35, s35, {4*8192}")
    if Q4:
        A("L_noq1:")
    if B0:
        A("s_barrier")
    stamp(12)
    A(f"s_lshl_b32 s81, s29, {13 if Q4 else 14 if FQ else 15}")
    A(f"s_lshl_b32 s36, s80, {11 if FQ else 12}")
    A("s_add_u32 s81, s81, s36")
    A(f"s_add_u32 s81, s81, {WS_QP}")
    def masks2():
        A("v_and_b32 v8, 1, v2")
        A("v_lshlrev_b32 v8, 4, v8")
        A("v_mov_b32 v9, 0xffff")
        A("v_lshlrev_b32 v9, v8, v9")
        A("v_and_b32 v10, 2, v2")
        A("v_cmp_eq_u32 vcc, 0, v10")
        for r in range(8):
            A(f"v_mov_b32 v{DQ+r}, 0")
        A(f"v_cndmask_b32 v{M2}, 0, v9, vcc")
        A("v_cmp_ne_u32 vcc, 0, v10")
        nop(2)
        A(f"v_cndmask_b32 v{M2+1}, 0, v9, vcc")
    masks2()
    if Q4:
        A("s_bitcmp1_b32 s2, 3")
        A("s_cbranch_scc1 L_qw")
        A("s_waitcnt vmcnt(0)")
        A("L_qw:")
    A("s_waitcnt vmcnt(%d)" % (0 if nowq else 4 * NQ))
    stamp(1)
    def unpack(dst, r):
        A(f"v_lshlrev_b32 v{dst}, 16, v{XG[r >> 2] + (r & 3)}")
        A(f"v_and_b32 v{dst+1}, 0xffff0000, v{XG[r >> 2] + (r & 3)}")
    if Q4:
        A(f"v_readfirstlane_b32 s72, v{VE}")
        for r in range(4):
            unpack(G + 2 * r, r)
        for r0 in range(4, 20, 4):
            for a in range(4):
                unpack(T + 8 + 2 * a, r0 + a)
            for a in range(4):
                A(f"v_pk_add_f32 v[{G+2*a}:{G+2*a+1}], v[{G+2*a}:{G+2*a+1}], v[{T+8+2*a}:{T+9+2*a}]")
    else:
        for r in range(20):
            unpack(XU + 2 * r, r)
        A(f"v_readfirstlane_b32 s72, v{VE}")
        for a in range(4):
            A(f"v_pk_add_f32 v[{G+2*a}:{G+2*a+1}], v[{XU+2*a}:{XU+2*a+1}], v[{XU+8+2*a}:{XU+8+2*a+1}]")
        for r in range(8, 20):
            a = r & 3
            A(f"v_pk_add_f32 v[{G+2*a}:{G+2*a+1}], v[{G+2*a}:{G+2*a+1}], v[{XU+2*r}:{XU+2*r+1}]")
    A(f"v_pk_add_f32 v[{G}:{G+1}], v[{G}:{G+1}], v[{G+2}:{G+3}]")
    A(f"v_pk_add_f32 v[{G+4}:{G+5}], v[{G+4}:{G+5}], v[{G+6}:{G+7}]")
    A(f"s_mul_i32 s72, s72, {TAG_A}")
    A(f"v_pk_add_f32 v[{G}:{G+1}], v[{G}:{G+1}], v[{G+4}:{G+5}]")
    A(f"s_add_u32 s72, s72, {TAG_C}")
    A(f"v_add_f32 v{T}, v{G}, v{G+1}")

    def breduce(reg, tmp):
        nop(2)
        A(f"v_add_f32_dpp v{reg}, v{reg}, v{reg} quad_perm:[1,0,3,2] row_mask:0xf bank_mask:0xf")
        nop(2)
        A(f"v_add_f32_dpp v{reg}, v{reg}, v{reg} quad_perm:[2,3,0,1] row_mask:0xf bank_mask:0xf")
        A(f"v_mov_b32 v{tmp}, v{reg}")
        nop(2)
        A(f"v_permlane16_swap_b32 v{reg}, v{tmp}")
        nop(1)
        A(f"v_add_f32 v{reg}, v{reg}, v{tmp}")
        A(f"v_mov_b32 v{tmp}, v{reg}")
        nop(2)
        A(f"v_permlane32_swap_b32 v{reg}, v{tmp}")
        nop(1)
        A(f"v_add_f32 v{reg}, v{reg}, v{tmp}")

    breduce(T, T + 1)
    A(f"v_mul_f32 v{T}, 0x3acccccd, v{T}")
    A(f"v_mov_b32 v{T+1}, v{T}")
    if Q4:
        for r0 in range(0, 20, 4):
            for a in range(4):
                unpack(T + 8 + 2 * a, r0 + a)
            for a in range(4):
                t_ = T + 8 + 2 * a
                A(f"v_pk_add_f32 v[{t_}:{t_+1}], v[{t_}:{t_+1}], v[{T}:{T+1}] neg_lo:[0,1] neg_hi:[0,1]")
            for a in range(4):
                t_ = T + 8 + 2 * a
                if r0 == 0:
                    A(f"v_pk_mul_f32 v[{G+2*a}:{G+2*a+1}], v[{t_}:{t_+1}], v[{t_}:{t_+1}]")
                else:
                    A(f"v_pk_fma_f32 v[{G+2*a}:{G+2*a+1}], v[{t_}:{t_+1}], v[{t_}:{t_+1}], v[{G+2*a}:{G+2*a+1}]")
    else:
        for r in range(20):
            A(f"v_pk_add_f32 v[{XU+2*r}:{XU+2*r+1}], v[{XU+2*r}:{XU+2*r+1}], v[{T}:{T+1}] neg_lo:[0,1] neg_hi:[0,1]")
        for a in range(4):
            A(f"v_pk_mul_f32 v[{G+2*a}:{G+2*a+1}], v[{XU+2*a}:{XU+2*a+1}], v[{XU+2*a}:{XU+2*a+1}]")
        for r in range(4, 20):
            a = r & 3
            A(f"v_pk_fma_f32 v[{G+2*a}:{G+2*a+1}], v[{XU+2*r}:{XU+2*r+1}], v[{XU+2*r}:{XU+2*r+1}], v[{G+2*a}:{G+2*a+1}]")
    A(f"v_pk_add_f32 v[{G}:{G+1}], v[{G}:{G+1}], v[{G+2}:{G+3}]")
    A(f"v_pk_add_f32 v[{G+4}:{G+5}], v[{G+4}:{G+5}], v[{G+6}:{G+7}]")
    A(f"v_pk_add_f32 v[{G}:{G+1}], v[{G}:{G+1}], v[{G+4}:{G+5}]")
    A(f"v_add_f32 v{T+1}, v{G}, v{G+1}")
    breduce(T + 1, T + 2)
    A(f"v_mul_f32 v{T+1}, 0x3acccccd, v{T+1}")
    A(f"v_cvt_pk_bf16_f32 v{T}, v{T}, v{T}")
    A(f"v_cvt_pk_bf16_f32 v{T+1}, v{T+1}, v{T+1}")
    A(f"v_lshlrev_b32 v{T}, 16, v{T}")
    A(f"v_lshlrev_b32 v{T+1}, 16, v{T+1}")
    A(f"v_add_f32 v{T+1}, 0x3727c5ac, v{T+1}")
    A(f"v_cvt_pk_bf16_f32 v{T+1}, v{T+1}, v{T+1}")
    A(f"v_lshlrev_b32 v{T+1}, 16, v{T+1}")
    A(f"v_sqrt_f32 v{T+1}, v{T+1}")
    for q in range(NQ):
        A(f"v_lshlrev_b32 v{PQ+q}, 16, v{PQ+q}")
    A(f"v_cvt_pk_bf16_f32 v{T+1}, v{T+1}, v{T+1}")
    A(f"v_lshlrev_b32 v{T+1}, 16, v{T+1}")
    A(f"v_rcp_f32 v{T+2}, v{T+1}")

    def normalize(regs):
        for r in regs:
            A(f"v_sub_f32 v{r}, v{r}, v{T}")
        for r in regs:
            A(f"v_cvt_pk_bf16_f32 v{r}, v{r}, v{r}")
        for r in regs:
            A(f"v_lshlrev_b32 v{r}, 16, v{r}")
        for k, r in enumerate(regs):
            A(f"v_mul_f32 v{T+4+k}, v{r}, v{T+2}")
        for k, r in enumerate(regs):
            A(f"v_fma_f32 v{r}, -v{T+4+k}, v{T+1}, v{r}")
        for k, r in enumerate(regs):
            A(f"v_fma_f32 v{r}, v{r}, v{T+2}, v{T+4+k}")
        for r in regs:
            A(f"v_cvt_pk_bf16_f32 v{r}, v{r}, v{r}")
    if not Q4:
        normalize([PC + q for q in range(5)])
    A(f"v_mov_b32 v{T+3}, s72")
    A("v_lshrrev_b32 v8, 2, v2")
    A("v_lshlrev_b32 v8, 4, v8")
    A(f"ds_write_b128 v8, v[{T}:{T+3}] offset:{L_TAG}")
    if Q4:
        A("s_bitcmp1_b32 s2, 3")
        A("s_cbranch_scc0 L_noq2")
        normalize([PQ + q for q in range(NQ)])
    stamp(14)

    def mkA2(setidx, n, pc):
        q, jj = n >> 2, n & 3
        for r in range(2):
            A(f"v_and_b32_dpp v{A2+2*setidx+r}, v{pc+q}, v{M2+r} quad_perm:[{jj},{jj},{jj},{jj}] row_mask:0xf bank_mask:0xf")

    def prod_mfma(NW, pc=PC):
        nop(2)
        mkA2(0, 0, pc)
        for n in range(NW):
            if n + 1 < NW:
                mkA2((n + 1) & 1, n + 1, pc)
            else:
                nop(2)
            if (n & 1) == 0:
                A(f"s_waitcnt vmcnt({NW - 2 - n})")
            b = BUF + 4 * n
            a = A2 + 2 * (n & 1)
            A(f"v_mfma_f32_16x16x16_bf16 v[{DQ}:{DQ+3}], v[{a}:{a+1}], v[{b}:{b+1}], v[{DQ}:{DQ+3}]")
            A(f"v_mfma_f32_16x16x16_bf16 v[{DQ+4}:{DQ+7}], v[{a}:{a+1}], v[{b+2}:{b+3}], v[{DQ+4}:{DQ+7}]")

    def publish(pol="sc1", nst=4, fmt=0):
        A("v_lshlrev_b32 v11, 4, v0")
        if fmt:
            A(f"v_mov_b32 v{G+8}, s72")
            nop(10)
            embed(G, DQ, G + 8, 8)
            for st_ in range(2):
                A(f"buffer_store_dwordx4 v[{G+4*st_}:{G+4*st_+3}], v11, s[64:67], s81 offen offset:{st_*1024} {pol}")
            return
        for r in range(8):
            A(f"v_mov_b32 v{G+2*r+1}, s72")
        for r in range(8):
            A(f"v_mov_b32 v{G+2*r}, v{DQ+r}")
        for st_ in range(nst):
            A(f"buffer_store_dwordx4 v[{G+4*st_}:{G+4*st_+3}], v11, s[64:67], s81 offen offset:{st_*1024} {pol}")

    prod_mfma(4 * NQ, PQ)
    stamp(15)
    publish(qppol, 4, FQ)
    if Q4:
        A("L_noq2:")
    if FQ:
        A("v_and_b32 v10, 1, v3")
        A("v_lshlrev_b32 v10, 10, v10")
        A("v_lshrrev_b32 v9, 1, v3")
        A("v_lshl_add_u32 v10, v9, 11, v10")
        A("v_lshl_add_u32 v10, v2, 4, v10")
        A(f"s_lshl_b32 s82, s29, {13 if Q4 else 14}")
        A("s_lshl_b32 s36, s28, 8")
        A("s_add_u32 s82, s82, s36")
        A(f"s_add_u32 s82, s82, {WS_QP}")
        A(f"s_mov_b32 s36, {SPIN}")
        if ACK:
            A("s_waitcnt vmcnt(0)")
        stamp(10)
        A("L_pollq:")
        A("s_mov_b32 s35, s82")
        NG = 2 if Q4 else 4
        for n in range(NG):
            r = BUF + 4 * n
            A(f"buffer_load_dwordx4 v[{r}:{r+3}], v10, s[64:67], s35 offen {qgpol}")
            if n != NG - 1:
                A("s_add_u32 s35, s35, 4096")
        A("s_waitcnt vmcnt(0)")
        for n in range(NG):
            extract(T + n, BUF + 4 * n)
        if Q4:
            A(f"v_min_u32 v{T+4}, v{T}, v{T+1}")
            A(f"v_max_u32 v{T+5}, v{T}, v{T+1}")
        else:
            A(f"v_min3_u32 v{T+4}, v{T}, v{T+1}, v{T+2}")
            A(f"v_max3_u32 v{T+5}, v{T}, v{T+1}, v{T+2}")
            A(f"v_min_u32 v{T+4}, v{T+4}, v{T+3}")
            A(f"v_max_u32 v{T+5}, v{T+5}, v{T+3}")
        A(f"v_cmp_ne_u32 vcc, s72, v{T+4}")
        A(f"v_cmp_ne_u32_e64 s[74:75], s72, v{T+5}")
        nop(2)
        A("s_or_b64 s[74:75], vcc, s[74:75]")
        A("s_cbranch_scc0 L_pollq_done")
        A("s_sub_u32 s36, s36, 1")
        A("s_cmp_lg_u32 s36, 0")
        A("s_cbranch_scc1 L_pollq")
        A("L_pollq_done:")
        strip(BUF, 4 * NG)
        for j in range(4):
            A(f"v_add_f32 v{T+j}, v{BUF+j}, v{BUF+4+j}")
            if not Q4:
                A(f"v_add_f32 v{T+4+j}, v{BUF+8+j}, v{BUF+12+j}")
        if not Q4:
            for j in range(4):
                A(f"v_add_f32 v{T+j}, v{T+j}, v{T+4+j}")
        xsum([T + j for j in range(4)], [T + 4 + j for j in range(4)], ["s32"])
        A("v_and_b32 v9, 1, v3")
        A("v_lshlrev_b32 v9, 3, v9")
        A(f"v_cvt_pk_bf16_f32 v{T}, v{T}, v{T+1}")
        A(f"v_cvt_pk_bf16_f32 v{T+1}, v{T+2}, v{T+3}")
        A("v_lshl_add_u32 v9, v2, 4, v9")
        A(f"ds_write_b64 v9, v[{T}:{T+1}] offset:{L_Q}")
    else:
        A("v_lshlrev_b32 v10, 10, v3")
        A("v_lshl_add_u32 v10, v2, 4, v10")
        A("s_lshl_b32 s82, s29, 15")
        A("s_lshl_b32 s36, s28, 8")
        A("s_add_u32 s82, s82, s36")
        A(f"s_add_u32 s82, s82, {WS_QP}")
        A(f"s_mov_b32 s36, {SPIN}")
        if ACK:
            A("s_waitcnt vmcnt(0)")
        stamp(10)
        A("L_pollq:")
        A("s_mov_b32 s35, s82")
        for n in range(8):
            r = BUF + 4 * n
            A(f"buffer_load_dwordx4 v[{r}:{r+3}], v10, s[64:67], s35 offen {qgpol}")
            if n != 7:
                A("s_add_u32 s35, s35, 4096")
        A("s_waitcnt vmcnt(0)")
        A(f"v_min3_u32 v{T}, v{BUF+1}, v{BUF+3}, v{BUF+5}")
        A(f"v_max3_u32 v{T+1}, v{BUF+1}, v{BUF+3}, v{BUF+5}")
        for q in range(7, 31, 4):
            A(f"v_min3_u32 v{T}, v{T}, v{BUF+q}, v{BUF+q+2}")
            A(f"v_max3_u32 v{T+1}, v{T+1}, v{BUF+q}, v{BUF+q+2}")
        A(f"v_min_u32 v{T}, v{T}, v{BUF+31}")
        A(f"v_max_u32 v{T+1}, v{T+1}, v{BUF+31}")
        A(f"v_cmp_ne_u32 vcc, s72, v{T}")
        A(f"v_cmp_ne_u32_e64 s[74:75], s72, v{T+1}")
        nop(2)
        A("s_or_b64 s[74:75], vcc, s[74:75]")
        A("s_cbranch_scc0 L_pollq_done")
        A("s_sub_u32 s36, s36, 1")
        A("s_cmp_lg_u32 s36, 0")
        A("s_cbranch_scc1 L_pollq")
        A("L_pollq_done:")
        for a in range(4):
            A(f"v_add_f32 v{T+2*a}, v{BUF+8*a}, v{BUF+8*a+4}")
            A(f"v_add_f32 v{T+2*a+1}, v{BUF+8*a+2}, v{BUF+8*a+6}")
        for a in range(2):
            A(f"v_add_f32 v{T+4*a}, v{T+4*a}, v{T+4*a+2}")
            A(f"v_add_f32 v{T+4*a+1}, v{T+4*a+1}, v{T+4*a+3}")
        A(f"v_add_f32 v{T}, v{T}, v{T+4}")
        A(f"v_add_f32 v{T+1}, v{T+1}, v{T+5}")
        A("v_lshlrev_b32 v9, 2, v3")
        A(f"v_cvt_pk_bf16_f32 v{T}, v{T}, v{T+1}")
        A("v_lshl_add_u32 v9, v2, 4, v9")
        A(f"ds_write_b32 v9, v{T} offset:{L_Q}")
    A("s_waitcnt lgkmcnt(0)")
    stamp(13)
    A("s_branch L_b1")
    A("L_idle:")
    if B0:
        A("s_barrier")
    A("L_b1:")
    A("s_barrier")
    stamp(2)
    A("v_lshrrev_b32 v8, 2, v2")
    A("v_lshlrev_b32 v9, 4, v8")
    A(f"ds_read_b128 v[{T}:{T+3}], v9 offset:{L_TAG}")
    A("s_waitcnt lgkmcnt(0)")
    A(f"v_readfirstlane_b32 s72, v{T+3}")
    F4 = F4 and FF
    NF = 10 if F4 else 5
    PF = Y if F4 else PC
    NTM = 56 if F4 else 112

    def ftask(skip):
        if F4:
            A("s_bitcmp1_b32 s2, 3")
            A(f"s_cbranch_scc1 {skip}")
            A("s_lshr_b32 s99, s2, 4")
            A("s_lshl_b32 s99, s99, 3")
            A("s_and_b32 s36, s2, 7")
            A("s_or_b32 s99, s99, s36")
        else:
            A("s_mov_b32 s99, s2")
        A(f"s_cmp_ge_u32 s99, {2*NTM}")
        A(f"s_cbranch_scc1 {skip}")

    A("s_cmp_lg_u32 s34, 2")
    A("s_cbranch_scc1 L_common")
    ftask("L_common")
    if noffn:
        A("s_branch L_common")
    A(f"s_cmp_ge_u32 s99, {NTM}")
    A(f"s_cselect_b32 s36, {NTM}, 0")
    A("s_sub_u32 s36, s99, s36")
    A("s_mul_i32 s78, s36, 4682")
    A("s_lshr_b32 s78, s78, 16")
    A("s_mul_i32 s79, s78, 14")
    A("s_sub_u32 s79, s36, s79")
    A("v_mul_u32_u24 v8, 1280, v8")
    A("v_and_b32 v10, 3, v2")
    A("v_lshl_add_u32 v11, v10, 2, v3")
    A("v_lshl_add_u32 v9, v11, 1, v8")
    A(f"s_mul_i32 s36, s78, {32*NF}")
    for q in range(NF):
        A(f"buffer_load_ushort v{PF+q}, v9, s[40:43], s36 offen offset:{q*32}")
    A(f"s_cmp_ge_u32 s99, {NTM}")
    A("s_cbranch_scc1 L_ldU")
    srd(44, 16, 640 * 3456)
    A("s_branch L_ldF2")
    A("L_ldU:")
    srd(44, 18, 640 * 3456)
    A("L_ldF2:")
    A("v_mul_u32_u24 v1, 3456, v3")
    A("v_lshl_add_u32 v1, v2, 4, v1")
    A(f"s_mul_i32 s83, s78, {16*NF*3456}")
    A("s_lshl_b32 s36, s79, 8")
    A("s_add_u32 s83, s83, s36")
    for n in range(4 * NF):
        r = BUF + 4 * n
        if FP and n >= FP:
            A(f"s_waitcnt vmcnt({FP-1})")
        if not nofl:
            A(f"buffer_load_dwordx4 v[{r}:{r+3}], v1, s[44:47], s83 offen {apol}")
        if n != 4 * NF - 1:
            A(f"s_add_u32 s83, s83, {4*3456}")
    masks2()
    A("s_waitcnt vmcnt(%d)" % (0 if (nofl or FP) else 4 * NF))
    for q in range(NF):
        A(f"v_lshlrev_b32 v{PF+q}, 16, v{PF+q}")
    normalize([PF + q for q in range(NF)])
    prod_mfma(4 * NF, PF)
    stamp(15)
    A("L_common:")
    srd(56, 20, 1728 * 1280)
    srd(60, 12, 4096 * 1280)
    srd(68, 22, 4 * 1280)
    A(f"v_mul_u32_u24 v{VW}, 1280, v3")
    A(f"v_lshl_add_u32 v{VW}, v2, 4, v{VW}")
    for r in range(20):
        A(f"v_mov_b32 v{Y+r}, 0")
    A("s_mul_i32 s35, s28, 1280")
    if FY:
        A("s_min_u32 s36, s31, 19")
        A("s_lshl_b32 s36, s36, 6")
        A("s_add_u32 s35, s35, s36")
        A("v_and_b32 v10, 7, v0")
        A("v_lshlrev_b32 v10, 3, v10")
        A(f"buffer_load_dwordx2 v[{VXR2}:{VXR2+1}], v10, s[40:43], s35 offen")
    else:
        A("s_lshl_b32 s36, s31, 5")
        A("s_add_u32 s35, s35, s36")
        A("v_lshlrev_b32 v10, 2, v0")
        A(f"buffer_load_dword v{VXR}, v10, s[40:43], s35 offen")

    def mkA(setidx, preg, j):
        for r in range(4):
            A(f"v_and_b32_dpp v{AR+4*setidx+r}, v{preg}, v{4+r} row_newbcast:{j} row_mask:0xf bank_mask:0xf")

    def wd_first():
        A("s_mul_i32 s37, s31, 28")
        A("s_mul_i32 s36, s31, 24")
        A("s_add_u32 s36, s36, 192")
        A("s_cmp_lt_u32 s31, 48")
        A("s_cselect_b32 s37, s37, s36")

    def wd_loads():
        if FF:
            wd_first()
            A("s_mul_i32 s35, s37, 1280")
        else:
            A(f"s_mul_i32 s35, s31, {27*1280}")
        for kap in range(7):
            if FF and kap == 6:
                A(f"s_sub_u32 s36, s35, {4*1280}")
                A("s_cmp_lt_u32 s31, 48")
                A("s_cselect_b32 s35, s35, s36")
            for t in range(5):
                r = BUF + 4 * (kap * 5 + t)
                if WOP and kap * 5 + t >= WOP:
                    A(f"s_waitcnt vmcnt({WOP-1})")
                if not nowd:
                    A(f"buffer_load_dwordx4 v[{r}:{r+3}], v{VW}, s[56:59], s35 offen offset:{t*256} {dpol}")
            if kap != 6:
                A(f"s_add_u32 s35, s35, {4*1280}")

    def wo_loads():
        A("s_lshl_b32 s35, s29, 7")
        A("s_lshl_b32 s36, s34, 5")
        A("s_add_u32 s35, s35, s36")
        A("s_mul_i32 s35, s35, 1280")
        for kap in range(8):
            for t in range(5):
                r = BUF + 4 * (kap * 5 + t)
                if not nowo:
                    if WOP and kap * 5 + t >= WOP:
                        A(f"s_waitcnt vmcnt({WOP-1})")
                    A(f"buffer_load_dwordx4 v[{r}:{r+3}], v{VW}, s[60:63], s35 offen offset:{t*256} {wpol}")
            if kap != 7:
                A(f"s_add_u32 s35, s35, {4*1280}")

    EW = 240
    PS = 236

    def wg_stats(ew):
        A("v_mov_b32 v8, 0")
        A(f"ds_read_b128 v[{T}:{T+3}], v8 offset:{L_ST}")
        A(f"ds_read_b128 v[{T+4}:{T+7}], v8 offset:{L_ST+16}")
        A(f"s_mov_b32 s73, {hex(LOG2E)}")
        A("s_waitcnt lgkmcnt(0)")
        A(f"v_max3_f32 v{T+8}, v{T}, v{T+2}, v{T+4}")
        A(f"v_max_f32 v{T+8}, v{T+8}, v{T+6}")
        for w in range(4):
            A(f"v_sub_f32 v{ew+w}, v{T+2*w}, v{T+8}")
        for w in range(4):
            A(f"v_mul_f32 v{ew+w}, s73, v{ew+w}")
        for w in range(4):
            A(f"v_exp_f32 v{ew+w}, v{ew+w}")
        nop(1)
        A(f"v_mul_f32 v{T+10}, v{ew}, v{T+1}")
        for w in range(1, 4):
            A(f"v_fma_f32 v{T+10}, v{ew+w}, v{T+2*w+1}, v{T+10}")

    A("s_cmp_eq_u32 s34, 1")
    A("s_cbranch_scc1 L_k1")
    if WOAT == 0:
        wo_loads()
    A("s_branch L_kdone")
    A("L_k1:")
    if WDAT == 0 and not noffn:
        wd_loads()
    A("L_kdone:")
    stamp(3)
    A("s_barrier")
    A("s_cmp_eq_u32 s34, 1")
    A("s_cbranch_scc1 L_v1")
    A("s_cmp_eq_u32 s34, 0")
    A("s_cbranch_scc0 L_nostat")
    wg_stats(G)
    A(f"v_mov_b32 v{T+9}, s72")
    A(f"v_mov_b32 v{T+11}, s72")
    A("s_lshl_b32 s35, s30, 7")
    A(f"s_add_u32 s35, s35, {WS_ST}")
    A("s_mov_b64 exec, 1")
    A(f"buffer_store_dwordx4 v[{T+8}:{T+11}], off, s[64:67], s35 {ppol}")
    A("s_mov_b64 exec, -1")
    A("L_nostat:")
    A("s_cmp_lg_u32 s34, 2")
    A("s_cbranch_scc1 L_nofpub")
    ftask("L_nofpub")
    if not (noffn or nopub):
        A(f"s_cmp_ge_u32 s99, {NTM}")
        A(f"s_cselect_b32 s36, {NTM}, 0")
        A("s_sub_u32 s37, s99, s36")
        A("s_mul_i32 s78, s37, 4682")
        A("s_lshr_b32 s78, s78, 16")
        A("s_mul_i32 s79, s78, 14")
        A("s_sub_u32 s79, s37, s79")
        A(f"s_lshl_b32 s81, s79, {2 if F4 else 3}")
        A("s_add_u32 s81, s81, s78")
        A("s_add_u32 s81, s81, s36")
        A(f"s_lshl_b32 s81, s81, {11 if FF else 12}")
        A(f"s_add_u32 s81, s81, {WS_GP}")
        publish(ppol, npub, FF)
    A("L_nofpub:")
    if WOAT == 1:
        wo_loads()
    A("s_branch L_vdone")

    A("L_v1:")
    if WDAT == 1 and not noffn:
        wd_loads()
    wg_stats(EW)
    if FF:
        wd_first()
        A("v_and_b32 v8, 7, v2")
        A("v_min_u32 v8, 6, v8")
        A("v_lshlrev_b32 v8, 2, v8")
        A("v_add_u32 v8, s37, v8")
        A("v_lshrrev_b32 v9, 7, v8")
        if F4:
            A("v_lshrrev_b32 v10, 3, v2")
            A("v_mul_u32_u24 v10, 14, v10")
            A("v_add_u32 v9, v9, v10")
            A("v_lshl_add_u32 v9, v9, 2, v3")
            A("v_lshlrev_b32 v9, 11, v9")
        else:
            A("v_lshlrev_b32 v9, 14, v9")
            A("v_lshrrev_b32 v10, 3, v2")
            A("v_lshl_add_u32 v10, v3, 1, v10")
            A("v_lshl_add_u32 v9, v10, 11, v9")
        A("v_bfe_u32 v10, v8, 2, 1")
        A("v_lshl_add_u32 v9, v10, 10, v9")
        A("v_bfe_u32 v10, v8, 3, 4")
        A("v_lshl_add_u32 v9, v10, 4, v9")
        A("s_lshl_b32 s82, s28, 8")
        A(f"s_add_u32 s82, s82, {WS_GP}")
        A("s_lshl_b32 s83, s30, 7")
        A(f"s_add_u32 s83, s83, {WS_ST}")
        A("s_xor_b32 s83, s83, 128")
        A(f"s_mov_b32 s36, {SPIN}")
        A("L_pollg:")
        A(f"buffer_load_dwordx4 v[{PS}:{PS+3}], off, s[64:67], s83 {gpol}")
        chk = not (noffn or nog or nopub or nofl)
        if not (noffn or nog):
            A(f"s_add_u32 s35, s82, {112*2048}")
            A(f"buffer_load_dwordx4 v[{G}:{G+3}], v9, s[64:67], s82 offen {gpol}")
            if not F4:
                A(f"buffer_load_dwordx4 v[{G+4}:{G+7}], v9, s[64:67], s35 offen {gpol}")
        A("s_waitcnt vmcnt(0)")
        if chk and F4:
            extract(G + 8, G)
            A(f"v_min3_u32 v8, v{PS+1}, v{PS+3}, v{G+8}")
            A(f"v_max3_u32 v10, v{PS+1}, v{PS+3}, v{G+8}")
        elif chk:
            extract(G + 8, G)
            extract(G + 9, G + 4)
            A(f"v_min3_u32 v8, v{PS+1}, v{PS+3}, v{G+8}")
            A(f"v_max3_u32 v10, v{PS+1}, v{PS+3}, v{G+8}")
            A(f"v_min_u32 v8, v8, v{G+9}")
            A(f"v_max_u32 v10, v10, v{G+9}")
        else:
            A(f"v_min_u32 v8, v{PS+1}, v{PS+3}")
            A(f"v_max_u32 v10, v{PS+1}, v{PS+3}")
        A("v_cmp_ne_u32 vcc, s72, v8")
        A("v_cmp_ne_u32_e64 s[74:75], s72, v10")
        nop(2)
        A("s_or_b64 s[74:75], vcc, s[74:75]")
        A("s_cbranch_scc0 L_pollg_done")
        A("s_sub_u32 s36, s36, 1")
        A("s_cmp_lg_u32 s36, 0")
        A("s_cbranch_scc1 L_pollg")
        A("L_pollg_done:")
    else:
        A("v_and_b32 v8, 7, v2")
        A("v_lshl_add_u32 v8, v8, 2, v3")
        A("v_min_u32 v8, 26, v8")
        A("s_mul_i32 s35, s31, 27")
        A("v_add_u32 v8, s35, v8")
        A("v_lshrrev_b32 v9, 7, v8")
        A("v_lshlrev_b32 v9, 15, v9")
        A("v_lshrrev_b32 v10, 3, v2")
        A(f"v_mul_u32_u24 v10, {112*4096}, v10")
        A("v_add_u32 v9, v9, v10")
        A("v_bfe_u32 v10, v8, 1, 2")
        A("v_lshl_add_u32 v9, v10, 10, v9")
        A("v_bfe_u32 v10, v8, 3, 4")
        A("v_lshl_add_u32 v9, v10, 4, v9")
        A("v_and_b32 v10, 1, v8")
        A("v_lshl_add_u32 v9, v10, 3, v9")
        A("s_lshl_b32 s82, s28, 8")
        A(f"s_add_u32 s82, s82, {WS_GP}")
        A("s_lshl_b32 s83, s30, 7")
        A(f"s_add_u32 s83, s83, {WS_ST}")
        A("s_xor_b32 s83, s83, 128")
        A(f"s_mov_b32 s36, {SPIN}")
        A("L_pollg:")
        A("s_mov_b32 s35, s82")
        A(f"buffer_load_dwordx4 v[{PS}:{PS+3}], off, s[64:67], s83 {gpol}")
        nf = 0 if (noffn or nog) else 8
        for n in range(nf):
            r = G + 2 * n
            A(f"buffer_load_dwordx2 v[{r}:{r+1}], v9, s[64:67], s35 offen {gpol}")
            if n != 7:
                A("s_add_u32 s35, s35, 4096")
        A("s_waitcnt vmcnt(0)")
        if nf and not nopub and npub == 4 and not nofl:
            A(f"v_min3_u32 v8, v{PS+1}, v{PS+3}, v{G+1}")
            A(f"v_max3_u32 v10, v{PS+1}, v{PS+3}, v{G+1}")
            for q in range(3, 15, 4):
                A(f"v_min3_u32 v8, v8, v{G+q}, v{G+q+2}")
                A(f"v_max3_u32 v10, v10, v{G+q}, v{G+q+2}")
            A(f"v_min_u32 v8, v8, v{G+15}")
            A(f"v_max_u32 v10, v10, v{G+15}")
        else:
            A(f"v_min_u32 v8, v{PS+1}, v{PS+3}")
            A(f"v_max_u32 v10, v{PS+1}, v{PS+3}")
        A("v_cmp_ne_u32 vcc, s72, v8")
        A("v_cmp_ne_u32_e64 s[74:75], s72, v10")
        nop(2)
        A("s_or_b64 s[74:75], vcc, s[74:75]")
        A("s_cbranch_scc0 L_pollg_done")
        A("s_sub_u32 s36, s36, 1")
        A("s_cmp_lg_u32 s36, 0")
        A("s_cbranch_scc1 L_pollg")
        A("L_pollg_done:")
    stamp(9)
    A(f"v_max_f32 v{T}, v{T+8}, v{PS}")
    A(f"v_sub_f32 v{T+1}, v{T+8}, v{T}")
    A(f"v_sub_f32 v{T+2}, v{PS}, v{T}")
    A(f"v_mul_f32 v{T+1}, s73, v{T+1}")
    A(f"v_mul_f32 v{T+2}, s73, v{T+2}")
    A(f"v_exp_f32 v{T+1}, v{T+1}")
    A(f"v_exp_f32 v{T+2}, v{T+2}")
    nop(1)
    A(f"v_mul_f32 v{T+3}, v{T+1}, v{T+10}")
    A(f"v_fma_f32 v{T+3}, v{T+2}, v{PS+2}, v{T+3}")
    A(f"v_rcp_f32 v{T+2}, v{T+3}")
    nop(1)
    A(f"v_fma_f32 v{T}, -v{T+3}, v{T+2}, 1.0")
    A(f"v_fma_f32 v{T+2}, v{T}, v{T+2}, v{T+2}")
    A(f"v_mul_f32 v{T+1}, v{T+1}, v{T+2}")
    for w in range(4):
        A(f"v_mul_f32 v{EW+w}, v{EW+w}, v{T+1}")
    A(f"v_mov_b32 v8, {L_F}")
    A(f"ds_write_b128 v8, v[{EW}:{EW+3}]")
    if F4 and not noffn:
        strip(G, 4)
        xsum([G + r for r in range(4)], [G + 8 + r for r in range(4)], ["s16", "s32"])
        A("s_mov_b32 s74, 0xffff0000")
        A("s_mov_b32 s75, 0xffff0000")
        A("s_mov_b32 s76, 0")
        A("s_mov_b32 s77, -1")
        A(f"v_cndmask_b32_e64 v{G}, v{G}, v{G+1}, s[74:75]")
        A(f"v_cndmask_b32_e64 v{G+2}, v{G+2}, v{G+3}, s[74:75]")
        A(f"v_cndmask_b32_e64 v{G}, v{G}, v{G+2}, s[76:77]")
        A(f"v_cvt_pk_bf16_f32 v{G}, v{G}, v{G}")
        A(f"v_lshlrev_b32 v{G}, 16, v{G}")
        A("v_cmp_ne_u32 vcc, 6, v2")
        A("s_cmp_lt_u32 s31, 48")
        A("s_cselect_b64 s[74:75], -1, 0")
        A(f"v_mov_b32_dpp v{G+1}, v{G} row_ror:8 row_mask:0xf bank_mask:0xf")
        A(f"v_max_f32 v{G}, 0, v{G}")
        A("s_or_b64 vcc, vcc, s[74:75]")
        A(f"v_mul_f32 v{G}, v{G}, v{G+1}")
        A(f"v_cvt_pk_bf16_f32 v{G}, v{G}, v{G}")
        A(f"v_cndmask_b32 v{G}, 0, v{G}, vcc")
        nop(2)
        mkA(0, G, 0)
        for kap in range(7):
            if kap + 1 < 7:
                mkA((kap + 1) & 1, G, kap + 1)
            else:
                nop(2)
            a = AR + 4 * (kap & 1)
            for t in range(5):
                b = BUF + 4 * (kap * 5 + t)
                A(f"v_mfma_f32_16x16x32_bf16 v[{Y+4*t}:{Y+4*t+3}], v[{a}:{a+3}], v[{b}:{b+3}], v[{Y+4*t}:{Y+4*t+3}]")
    elif FF and not noffn:
        strip(G, 8)
        xsum([G + r for r in range(8)], [G + 8 + r for r in range(8)], ["r8", "s16", "s32"])
        A("s_mov_b32 s74, 0xffff0000")
        A("s_mov_b32 s75, 0xffff0000")
        A("s_mov_b32 s76, 0")
        A("s_mov_b32 s77, -1")
        for q in (G, G + 4):
            A(f"v_cndmask_b32_e64 v{q}, v{q}, v{q+1}, s[74:75]")
            A(f"v_cndmask_b32_e64 v{q+2}, v{q+2}, v{q+3}, s[74:75]")
        for q in (G, G + 4):
            A(f"v_cndmask_b32_e64 v{q}, v{q}, v{q+2}, s[76:77]")
        A(f"v_cvt_pk_bf16_f32 v{G}, v{G}, v{G}")
        A(f"v_cvt_pk_bf16_f32 v{G+4}, v{G+4}, v{G+4}")
        A(f"v_lshlrev_b32 v{G}, 16, v{G}")
        A(f"v_lshlrev_b32 v{G+4}, 16, v{G+4}")
        A("v_cmp_ne_u32 vcc, 6, v2")
        A("s_cmp_lt_u32 s31, 48")
        A("s_cselect_b64 s[74:75], -1, 0")
        A(f"v_max_f32 v{G}, 0, v{G}")
        A(f"v_mul_f32 v{G}, v{G}, v{G+4}")
        A("s_or_b64 vcc, vcc, s[74:75]")
        A(f"v_cvt_pk_bf16_f32 v{G}, v{G}, v{G}")
        A(f"v_cndmask_b32 v{G}, 0, v{G}, vcc")
        nop(2)
        mkA(0, G, 0)
        for kap in range(7):
            if kap + 1 < 7:
                mkA((kap + 1) & 1, G, kap + 1)
            else:
                nop(2)
            a = AR + 4 * (kap & 1)
            for t in range(5):
                b = BUF + 4 * (kap * 5 + t)
                A(f"v_mfma_f32_16x16x32_bf16 v[{Y+4*t}:{Y+4*t+3}], v[{a}:{a+3}], v[{b}:{b+3}], v[{Y+4*t}:{Y+4*t+3}]")
    elif not noffn:
        for a in range(4):
            A(f"v_add_f32 v{G+4*a}, v{G+4*a}, v{G+4*a+2}")
        for a in range(2):
            A(f"v_add_f32 v{G+8*a}, v{G+8*a}, v{G+8*a+4}")
        A(f"v_add_f32 v{G}, v{G}, v{G+8}")
        A(f"v_cvt_pk_bf16_f32 v{G}, v{G}, v{G}")
        A(f"v_lshlrev_b32 v{G}, 16, v{G}")
        A("v_cmp_ne_u32 vcc, 54, v0")
        nop(1)
        A(f"v_mov_b32_dpp v{G+1}, v{G} row_ror:8 row_mask:0xf bank_mask:0xf")
        A(f"v_max_f32 v{G}, 0, v{G}")
        A(f"v_mul_f32 v{G}, v{G}, v{G+1}")
        A(f"v_cvt_pk_bf16_f32 v{G}, v{G}, v{G}")
        A(f"v_cndmask_b32 v{G}, 0, v{G}, vcc")
        nop(2)
        mkA(0, G, 0)
        for kap in range(7):
            if kap + 1 < 7:
                mkA((kap + 1) & 1, G, kap + 1)
            else:
                nop(2)
            a = AR + 4 * (kap & 1)
            for t in range(5):
                b = BUF + 4 * (kap * 5 + t)
                A(f"v_mfma_f32_16x16x32_bf16 v[{Y+4*t}:{Y+4*t+3}], v[{a}:{a+3}], v[{b}:{b+3}], v[{Y+4*t}:{Y+4*t+3}]")
    stamp(11)
    A("s_waitcnt lgkmcnt(0)")
    wo_loads()
    A("L_vdone:")
    A("v_and_b32 v9, 7, v2")
    A("v_lshl_add_u32 v9, v9, 2, v3")
    A("s_lshl_b32 s35, s34, 5")
    A("v_add_u32 v9, s35, v9")
    A("v_lshlrev_b32 v9, 2, v9")
    A("v_lshlrev_b32 v8, 5, v2")
    A("v_lshl_add_u32 v8, v3, 4, v8")
    A("s_mul_i32 s35, s34, 2560")
    A("v_add_u32 v8, s35, v8")
    if FY:
        A("s_mul_i32 s35, s34, 40")
        A("v_add_u32 v10, s35, v0")
        A(f"v_lshlrev_b32 v{T+12}, 4, v10")
        A(f"v_lshrrev_b32 v{T+14}, 3, v10")
        A(f"v_lshlrev_b32 v{T+14}, 13, v{T+14}")
        A("v_and_b32 v10, 7, v10")
        A(f"v_lshl_add_u32 v{T+14}, v10, 4, v{T+14}")
        A(f"s_mul_i32 s76, s28, {20*8192}")
        A(f"s_add_u32 s76, s76, {WS_Y}")
        A("s_lshl_b32 s77, s31, 7")
        A("s_add_u32 s77, s77, s76")
    else:
        A("s_lshl_b32 s35, s34, 6")
        A("v_add_u32 v10, s35, v0")
        A("s_lshl_b32 s35, s34, 4")
        A("s_add_u32 s35, s35, 256")
        A("v_add_u32 v11, s35, v2")
        A(f"v_lshlrev_b32 v{T+12}, 3, v10")
        A(f"v_lshlrev_b32 v{T+13}, 3, v11")
        for (src, dst) in ((10, T + 14), (11, T + 15)):
            A(f"v_lshrrev_b32 v{dst}, 3, v{src}")
            A(f"v_lshlrev_b32 v{dst}, 13, v{dst}")
            A(f"v_and_b32 v{src}, 7, v{src}")
            A(f"v_lshl_add_u32 v{dst}, v{src}, 4, v{dst}")
        A("v_cmp_gt_u32 vcc, 16, v0")
        A(f"v_mov_b32 v10, 0x7ffffff0")
        nop(1)
        A(f"v_cndmask_b32 v{T+15}, v10, v{T+15}, vcc")
        A(f"s_mul_i32 s76, s28, {40*8192}")
        A(f"s_add_u32 s76, s76, {WS_Y}")
        A("s_lshl_b32 s77, s31, 7")
        A("s_add_u32 s77, s77, s76")
    A("s_waitcnt vmcnt(0)")
    stamp(4)
    A("s_barrier")
    stamp(5)
    A(f"v_mov_b32 v10, {L_F}")
    A(f"ds_read_b128 v[{G}:{G+3}], v10")
    for w in range(4):
        A(f"ds_read_b32 v{T+w}, v9 offset:{L_OP+w*512}")
    A("s_waitcnt lgkmcnt(0)")
    A(f"v_mul_f32 v{T}, v{T}, v{G}")
    for w in range(1, 4):
        A(f"v_fma_f32 v{T}, v{T+w}, v{G+w}, v{T}")
    A(f"v_cvt_pk_bf16_f32 v{T}, v{T}, v{T}")
    nop(2)
    mkA(0, T, 0)
    for kap in range(8):
        if kap + 1 < 8:
            mkA((kap + 1) & 1, T, kap + 1)
        else:
            nop(2)
        a = AR + 4 * (kap & 1)
        for t in range(5):
            b = BUF + 4 * (kap * 5 + t)
            A(f"v_mfma_f32_16x16x32_bf16 v[{Y+4*t}:{Y+4*t+3}], v[{a}:{a+3}], v[{b}:{b+3}], v[{Y+4*t}:{Y+4*t+3}]")
    A("s_mov_b32 exec_hi, 0")
    nop(5)
    for t in range(5):
        A(f"ds_write_b128 v8, v[{Y+4*t}:{Y+4*t+3}] offset:{L_YP+t*512}")
    A("s_mov_b64 exec, -1")
    A("s_waitcnt lgkmcnt(0)")
    A("s_barrier")
    if FY:
        A("s_mov_b32 exec_lo, -1")
        A("s_mov_b32 exec_hi, 0xff")
        for vv in range(4):
            A(f"ds_read_b128 v[{G+4*vv}:{G+4*vv+3}], v{T+12} offset:{L_YP+vv*2560}")
        A(f"v_mov_b32 v{T+8}, s72")
        A("s_waitcnt lgkmcnt(0)")
        for j in range(4):
            A(f"v_add_f32 v{G+j}, v{G+j}, v{G+4+j}")
            A(f"v_add_f32 v{G+8+j}, v{G+8+j}, v{G+12+j}")
        for j in range(4):
            A(f"v_add_f32 v{G+j}, v{G+j}, v{G+8+j}")
        embed(T, G, T + 8, 4)
        A(f"buffer_store_dwordx4 v[{T}:{T+3}], v{T+14}, s[64:67], s77 offen {yppol}")
        A("s_mov_b64 exec, -1")
    else:
        for vv in range(4):
            A(f"ds_read_b64 v[{G+2*vv}:{G+2*vv+1}], v{T+12} offset:{L_YP+vv*2560}")
            A(f"ds_read_b64 v[{G+8+2*vv}:{G+8+2*vv+1}], v{T+13} offset:{L_YP+vv*2560}")
        A(f"v_mov_b32 v{T+1}, s72")
        A(f"v_mov_b32 v{T+3}, s72")
        A(f"v_mov_b32 v{T+5}, s72")
        A(f"v_mov_b32 v{T+7}, s72")
        A("s_waitcnt lgkmcnt(0)")
        for (base, dst) in ((G, T), (G + 8, T + 4)):
            A(f"v_add_f32 v{base}, v{base}, v{base+2}")
            A(f"v_add_f32 v{base+1}, v{base+1}, v{base+3}")
            A(f"v_add_f32 v{base+4}, v{base+4}, v{base+6}")
            A(f"v_add_f32 v{base+5}, v{base+5}, v{base+7}")
            A(f"v_add_f32 v{dst}, v{base}, v{base+4}")
            A(f"v_add_f32 v{dst+2}, v{base+1}, v{base+5}")
        A(f"buffer_store_dwordx4 v[{T}:{T+3}], v{T+14}, s[64:67], s77 offen {yppol}")
        A(f"buffer_store_dwordx4 v[{T+4}:{T+7}], v{T+15}, s[64:67], s77 offen {yppol}")
    stamp(6)
    A("s_cmp_lg_u32 s34, 0")
    A("s_cbranch_scc1 L_flush")
    A(f"s_cmp_ge_u32 s31, {20 if FY else 40}")
    A("s_cbranch_scc1 L_flush")
    A("s_lshl_b32 s35, s31, 13")
    A("s_add_u32 s35, s35, s76")
    A("v_lshlrev_b32 v9, 4, v0")
    A("v_add_u32 v10, 0x1000, v9")
    A(f"s_mov_b32 s36, {SPIN}")
    A("L_poll2:")
    for n in range(8):
        r = BUF + 4 * n
        A(f"buffer_load_dwordx4 v[{r}:{r+3}], v{9 + (n >> 2)}, s[64:67], s35 offen offset:{(n&3)*1024} {ygpol}")
    A("s_waitcnt vmcnt(0)")
    if FY:
        for n in range(8):
            extract(G + n, BUF + 4 * n)
        A(f"v_min3_u32 v{T}, v{G}, v{G+1}, v{G+2}")
        A(f"v_max3_u32 v{T+1}, v{G}, v{G+1}, v{G+2}")
        for q in (3, 5):
            A(f"v_min3_u32 v{T}, v{T}, v{G+q}, v{G+q+1}")
            A(f"v_max3_u32 v{T+1}, v{T+1}, v{G+q}, v{G+q+1}")
        A(f"v_min_u32 v{T}, v{T}, v{G+7}")
        A(f"v_max_u32 v{T+1}, v{T+1}, v{G+7}")
    else:
        A(f"v_min3_u32 v{T}, v{BUF+1}, v{BUF+3}, v{BUF+5}")
        A(f"v_max3_u32 v{T+1}, v{BUF+1}, v{BUF+3}, v{BUF+5}")
        for q in range(7, 31, 4):
            A(f"v_min3_u32 v{T}, v{T}, v{BUF+q}, v{BUF+q+2}")
            A(f"v_max3_u32 v{T+1}, v{T+1}, v{BUF+q}, v{BUF+q+2}")
        A(f"v_min_u32 v{T}, v{T}, v{BUF+31}")
        A(f"v_max_u32 v{T+1}, v{T+1}, v{BUF+31}")
    A(f"v_cmp_ne_u32 vcc, s72, v{T}")
    A(f"v_cmp_ne_u32_e64 s[74:75], s72, v{T+1}")
    nop(2)
    A("s_or_b64 s[74:75], vcc, s[74:75]")
    A("s_cbranch_scc0 L_poll2_done")
    A("s_sub_u32 s36, s36, 1")
    A("s_cmp_lg_u32 s36, 0")
    A("s_cbranch_scc1 L_poll2")
    A("L_poll2_done:")
    if FY:
        strip(BUF, 32)
        for j in range(4):
            for n in range(4):
                A(f"v_add_f32 v{BUF+8*n+j}, v{BUF+8*n+j}, v{BUF+8*n+4+j}")
        for j in range(4):
            A(f"v_add_f32 v{BUF+j}, v{BUF+j}, v{BUF+8+j}")
            A(f"v_add_f32 v{BUF+16+j}, v{BUF+16+j}, v{BUF+24+j}")
        for j in range(4):
            A(f"v_add_f32 v{T+j}, v{BUF+j}, v{BUF+16+j}")
        xsum([T + j for j in range(4)], [T + 4 + j for j in range(4)], ["r8", "s16", "s32"])
        A(f"v_lshlrev_b32 v{T+4}, 16, v{VXR2}")
        A(f"v_and_b32 v{T+5}, 0xffff0000, v{VXR2}")
        A(f"v_lshlrev_b32 v{T+6}, 16, v{VXR2+1}")
        A(f"v_and_b32 v{T+7}, 0xffff0000, v{VXR2+1}")
        for j in range(4):
            A(f"v_add_f32 v{T+j}, v{T+j}, v{T+4+j}")
        A(f"v_cvt_pk_bf16_f32 v{T}, v{T}, v{T+1}")
        A(f"v_cvt_pk_bf16_f32 v{T+1}, v{T+2}, v{T+3}")
        A("s_mul_i32 s35, s28, 1280")
        A("s_lshl_b32 s36, s31, 6")
        A("s_add_u32 s35, s35, s36")
        A("v_lshlrev_b32 v9, 3, v0")
        A("s_mov_b64 exec, 0xff")
        A(f"buffer_store_dwordx2 v[{T}:{T+1}], v9, s[68:71], s35 offen")
    else:
        A(f"v_add_f32 v{T}, v{BUF}, v{BUF+4}")
        A(f"v_add_f32 v{T+1}, v{BUF+2}, v{BUF+6}")
        A(f"v_add_f32 v{T+2}, v{BUF+8}, v{BUF+12}")
        A(f"v_add_f32 v{T+3}, v{BUF+10}, v{BUF+14}")
        A(f"v_add_f32 v{T+4}, v{BUF+16}, v{BUF+20}")
        A(f"v_add_f32 v{T+5}, v{BUF+18}, v{BUF+22}")
        A(f"v_add_f32 v{T+6}, v{BUF+24}, v{BUF+28}")
        A(f"v_add_f32 v{T+7}, v{BUF+26}, v{BUF+30}")
        A(f"v_add_f32 v{T}, v{T}, v{T+2}")
        A(f"v_add_f32 v{T+1}, v{T+1}, v{T+3}")
        A(f"v_add_f32 v{T+4}, v{T+4}, v{T+6}")
        A(f"v_add_f32 v{T+5}, v{T+5}, v{T+7}")
        A(f"v_add_f32 v{T}, v{T}, v{T+4}")
        A(f"v_add_f32 v{T+1}, v{T+1}, v{T+5}")
        nop(2)
        A(f"v_permlane32_swap_b32 v{T}, v{T+1}")
        nop(1)
        A(f"v_add_f32 v{T}, v{T}, v{T+1}")
        A(f"v_mov_b32 v{T+1}, v{T}")
        nop(2)
        A(f"v_permlane16_swap_b32 v{T}, v{T+1}")
        nop(1)
        A(f"v_add_f32 v{T}, v{T}, v{T+1}")
        nop(2)
        A(f"v_add_f32_dpp v{T}, v{T}, v{T} row_ror:8 row_mask:0xf bank_mask:0xf")
        A(f"v_mov_b32 v{T+1}, v{T}")
        nop(2)
        A(f"v_permlane32_swap_b32 v{T}, v{T+1}")
        A(f"v_lshlrev_b32 v{T+2}, 16, v{VXR}")
        A(f"v_and_b32 v{T+3}, 0xffff0000, v{VXR}")
        A(f"v_add_f32 v{T}, v{T}, v{T+2}")
        A(f"v_add_f32 v{T+1}, v{T+1}, v{T+3}")
        A(f"v_cvt_pk_bf16_f32 v{T}, v{T}, v{T+1}")
        A("s_mul_i32 s35, s28, 1280")
        A("s_lshl_b32 s36, s31, 5")
        A("s_add_u32 s35, s35, s36")
        A("v_lshlrev_b32 v9, 2, v0")
        A("s_mov_b64 exec, 0xff")
        A(f"buffer_store_dword v{T}, v9, s[68:71], s35 offen")
    A("s_or_b32 s36, s31, s28")
    A("s_cmp_lg_u32 s36, 0")
    A("s_cbranch_scc1 L_fin")
    A("s_mov_b64 exec, 1")
    A(f"v_mov_b32 v{T+1}, s72")
    A(f"buffer_store_dword v{T+1}, off, s[64:67], 0 offset:{WS_E} sc1")
    A("L_fin:")
    stamp(7)
    A("L_flush:")
    stamp_flush()
    A("L_end:")
    A("s_endpgm")

    body = "\n".join(("    " + l) if not l.endswith(":") else l for l in L) + "\n"
    return (HEADER % (LDS_SIZE, NAME, NAME, NAME)) + body + (FOOTER % NAME)


if __name__ == "__main__":
    kw = {}
    out = f"cdna_kernels/{NAME}.s"
    for a in sys.argv[1:]:
        if a.startswith("out="):
            out = a[4:]
            continue
        k, v = a.split("=")
        try:
            v = int(v)
        except ValueError:
            pass
        kw[k] = v
    open(out, "w").write(gen(**kw))
    print("wrote", out)
```

```python
import sys

NAME = "parallel_sum__gqa_block_cached__glu_gated_reglu__decode"

HEADER = """; Fused LN -> {GQA decode attention, ReGLU FFN} -> residual sum.  Generated by gen_kernel.py (hand-designed schedule).
; @launch grid=(256,1,1) block=(512,1,1) lds=%d
.amdgcn_target "amdgcn-amd-amdhsa--gfx950"
.text
.globl %s_kernel
.p2align 8
.type %s_kernel,@function
%s_kernel:
"""

FOOTER = """.section .rodata,"a"
.p2align 6
.amdhsa_kernel %s_kernel
  .amdhsa_next_free_vgpr 256
  .amdhsa_next_free_sgpr 102
  .amdhsa_accum_offset 256
  .amdhsa_group_segment_fixed_size 0
  .amdhsa_kernarg_size 96
  .amdhsa_user_sgpr_count 2
  .amdhsa_user_sgpr_kernarg_segment_ptr 1
  .amdhsa_system_sgpr_workgroup_id_x 1
.end_amdhsa_kernel
"""

L_Q = 0
L_TAG = 256
L_F = 384
L_ST = 2048
L_OP = 2560
L_YP = 4608
LDS_SIZE = 4608 + 4 * 2560

WS_E = 0
WS_ST = 4096
WS_Y = 65536
WS_QP = 0x160000
WS_GP = 0x260000
WS_DBG = 0x480000
WS_SIZE = 0x500000

TAG_A = 1664525
TAG_C = 1013904223
LOG2E = 0x3FB8AA3B
SCALE = 0x3DB504F3
SPIN = 20000


def gen(rot=0, LAL=6, GS=2, PRE=32, PREV=16, prio=0, NPRE=0, stamps=False, kpol="nt", wpol="nt", apol="nt", dpol="nt", LAL2=0, NT1=6, WOAT=0, WOP=4, WDAT=1, FP=0, B0=1, ACK=1, noffn=0, nowo=0, nowq=0, nofl=0, ppol="sc1 nt", gpol="sc1 nt", qgpol="sc1 nt", qppol="sc1", ygpol="sc1", yppol="sc1", npub=4, nopub=0, nowd=0, nog=0, FQ=1, FF=1, FY=1, RND=1, F4=1, Q4=0, EXPSL=0, EXPNP=0, NS=1, FB=1, QB=1, perm=0, pxor=0, newmap=0, hmap=0, BLK=4096, STG=0, sidx=0, ssh=0, smask=0, ATS=0, atpol="sc0 sc1", ATW=4):
    L = []
    A = L.append

    def nop(n):
        assert 1 <= n <= 16
        A(f"s_nop {n-1}")

    def stamp(idx):
        if not stamps:
            return
        A("s_memrealtime s[90:91]")
        A("s_waitcnt lgkmcnt(0)")
        A(f"v_writelane_b32 v62, s90, {idx}")

    def stamp_flush():
        if not stamps:
            return
        A("s_mov_b64 exec, 0xffff")
        A("v_lshlrev_b32 v61, 2, v63")
        A("buffer_store_dword v62, v61, s[84:87], s88 offen")

    A("s_cmp_ge_u32 s2, 256")
    A("s_cbranch_scc1 L_end")
    A("s_load_dwordx16 s[4:19], s[0:1], 0")
    A("s_load_dwordx8 s[20:27], s[0:1], 64")
    A("v_lshrrev_b32 v1, 6, v0")
    A("v_and_b32 v0, 63, v0")
    A("v_readfirstlane_b32 s3, v1")
    if perm:
        A("s_mov_b32 s30, 0")
        for j, ch in enumerate(str(perm)[1:]):
            A(f"s_bfe_u32 s35, s2, {hex((1 << 16) | int(ch))}")
            A(f"s_lshl_b32 s35, s35, {j}")
            A("s_or_b32 s30, s30, s35")
        if pxor:
            d_, s_ = int(str(pxor)[1]), int(str(pxor)[2])
            A(f"s_bfe_u32 s35, s30, {hex((1 << 16) | s_)}")
            A(f"s_lshl_b32 s35, s35, {d_}")
            A("s_xor_b32 s30, s30, s35")
        A("s_and_b32 s38, s30, 1")
        A("s_bfe_u32 s29, s30, 0x50001")
        A("s_lshr_b32 s28, s30, 6")
        A("s_lshl_b32 s33, s28, 1")
        A("s_add_u32 s33, s33, s38")
        A("s_and_b32 s31, s30, 63")
    elif newmap:
        A("s_and_b32 s32, s2, 7")
        A("s_lshr_b32 s35, s2, 3")
        A("s_bfe_u32 s38, s32, 0x10001")
        A("s_mul_i32 s36, s38, 3")
        A("s_xor_b32 s36, s36, s32")
        A("s_and_b32 s37, s36, 1")
        A("s_lshr_b32 s36, s36, 1")
        A("s_or_b32 s36, s36, s37")
        A("s_and_b32 s28, s35, 3")
        A("s_lshr_b32 s35, s35, 2")
        A("s_lshl_b32 s36, s36, 3")
        A("s_add_u32 s29, s36, s35")
        A("s_lshl_b32 s39, s28, 5")
        A("s_add_u32 s39, s39, s29")
        A("s_lshl_b32 s39, s39, 1")
        A("s_add_u32 s30, s39, s38")
        A("s_lshl_b32 s33, s28, 1")
        A("s_add_u32 s33, s33, s38")
        A("s_lshl_b32 s31, s29, 1")
        A("s_add_u32 s31, s31, s38")
    else:
        if rot:
            A(f"s_add_u32 s32, s2, {rot}")
            A("s_and_b32 s32, s32, 7")
        else:
            A("s_and_b32 s32, s2, 7")
        A("s_lshr_b32 s35, s2, 3")
        A("s_lshr_b32 s36, s35, 3")
        A("s_and_b32 s37, s35, 7")
        A("s_lshr_b32 s28, s37, 1")
        A("s_and_b32 s38, s37, 1")
        if hmap == 0:
            A("s_lshl_b32 s39, s36, 3")
            A("s_add_u32 s29, s32, s39")
        elif hmap == 1:
            A("s_lshl_b32 s39, s32, 2")
            A("s_add_u32 s29, s36, s39")
        elif hmap == 2:
            A("s_lshl_b32 s39, s32, 1")
            A("s_and_b32 s29, s36, 1")
            A("s_add_u32 s29, s29, s39")
            A("s_lshr_b32 s39, s36, 1")
            A("s_lshl_b32 s39, s39, 4")
            A("s_add_u32 s29, s29, s39")
        elif hmap == 3:
            A("s_lshl_b32 s39, s36, 3")
            A("s_lshl_b32 s29, s36, 1")
            A("s_xor_b32 s29, s29, s32")
            A("s_add_u32 s29, s29, s39")
        A("s_lshl_b32 s39, s28, 5")
        A("s_add_u32 s39, s39, s29")
        A("s_lshl_b32 s39, s39, 1")
        A("s_add_u32 s30, s39, s38")
        A("s_lshl_b32 s33, s36, 1")
        A("s_add_u32 s33, s33, s38")
        A("s_lshl_b32 s31, s33, 3")
        A("s_add_u32 s31, s31, s32")
    A("v_and_b32 v2, 15, v0")
    A("v_lshrrev_b32 v3, 4, v0")
    A("v_and_b32 v8, 1, v2")
    A("v_lshlrev_b32 v8, 4, v8")
    A("v_mov_b32 v9, 0xffff")
    A("v_lshlrev_b32 v9, v8, v9")
    A("v_lshrrev_b32 v10, 1, v2")
    for r in range(4):
        A(f"v_cmp_eq_u32 vcc, {r}, v10")
        nop(2)
        A(f"v_cndmask_b32 v{4+r}, 0, v9, vcc")
    A("s_waitcnt lgkmcnt(0)")
    if stamps:
        A("s_mov_b32 s84, s26")
        A("s_and_b32 s85, s27, 0xffff")
        A(f"s_mov_b32 s86, {WS_SIZE}")
        A("s_mov_b32 s87, 0x20000")
        A("s_lshl_b32 s88, s2, 3")
        A("s_add_u32 s88, s88, s3")
        A("s_lshl_b32 s88, s88, 6")
        A(f"s_add_u32 s88, s88, {WS_DBG}")
        A("v_mov_b32 v62, 0")
        A("v_mov_b32 v63, v0")
    stamp(0)
    A("s_cmp_ge_u32 s3, 4")
    A("s_cbranch_scc1 L_service")

    RING = 128
    Q = 12
    S = 16
    SC = 32
    AR = 64
    D = 80
    T = 84
    A("s_lshl_b32 s35, s30, 20")
    A("s_lshr_b32 s36, s30, 12")
    A("s_add_u32 s40, s6, s35")
    A("s_addc_u32 s41, s7, s36")
    A("s_and_b32 s41, s41, 0xffff")
    A("s_mov_b32 s42, 0x100000")
    A("s_mov_b32 s43, 0x20000")
    A("s_add_u32 s44, s8, s35")
    A("s_addc_u32 s45, s9, s36")
    A("s_and_b32 s45, s45, 0xffff")
    A(f"s_mul_i32 s35, s3, {BLK}")
    A("v_lshlrev_b32 v11, 4, v0")
    A("v_add_u32 v11, s35, v11")
    if STG:
        if sidx:
            A("s_lshr_b32 s55, s30, 4")
            A("s_and_b32 s35, s30, 1")
            if sidx == 1:
                A("s_lshl_b32 s55, s55, 1")
            else:
                A("s_lshl_b32 s35, s35, 4")
            A("s_add_u32 s55, s55, s35")
            A(f"s_mul_i32 s55, s55, {STG * 4 * BLK}")
        elif smask:
            A(f"s_lshr_b32 s55, s30, {ssh}")
            A(f"s_and_b32 s55, s55, {smask}")
            A(f"s_mul_i32 s55, s55, {STG * 4 * BLK}")
        else:
            A(f"s_mul_i32 s55, s30, {STG * 4 * BLK}")
        A("s_and_b32 s55, s55, 0xfffff")
        A("s_mov_b32 s46, s55")
    else:
        A("s_mov_b32 s46, 0")

    assert PREV % GS == 0 and LAL <= PREV <= 32 and LAL % GS == 0 and PRE % GS == 0 and LAL <= PRE <= 32 and LAL + GS <= 32 and 16 % GS == 0

    def issue_load(m):
        r = RING + (m % 32) * 4
        per = min(BLK // 1024, 4)
        A(f"buffer_load_dwordx4 v[{r}:{r+3}], v11, s[40:43], s46 offen offset:{(m % per)*1024} {kpol}")
        if m % per == per - 1:
            if BLK <= 4096:
                inc = 4 * BLK
            elif BLK == 262144:
                inc = 4096
            else:
                nb = BLK // 1024
                assert nb <= 32
                inc = 4096 if (m % nb) != nb - 1 else 4 * BLK - (BLK - 4096)
            A(f"s_add_u32 s46, s46, {inc}")
            if STG:
                A("s_and_b32 s46, s46, 0xfffff")

    for m in range(LAL):
        if B0 and m == NPRE:
            A("s_barrier")
        issue_load(m)
    if B0 and NPRE >= LAL:
        A("s_barrier")
    for m0 in range(LAL, PRE, GS):
        A(f"s_waitcnt vmcnt({LAL - GS})")
        for m in range(m0, m0 + GS):
            issue_load(m)
    A("s_mov_b32 s48, 0xaaaaaaaa")
    A("s_mov_b32 s49, 0xaaaaaaaa")
    A("s_mov_b32 s50, 0xcccccccc")
    A("s_mov_b32 s51, 0xcccccccc")
    A(f"s_mov_b32 s52, {hex(SCALE)}")
    A(f"s_mov_b32 s53, {hex(LOG2E)}")
    A("v_lshlrev_b32 v10, 5, v2")
    for r in range(4):
        A(f"v_mov_b32 v{D+r}, 0")
    stamp(1)
    A("s_barrier")
    stamp(2)
    A("v_lshlrev_b32 v9, 4, v2")
    A(f"ds_read_b128 v[{Q}:{Q+3}], v9 offset:{L_Q}")
    A("s_waitcnt lgkmcnt(0)")
    A("s_mov_b32 s47, 0")
    nop(2)

    A("s_mov_b64 vcc, -1")
    A("L_ktrip:")
    for half in range(2):
        for n in range(16 * half, 16 * half + 16, GS):
            if n == 32 - LAL:
                A("s_cmp_lg_u32 s47, 7")
                A("s_cbranch_scc1 L_knosw")
                A("s_mov_b32 s40, s44")
                A("s_mov_b32 s41, s45")
                A("s_mov_b32 s46, s55" if STG else "s_mov_b32 s46, 0")
                A("L_knosw:")
            A(f"s_waitcnt vmcnt({LAL - GS})")
            skip = n + LAL < PRE
            if skip:
                A(f"s_cbranch_vccnz L_kskip{n}")
            for m in range(n + LAL, n + LAL + GS):
                issue_load(m)
            if skip:
                A(f"L_kskip{n}:")
            for r in range(4):
                for i in range(GS):
                    src = RING + (n + i) * 4 + r
                    d = S + (n + i) % 16
                    c = "0" if r == 0 else f"v{d}"
                    A(f"v_dot2_f32_bf16 v{d}, v{src}, v{Q+r}, {c}")
        nop(3)
        for j in range(8):
            A(f"v_add_f32_dpp v{S+j}, v{S+j}, v{S+j} row_ror:8 row_mask:0xf bank_mask:0x3")
        for j in range(8):
            A(f"v_add_f32_dpp v{S+j}, v{S+j+8}, v{S+j+8} row_ror:8 row_mask:0xf bank_mask:0xc")
        for j in range(4):
            A(f"v_add_f32_dpp v{S+j}, v{S+j}, v{S+j} row_half_mirror row_mask:0xf bank_mask:0x5")
        for j in range(4):
            A(f"v_add_f32_dpp v{S+j}, v{S+j+4}, v{S+j+4} row_half_mirror row_mask:0xf bank_mask:0xa")
        A(f"v_cndmask_b32_e64 v{T+0}, v{S+2}, v{S+0}, s[50:51]")
        A(f"v_cndmask_b32_e64 v{T+2}, v{S+0}, v{S+2}, s[50:51]")
        A(f"v_cndmask_b32_e64 v{T+1}, v{S+3}, v{S+1}, s[50:51]")
        A(f"v_cndmask_b32_e64 v{T+3}, v{S+1}, v{S+3}, s[50:51]")
        nop(1)
        A(f"v_add_f32_dpp v{T+2}, v{T+0}, v{T+2} quad_perm:[2,3,0,1] row_mask:0xf bank_mask:0xf")
        A(f"v_add_f32_dpp v{T+3}, v{T+1}, v{T+3} quad_perm:[2,3,0,1] row_mask:0xf bank_mask:0xf")
        A(f"v_cndmask_b32_e64 v{T+0}, v{T+3}, v{T+2}, s[48:49]")
        A(f"v_cndmask_b32_e64 v{T+1}, v{T+2}, v{T+3}, s[48:49]")
        nop(2)
        A(f"v_add_f32_dpp v{T+1}, v{T+0}, v{T+1} quad_perm:[1,0,3,2] row_mask:0xf bank_mask:0xf")
        A(f"v_cvt_pk_bf16_f32 v{T+1}, v{T+1}, v{T+1}")
        A(f"v_lshlrev_b32 v{T+1}, 16, v{T+1}")
        A(f"v_mul_f32 v{T+1}, s52, v{T+1}")
        A(f"v_cvt_pk_bf16_f32 v{T+1}, v{T+1}, v{T+1}")
        if half == 0:
            A(f"v_lshlrev_b32 v{T+4}, 16, v{T+1}")
        else:
            for kk in range(14):
                A(f"v_mov_b32 v{SC+kk}, v{SC+kk+2}")
            A(f"v_mov_b32 v{SC+14}, v{T+4}")
            A(f"v_lshlrev_b32 v{SC+15}, 16, v{T+1}")
    if stamps:
        for tt, idx in ((0, 7), (1, 8), (2, 9)):
            A(f"s_cmp_lg_u32 s47, {tt}")
            A(f"s_cbranch_scc1 L_nos{tt}")
            stamp(idx)
            A(f"L_nos{tt}:")
    A("s_mov_b64 vcc, 0")
    A("s_add_u32 s47, s47, 1")
    A("s_cmp_lt_u32 s47, 8")
    A("s_cbranch_scc1 L_ktrip")
    stamp(3)
    for m in range(LAL, PREV):
        issue_load(m)

    def allreduce(op, reg, tmp):
        for sh in (8, 4, 2, 1):
            nop(2)
            A(f"{op}_dpp v{reg}, v{reg}, v{reg} row_ror:{sh} row_mask:0xf bank_mask:0xf")
        A(f"v_mov_b32 v{tmp}, v{reg}")
        nop(2)
        A(f"v_permlane16_swap_b32 v{reg}, v{tmp}")
        nop(1)
        A(f"{op} v{reg}, v{reg}, v{tmp}")
        A(f"v_mov_b32 v{tmp}, v{reg}")
        nop(2)
        A(f"v_permlane32_swap_b32 v{reg}, v{tmp}")
        nop(1)
        A(f"{op} v{reg}, v{reg}, v{tmp}")

    M = T
    A(f"v_max3_f32 v{M}, v{SC}, v{SC+1}, v{SC+2}")
    for kk in range(3, 15, 2):
        A(f"v_max3_f32 v{M}, v{M}, v{SC+kk}, v{SC+kk+1}")
    A(f"v_max_f32 v{M}, v{M}, v{SC+15}")
    allreduce("v_max_f32", M, T + 2)
    for kk in range(16):
        A(f"v_sub_f32 v{SC+kk}, v{SC+kk}, v{M}")
    for kk in range(16):
        A(f"v_mul_f32 v{SC+kk}, s53, v{SC+kk}")
    for kk in range(16):
        A(f"v_exp_f32 v{SC+kk}, v{SC+kk}")
    nop(1)
    LS = T + 1
    A(f"v_add_f32 v{LS}, v{SC}, v{SC+1}")
    for kk in range(2, 16):
        A(f"v_add_f32 v{LS}, v{LS}, v{SC+kk}")
    for kk in range(16):
        A(f"v_cvt_pk_bf16_f32 v{SC+kk}, v{SC+kk}, v{SC+kk}")
    allreduce("v_add_f32", LS, T + 2)
    A("s_lshl_b32 s35, s3, 3")
    A(f"v_mov_b32 v{T+3}, s35")
    A(f"ds_write_b64 v{T+3}, v[{M}:{M+1}] offset:{L_ST}")
    A("s_waitcnt lgkmcnt(0)")
    A("s_barrier")
    stamp(4)

    A("s_mov_b32 s47, 0")
    A("s_mov_b64 vcc, -1")
    if ATS:
        A("s_mov_b32 s56, s26")
        A("s_and_b32 s57, s27, 0xffff")
        A(f"s_mov_b32 s58, {WS_SIZE}")
        A("s_mov_b32 s59, 0x20000")
        A("s_lshr_b32 s54, s30, 1")
        A("s_lshl_b32 s54, s54, 2")
        A("s_add_u32 s54, s54, s3")
        A("s_lshl_b32 s54, s54, 7")
        A("s_add_u32 s54, s54, 0x400000")
        A("v_mov_b32 v48, 0x12345")
    def vloop(label, lal, end, first):
        A(f"{label}:")
        for n in range(0, 32, GS):
            for i in range(GS):
                pr = SC + ((n + i) >> 4)
                j = (n + i) & 15
                for r in range(4):
                    A(f"v_and_b32_dpp v{AR+4*i+r}, v{pr}, v{4+r} row_newbcast:{j} row_mask:0xf bank_mask:0xf")
            if n + GS == 32:
                for kk in range(14):
                    A(f"v_mov_b32 v{SC+kk}, v{SC+kk+2}")
            A(f"s_waitcnt vmcnt({lal - GS})")
            skip = first and n + lal < PREV
            if skip:
                A(f"s_cbranch_vccnz {label}_skip{n}")
            for m in range(n + lal, n + lal + GS):
                issue_load(m)
            if skip:
                A(f"{label}_skip{n}:")
                nop(1)
            if ATS and n % 8 == 2:
                A(f"s_cmp_lt_u32 s47, {8 - ATS}")
                A(f"s_cbranch_scc1 {label}_noat{n}")
                A(f"s_cmp_ge_u32 s3, {ATW}")
                A(f"s_cbranch_scc1 {label}_noat{n}")
                A("s_mov_b64 exec, 1")
                A(f"buffer_atomic_swap v48, off, s[56:59], s54 {atpol}")
                A("s_mov_b64 exec, -1")
                A("s_add_u32 s54, s54, 4")
                A(f"{label}_noat{n}:")
            for i in range(GS):
                src = RING + (n + i) * 4
                A(f"v_mfma_f32_16x16x32_bf16 v[{D}:{D+3}], v[{AR+4*i}:{AR+4*i+3}], v[{src}:{src+3}], v[{D}:{D+3}]")
        if first:
            A("s_mov_b64 vcc, 0")
        A("s_add_u32 s47, s47, 1")
        A(f"s_cmp_lt_u32 s47, {end}")
        A(f"s_cbranch_scc1 {label}")
    if LAL2:
        assert LAL2 % GS == 0 and LAL2 + GS <= 32 and LAL2 >= LAL
        vloop("L_vtrip", LAL, NT1, True)
        for m in range(LAL, LAL2):
            issue_load(m)
        vloop("L_vtripb", LAL2, 8, False)
    else:
        vloop("L_vtrip", LAL, 8, True)
    stamp(5)
    A("s_lshl_b32 s35, s3, 9")
    A("v_lshlrev_b32 v8, 4, v3")
    A("v_add3_u32 v8, v8, v10, s35")
    A("s_mov_b32 exec_hi, 0")
    nop(4)
    A(f"ds_write_b128 v8, v[{D}:{D+3}] offset:{L_OP}")
    A("s_waitcnt lgkmcnt(0)")
    A("s_barrier")
    stamp(6)
    stamp_flush()
    A("s_endpgm")

    A("L_service:")
    if prio:
        A(f"s_setprio {prio}")
    VW = 1
    M2 = 12
    PC = 14
    VE = 19
    DQ = 20
    A2 = 28
    Y = 32
    AR = 52
    VXR = 60
    VXR2 = 60
    G = 64
    T = 80
    BUF = 96
    XU = 176
    XS = 216
    A("s_sub_u32 s34, s3, 4")
    def srd(base, ptr, size):
        A(f"s_mov_b32 s{base}, s{ptr}")
        A(f"s_and_b32 s{base+1}, s{ptr+1}, 0xffff")
        A(f"s_mov_b32 s{base+2}, {size}")
        A(f"s_mov_b32 s{base+3}, 0x20000")
    srd(64, 26, WS_SIZE)
    srd(40, 4, 4 * 1280)
    for j in range(4):
        A(f"s_mov_b32 s{92+j}, {hex(0x07060500 + j)}")
    A("s_mov_b32 s96, 0x0c0c0400")
    A("s_mov_b32 s97, 0x0c040100")
    A("s_mov_b32 s98, 0x04020100")

    def embed(dst, src, vtag, n):
        if RND:
            for r in range(n):
                A(f"v_add_u32 v{dst+r}, 0x80, v{src+r}")
            src = dst
        for r in range(n):
            A(f"v_perm_b32 v{dst+r}, v{src+r}, v{vtag}, s{92 + (r & 3)}")

    def extract(dst, w):
        A(f"v_perm_b32 v{dst}, v{w+1}, v{w}, s96")
        A(f"v_perm_b32 v{dst}, v{w+2}, v{dst}, s97")
        A(f"v_perm_b32 v{dst}, v{w+3}, v{dst}, s98")

    def strip(w, n):
        for r in range(n):
            A(f"v_and_b32 v{w+r}, 0xffffff00, v{w+r}")

    def xsum(regs, tmps, steps):
        for st_ in steps:
            if st_ == "r8":
                nop(2)
                for r in regs:
                    A(f"v_add_f32_dpp v{r}, v{r}, v{r} row_ror:8 row_mask:0xf bank_mask:0xf")
            else:
                for r, t_ in zip(regs, tmps):
                    A(f"v_mov_b32 v{t_}, v{r}")
                nop(2)
                for r, t_ in zip(regs, tmps):
                    A(f"v_permlane{st_[1:]}_swap_b32 v{r}, v{t_}")
                nop(1)
                for r, t_ in zip(regs, tmps):
                    A(f"v_add_f32 v{r}, v{r}, v{t_}")
    A("s_cmp_eq_u32 s34, 0")
    A("s_cbranch_scc0 L_idle")
    A(f"buffer_load_dword v{VE}, off, s[64:67], 0 offset:{WS_E} sc1")
    A("v_lshrrev_b32 v8, 2, v2")
    A("v_mul_u32_u24 v8, 1280, v8")
    A("v_and_b32 v10, 3, v2")
    A("v_lshl_add_u32 v11, v10, 2, v3")
    A("v_lshl_add_u32 v9, v11, 1, v8")
    A("v_lshl_add_u32 v11, v3, 2, v10")
    A("v_lshl_add_u32 v8, v11, 4, v8")
    if newmap or perm:
        A("s_mov_b32 s80, s33")
    else:
        A("s_lshr_b32 s80, s2, 3")
        A("s_and_b32 s80, s80, 7")
    Q4 = Q4 and FQ
    QB = QB and FQ and not Q4
    NQ = 10 if (Q4 or QB) else 5
    PQ = Y if (Q4 or QB) else PC
    if QB:
        A("s_and_b32 s78, s80, 1")
        A("s_lshr_b32 s80, s80, 1")
    if Q4:
        A("s_lshr_b32 s80, s80, 1")
    A(f"s_mul_i32 s36, s80, {32*NQ}")
    XG = [44, 48, 52, 56, 72] if Q4 else [XS + 4 * i for i in range(5)]
    for i in range(5):
        A(f"buffer_load_dwordx4 v[{XG[i]}:{XG[i]+3}], v8, s[40:43], 0 offen offset:{i*256}")
    if Q4:
        A("s_bitcmp1_b32 s2, 3")
        A("s_cbranch_scc0 L_noq1")
    for q in range(NQ):
        A(f"buffer_load_ushort v{PQ+q}, v9, s[40:43], s36 offen offset:{q*32}")
    srd(44, 10, 640 * 8192)
    A("v_lshlrev_b32 v10, 13, v3")
    A(f"v_lshl_add_u32 v10, v2, {3 if QB else 4}, v10")
    A(f"s_mul_i32 s35, s80, {16*NQ*8192}")
    A("s_lshl_b32 s36, s29, 8")
    A("s_add_u32 s35, s35, s36")
    if QB:
        A("s_lshl_b32 s36, s78, 7")
        A("s_add_u32 s35, s35, s36")
    for n in range(4 * NQ):
        r = BUF + 4 * n
        if QB:
            A(f"buffer_load_dwordx2 v[{BUF+2*n}:{BUF+2*n+1}], v10, s[44:47], s35 offen {apol}")
        elif not nowq:
            A(f"buffer_load_dwordx4 v[{r}:{r+3}], v10, s[44:47], s35 offen {apol}")
        if n != 4 * NQ - 1:
            A(f"s_add_u32 s35, s35, {4*8192}")
    if Q4:
        A("L_noq1:")
    if B0:
        A("s_barrier")
    stamp(12)
    A(f"s_lshl_b32 s81, s29, {13 if (Q4 or QB) else 14 if FQ else 15}")
    A(f"s_lshl_b32 s36, s80, {10 if QB else 11 if FQ else 12}")
    A("s_add_u32 s81, s81, s36")
    if QB:
        A("s_lshl_b32 s36, s78, 12")
        A("s_add_u32 s81, s81, s36")
    A(f"s_add_u32 s81, s81, {WS_QP}")
    def masks2():
        A("v_and_b32 v8, 1, v2")
        A("v_lshlrev_b32 v8, 4, v8")
        A("v_mov_b32 v9, 0xffff")
        A("v_lshlrev_b32 v9, v8, v9")
        A("v_and_b32 v10, 2, v2")
        A("v_cmp_eq_u32 vcc, 0, v10")
        for r in range(8):
            A(f"v_mov_b32 v{DQ+r}, 0")
        A(f"v_cndmask_b32 v{M2}, 0, v9, vcc")
        A("v_cmp_ne_u32 vcc, 0, v10")
        nop(2)
        A(f"v_cndmask_b32 v{M2+1}, 0, v9, vcc")
    masks2()
    if Q4:
        A("s_bitcmp1_b32 s2, 3")
        A("s_cbranch_scc1 L_qw")
        A("s_waitcnt vmcnt(0)")
        A("L_qw:")
    A("s_waitcnt vmcnt(%d)" % (0 if nowq else 4 * NQ))
    stamp(1)
    def unpack(dst, r):
        A(f"v_lshlrev_b32 v{dst}, 16, v{XG[r >> 2] + (r & 3)}")
        A(f"v_and_b32 v{dst+1}, 0xffff0000, v{XG[r >> 2] + (r & 3)}")
    if Q4:
        A(f"v_readfirstlane_b32 s72, v{VE}")
        for r in range(4):
            unpack(G + 2 * r, r)
        for r0 in range(4, 20, 4):
            for a in range(4):
                unpack(T + 8 + 2 * a, r0 + a)
            for a in range(4):
                A(f"v_pk_add_f32 v[{G+2*a}:{G+2*a+1}], v[{G+2*a}:{G+2*a+1}], v[{T+8+2*a}:{T+9+2*a}]")
    else:
        for r in range(20):
            unpack(XU + 2 * r, r)
        A(f"v_readfirstlane_b32 s72, v{VE}")
        for a in range(4):
            A(f"v_pk_add_f32 v[{G+2*a}:{G+2*a+1}], v[{XU+2*a}:{XU+2*a+1}], v[{XU+8+2*a}:{XU+8+2*a+1}]")
        for r in range(8, 20):
            a = r & 3
            A(f"v_pk_add_f32 v[{G+2*a}:{G+2*a+1}], v[{G+2*a}:{G+2*a+1}], v[{XU+2*r}:{XU+2*r+1}]")
    A(f"v_pk_add_f32 v[{G}:{G+1}], v[{G}:{G+1}], v[{G+2}:{G+3}]")
    A(f"v_pk_add_f32 v[{G+4}:{G+5}], v[{G+4}:{G+5}], v[{G+6}:{G+7}]")
    A(f"s_mul_i32 s72, s72, {TAG_A}")
    A(f"v_pk_add_f32 v[{G}:{G+1}], v[{G}:{G+1}], v[{G+4}:{G+5}]")
    A(f"s_add_u32 s72, s72, {TAG_C}")
    A(f"v_add_f32 v{T}, v{G}, v{G+1}")

    def breduce(reg, tmp):
        nop(2)
        A(f"v_add_f32_dpp v{reg}, v{reg}, v{reg} quad_perm:[1,0,3,2] row_mask:0xf bank_mask:0xf")
        nop(2)
        A(f"v_add_f32_dpp v{reg}, v{reg}, v{reg} quad_perm:[2,3,0,1] row_mask:0xf bank_mask:0xf")
        A(f"v_mov_b32 v{tmp}, v{reg}")
        nop(2)
        A(f"v_permlane16_swap_b32 v{reg}, v{tmp}")
        nop(1)
        A(f"v_add_f32 v{reg}, v{reg}, v{tmp}")
        A(f"v_mov_b32 v{tmp}, v{reg}")
        nop(2)
        A(f"v_permlane32_swap_b32 v{reg}, v{tmp}")
        nop(1)
        A(f"v_add_f32 v{reg}, v{reg}, v{tmp}")

    breduce(T, T + 1)
    A(f"v_mul_f32 v{T}, 0x3acccccd, v{T}")
    A(f"v_mov_b32 v{T+1}, v{T}")
    if Q4:
        for r0 in range(0, 20, 4):
            for a in range(4):
                unpack(T + 8 + 2 * a, r0 + a)
            for a in range(4):
                t_ = T + 8 + 2 * a
                A(f"v_pk_add_f32 v[{t_}:{t_+1}], v[{t_}:{t_+1}], v[{T}:{T+1}] neg_lo:[0,1] neg_hi:[0,1]")
            for a in range(4):
                t_ = T + 8 + 2 * a
                if r0 == 0:
                    A(f"v_pk_mul_f32 v[{G+2*a}:{G+2*a+1}], v[{t_}:{t_+1}], v[{t_}:{t_+1}]")
                else:
                    A(f"v_pk_fma_f32 v[{G+2*a}:{G+2*a+1}], v[{t_}:{t_+1}], v[{t_}:{t_+1}], v[{G+2*a}:{G+2*a+1}]")
    else:
        for r in range(20):
            A(f"v_pk_add_f32 v[{XU+2*r}:{XU+2*r+1}], v[{XU+2*r}:{XU+2*r+1}], v[{T}:{T+1}] neg_lo:[0,1] neg_hi:[0,1]")
        for a in range(4):
            A(f"v_pk_mul_f32 v[{G+2*a}:{G+2*a+1}], v[{XU+2*a}:{XU+2*a+1}], v[{XU+2*a}:{XU+2*a+1}]")
        for r in range(4, 20):
            a = r & 3
            A(f"v_pk_fma_f32 v[{G+2*a}:{G+2*a+1}], v[{XU+2*r}:{XU+2*r+1}], v[{XU+2*r}:{XU+2*r+1}], v[{G+2*a}:{G+2*a+1}]")
    A(f"v_pk_add_f32 v[{G}:{G+1}], v[{G}:{G+1}], v[{G+2}:{G+3}]")
    A(f"v_pk_add_f32 v[{G+4}:{G+5}], v[{G+4}:{G+5}], v[{G+6}:{G+7}]")
    A(f"v_pk_add_f32 v[{G}:{G+1}], v[{G}:{G+1}], v[{G+4}:{G+5}]")
    A(f"v_add_f32 v{T+1}, v{G}, v{G+1}")
    breduce(T + 1, T + 2)
    A(f"v_mul_f32 v{T+1}, 0x3acccccd, v{T+1}")
    A(f"v_cvt_pk_bf16_f32 v{T}, v{T}, v{T}")
    A(f"v_cvt_pk_bf16_f32 v{T+1}, v{T+1}, v{T+1}")
    A(f"v_lshlrev_b32 v{T}, 16, v{T}")
    A(f"v_lshlrev_b32 v{T+1}, 16, v{T+1}")
    A(f"v_add_f32 v{T+1}, 0x3727c5ac, v{T+1}")
    A(f"v_cvt_pk_bf16_f32 v{T+1}, v{T+1}, v{T+1}")
    A(f"v_lshlrev_b32 v{T+1}, 16, v{T+1}")
    A(f"v_sqrt_f32 v{T+1}, v{T+1}")
    for q in range(NQ):
        A(f"v_lshlrev_b32 v{PQ+q}, 16, v{PQ+q}")
    A(f"v_cvt_pk_bf16_f32 v{T+1}, v{T+1}, v{T+1}")
    A(f"v_lshlrev_b32 v{T+1}, 16, v{T+1}")
    A(f"v_rcp_f32 v{T+2}, v{T+1}")

    def normalize(regs):
        for r in regs:
            A(f"v_sub_f32 v{r}, v{r}, v{T}")
        for r in regs:
            A(f"v_cvt_pk_bf16_f32 v{r}, v{r}, v{r}")
        for r in regs:
            A(f"v_lshlrev_b32 v{r}, 16, v{r}")
        for k, r in enumerate(regs):
            A(f"v_mul_f32 v{T+4+k}, v{r}, v{T+2}")
        for k, r in enumerate(regs):
            A(f"v_fma_f32 v{r}, -v{T+4+k}, v{T+1}, v{r}")
        for k, r in enumerate(regs):
            A(f"v_fma_f32 v{r}, v{r}, v{T+2}, v{T+4+k}")
        for r in regs:
            A(f"v_cvt_pk_bf16_f32 v{r}, v{r}, v{r}")
    if not Q4:
        normalize([PQ + q for q in range(NQ)])
    A(f"v_mov_b32 v{T+3}, s72")
    A("v_lshrrev_b32 v8, 2, v2")
    A("v_lshlrev_b32 v8, 4, v8")
    A(f"ds_write_b128 v8, v[{T}:{T+3}] offset:{L_TAG}")
    if Q4:
        A("s_bitcmp1_b32 s2, 3")
        A("s_cbranch_scc0 L_noq2")
        normalize([PQ + q for q in range(NQ)])
    stamp(14)

    def mkA2(setidx, n, pc):
        q, jj = n >> 2, n & 3
        for r in range(2):
            A(f"v_and_b32_dpp v{A2+2*setidx+r}, v{pc+q}, v{M2+r} quad_perm:[{jj},{jj},{jj},{jj}] row_mask:0xf bank_mask:0xf")

    def prod_mfma(NW, pc=PC):
        nop(2)
        mkA2(0, 0, pc)
        for n in range(NW):
            if n + 1 < NW:
                mkA2((n + 1) & 1, n + 1, pc)
            else:
                nop(2)
            if (n & 1) == 0:
                A(f"s_waitcnt vmcnt({NW - 2 - n})")
            b = BUF + 4 * n
            a = A2 + 2 * (n & 1)
            A(f"v_mfma_f32_16x16x16_bf16 v[{DQ}:{DQ+3}], v[{a}:{a+1}], v[{b}:{b+1}], v[{DQ}:{DQ+3}]")
            A(f"v_mfma_f32_16x16x16_bf16 v[{DQ+4}:{DQ+7}], v[{a}:{a+1}], v[{b+2}:{b+3}], v[{DQ+4}:{DQ+7}]")

    def prod_mfma_narrow(NW, pc):
        nop(2)
        mkA2(0, 0, pc)
        for n in range(NW):
            if n + 1 < NW:
                mkA2((n + 1) & 1, n + 1, pc)
            else:
                nop(2)
            if (n & 1) == 0:
                A(f"s_waitcnt vmcnt({NW - 2 - n})")
            b = BUF + 2 * n
            a = A2 + 2 * (n & 1)
            d = DQ + 4 * (n & 1)
            A(f"v_mfma_f32_16x16x16_bf16 v[{d}:{d+3}], v[{a}:{a+1}], v[{b}:{b+1}], v[{d}:{d+3}]")

    def publish(pol="sc1", nst=4, fmt=0):
        A("v_lshlrev_b32 v11, 4, v0")
        if fmt:
            A(f"v_mov_b32 v{G+8}, s72")
            nop(10)
            embed(G, DQ, G + 8, 8)
            for st_ in range(2):
                A(f"buffer_store_dwordx4 v[{G+4*st_}:{G+4*st_+3}], v11, s[64:67], s81 offen offset:{st_*1024} {pol}")
            return
        for r in range(8):
            A(f"v_mov_b32 v{G+2*r+1}, s72")
        for r in range(8):
            A(f"v_mov_b32 v{G+2*r}, v{DQ+r}")
        for st_ in range(nst):
            A(f"buffer_store_dwordx4 v[{G+4*st_}:{G+4*st_+3}], v11, s[64:67], s81 offen offset:{st_*1024} {pol}")

    if QB:
        prod_mfma_narrow(4 * NQ, PQ)
    else:
        prod_mfma(4 * NQ, PQ)
    stamp(15)
    if QB:
        A("v_lshlrev_b32 v11, 4, v0")
        A(f"v_mov_b32 v{G+8}, s72")
        nop(10)
        for r in range(4):
            A(f"v_add_f32 v{G+r}, v{DQ+r}, v{DQ+4+r}")
        embed(G + 4, G, G + 8, 4)
        A(f"buffer_store_dwordx4 v[{G+4}:{G+7}], v11, s[64:67], s81 offen {qppol}")
    else:
        publish(qppol, 4, FQ)
    if Q4:
        A("L_noq2:")
    if QB:
        A("v_lshlrev_b32 v10, 10, v3")
        A("v_lshl_add_u32 v10, v2, 4, v10")
        A("s_lshl_b32 s82, s29, 13")
        A("s_lshl_b32 s36, s28, 8")
        A("s_add_u32 s82, s82, s36")
        A(f"s_add_u32 s82, s82, {WS_QP}")
        A("s_add_u32 s35, s82, 4096")
        A(f"s_mov_b32 s36, {SPIN}")
        if ACK:
            A("s_waitcnt vmcnt(0)")
        stamp(10)
        A("L_pollq:")
        A(f"buffer_load_dwordx4 v[{BUF}:{BUF+3}], v10, s[64:67], s82 offen {qgpol}")
        A(f"buffer_load_dwordx4 v[{BUF+4}:{BUF+7}], v10, s[64:67], s35 offen {qgpol}")
        A("s_waitcnt vmcnt(0)")
        extract(T, BUF)
        extract(T + 1, BUF + 4)
        A(f"v_cmp_ne_u32 vcc, s72, v{T}")
        A(f"v_cmp_ne_u32_e64 s[74:75], s72, v{T+1}")
        nop(2)
        A("s_or_b64 s[74:75], vcc, s[74:75]")
        A("s_cbranch_scc0 L_pollq_done")
        A("s_sub_u32 s36, s36, 1")
        A("s_cmp_lg_u32 s36, 0")
        A("s_cbranch_scc1 L_pollq")
        A("L_pollq_done:")
        strip(BUF, 8)
        xsum([BUF + j for j in range(8)], [T + j for j in range(8)], ["s16", "s32"])
        A("v_lshlrev_b32 v9, 3, v2")
        for j in range(4):
            A(f"v_cvt_pk_bf16_f32 v{T+j}, v{BUF+2*j}, v{BUF+2*j+1}")
        A(f"ds_write_b64 v9, v[{T}:{T+1}] offset:{L_Q}")
        A(f"ds_write_b64 v9, v[{T+2}:{T+3}] offset:{L_Q+128}")
    elif FQ:
        A("v_and_b32 v10, 1, v3")
        A("v_lshlrev_b32 v10, 10, v10")
        A("v_lshrrev_b32 v9, 1, v3")
        A("v_lshl_add_u32 v10, v9, 11, v10")
        A("v_lshl_add_u32 v10, v2, 4, v10")
        A(f"s_lshl_b32 s82, s29, {13 if Q4 else 14}")
        A("s_lshl_b32 s36, s28, 8")
        A("s_add_u32 s82, s82, s36")
        A(f"s_add_u32 s82, s82, {WS_QP}")
        A(f"s_mov_b32 s36, {SPIN}")
        if ACK:
            A("s_waitcnt vmcnt(0)")
        stamp(10)
        A("L_pollq:")
        A("s_mov_b32 s35, s82")
        NG = 2 if Q4 else 4
        for n in range(NG):
            r = BUF + 4 * n
            A(f"buffer_load_dwordx4 v[{r}:{r+3}], v10, s[64:67], s35 offen {qgpol}")
            if n != NG - 1:
                A("s_add_u32 s35, s35, 4096")
        A("s_waitcnt vmcnt(0)")
        for n in range(NG):
            extract(T + n, BUF + 4 * n)
        if Q4:
            A(f"v_min_u32 v{T+4}, v{T}, v{T+1}")
            A(f"v_max_u32 v{T+5}, v{T}, v{T+1}")
        else:
            A(f"v_min3_u32 v{T+4}, v{T}, v{T+1}, v{T+2}")
            A(f"v_max3_u32 v{T+5}, v{T}, v{T+1}, v{T+2}")
            A(f"v_min_u32 v{T+4}, v{T+4}, v{T+3}")
            A(f"v_max_u32 v{T+5}, v{T+5}, v{T+3}")
        A(f"v_cmp_ne_u32 vcc, s72, v{T+4}")
        A(f"v_cmp_ne_u32_e64 s[74:75], s72, v{T+5}")
        nop(2)
        A("s_or_b64 s[74:75], vcc, s[74:75]")
        A("s_cbranch_scc0 L_pollq_done")
        A("s_sub_u32 s36, s36, 1")
        A("s_cmp_lg_u32 s36, 0")
        A("s_cbranch_scc1 L_pollq")
        A("L_pollq_done:")
        strip(BUF, 4 * NG)
        for j in range(4):
            A(f"v_add_f32 v{T+j}, v{BUF+j}, v{BUF+4+j}")
            if not Q4:
                A(f"v_add_f32 v{T+4+j}, v{BUF+8+j}, v{BUF+12+j}")
        if not Q4:
            for j in range(4):
                A(f"v_add_f32 v{T+j}, v{T+j}, v{T+4+j}")
        xsum([T + j for j in range(4)], [T + 4 + j for j in range(4)], ["s32"])
        A("v_and_b32 v9, 1, v3")
        A("v_lshlrev_b32 v9, 3, v9")
        A(f"v_cvt_pk_bf16_f32 v{T}, v{T}, v{T+1}")
        A(f"v_cvt_pk_bf16_f32 v{T+1}, v{T+2}, v{T+3}")
        A("v_lshl_add_u32 v9, v2, 4, v9")
        A(f"ds_write_b64 v9, v[{T}:{T+1}] offset:{L_Q}")
    else:
        A("v_lshlrev_b32 v10, 10, v3")
        A("v_lshl_add_u32 v10, v2, 4, v10")
        A("s_lshl_b32 s82, s29, 15")
        A("s_lshl_b32 s36, s28, 8")
        A("s_add_u32 s82, s82, s36")
        A(f"s_add_u32 s82, s82, {WS_QP}")
        A(f"s_mov_b32 s36, {SPIN}")
        if ACK:
            A("s_waitcnt vmcnt(0)")
        stamp(10)
        A("L_pollq:")
        A("s_mov_b32 s35, s82")
        for n in range(8):
            r = BUF + 4 * n
            A(f"buffer_load_dwordx4 v[{r}:{r+3}], v10, s[64:67], s35 offen {qgpol}")
            if n != 7:
                A("s_add_u32 s35, s35, 4096")
        A("s_waitcnt vmcnt(0)")
        A(f"v_min3_u32 v{T}, v{BUF+1}, v{BUF+3}, v{BUF+5}")
        A(f"v_max3_u32 v{T+1}, v{BUF+1}, v{BUF+3}, v{BUF+5}")
        for q in range(7, 31, 4):
            A(f"v_min3_u32 v{T}, v{T}, v{BUF+q}, v{BUF+q+2}")
            A(f"v_max3_u32 v{T+1}, v{T+1}, v{BUF+q}, v{BUF+q+2}")
        A(f"v_min_u32 v{T}, v{T}, v{BUF+31}")
        A(f"v_max_u32 v{T+1}, v{T+1}, v{BUF+31}")
        A(f"v_cmp_ne_u32 vcc, s72, v{T}")
        A(f"v_cmp_ne_u32_e64 s[74:75], s72, v{T+1}")
        nop(2)
        A("s_or_b64 s[74:75], vcc, s[74:75]")
        A("s_cbranch_scc0 L_pollq_done")
        A("s_sub_u32 s36, s36, 1")
        A("s_cmp_lg_u32 s36, 0")
        A("s_cbranch_scc1 L_pollq")
        A("L_pollq_done:")
        for a in range(4):
            A(f"v_add_f32 v{T+2*a}, v{BUF+8*a}, v{BUF+8*a+4}")
            A(f"v_add_f32 v{T+2*a+1}, v{BUF+8*a+2}, v{BUF+8*a+6}")
        for a in range(2):
            A(f"v_add_f32 v{T+4*a}, v{T+4*a}, v{T+4*a+2}")
            A(f"v_add_f32 v{T+4*a+1}, v{T+4*a+1}, v{T+4*a+3}")
        A(f"v_add_f32 v{T}, v{T}, v{T+4}")
        A(f"v_add_f32 v{T+1}, v{T+1}, v{T+5}")
        A("v_lshlrev_b32 v9, 2, v3")
        A(f"v_cvt_pk_bf16_f32 v{T}, v{T}, v{T+1}")
        A("v_lshl_add_u32 v9, v2, 4, v9")
        A(f"ds_write_b32 v9, v{T} offset:{L_Q}")
    A("s_waitcnt lgkmcnt(0)")
    stamp(13)
    A("s_branch L_b1")
    A("L_idle:")
    if B0:
        A("s_barrier")
    A("L_b1:")
    A("s_barrier")
    stamp(2)
    A("v_lshrrev_b32 v8, 2, v2")
    A("v_lshlrev_b32 v9, 4, v8")
    A(f"ds_read_b128 v[{T}:{T+3}], v9 offset:{L_TAG}")
    A("s_waitcnt lgkmcnt(0)")
    A(f"v_readfirstlane_b32 s72, v{T+3}")
    F4 = F4 and FF
    FB = FB and F4
    NF = 10 if F4 else 5
    PF = Y if F4 else PC
    NTM = 56 if F4 else 112

    def ftask(skip):
        if FB:
            A("s_mov_b32 s99, s2")
            A("s_cmp_ge_u32 s99, 216")
            A(f"s_cbranch_scc1 {skip}")
            return
        if F4:
            A("s_bitcmp1_b32 s2, 3")
            A(f"s_cbranch_scc1 {skip}")
            A("s_lshr_b32 s99, s2, 4")
            A("s_lshl_b32 s99, s99, 3")
            A("s_and_b32 s36, s2, 7")
            A("s_or_b32 s99, s99, s36")
        else:
            A("s_mov_b32 s99, s2")
        A(f"s_cmp_ge_u32 s99, {2*NTM}")
        A(f"s_cbranch_scc1 {skip}")

    A("s_cmp_lg_u32 s34, 2")
    A("s_cbranch_scc1 L_common")
    ftask("L_common")
    if noffn:
        A("s_branch L_common")
    if FB:
        NTM = 108
    A(f"s_cmp_ge_u32 s99, {NTM}")
    A(f"s_cselect_b32 s36, {NTM}, 0")
    A("s_sub_u32 s36, s99, s36")
    if FB:
        A("s_and_b32 s78, s36, 3")
        A("s_lshr_b32 s79, s36, 2")
    else:
        A("s_mul_i32 s78, s36, 4682")
        A("s_lshr_b32 s78, s78, 16")
        A("s_mul_i32 s79, s78, 14")
        A("s_sub_u32 s79, s36, s79")
    A("v_mul_u32_u24 v8, 1280, v8")
    A("v_and_b32 v10, 3, v2")
    A("v_lshl_add_u32 v11, v10, 2, v3")
    A("v_lshl_add_u32 v9, v11, 1, v8")
    A(f"s_mul_i32 s36, s78, {32*NF}")
    for q in range(NF):
        A(f"buffer_load_ushort v{PF+q}, v9, s[40:43], s36 offen offset:{q*32}")
    A(f"s_cmp_ge_u32 s99, {NTM}")
    A("s_cbranch_scc1 L_ldU")
    srd(44, 16, 640 * 3456)
    A("s_branch L_ldF2")
    A("L_ldU:")
    srd(44, 18, 640 * 3456)
    A("L_ldF2:")
    A("v_mul_u32_u24 v1, 3456, v3")
    A(f"v_lshl_add_u32 v1, v2, {3 if FB else 4}, v1")
    A(f"s_mul_i32 s83, s78, {16*NF*3456}")
    A(f"s_lshl_b32 s36, s79, {7 if FB else 8}")
    A("s_add_u32 s83, s83, s36")
    for n in range(4 * NF):
        r = BUF + 4 * n
        if FP and n >= FP:
            A(f"s_waitcnt vmcnt({FP-1})")
        if FB:
            A(f"buffer_load_dwordx2 v[{BUF+2*n}:{BUF+2*n+1}], v1, s[44:47], s83 offen {apol}")
        elif not nofl:
            A(f"buffer_load_dwordx4 v[{r}:{r+3}], v1, s[44:47], s83 offen {apol}")
        if n != 4 * NF - 1:
            A(f"s_add_u32 s83, s83, {4*3456}")
    masks2()
    A("s_waitcnt vmcnt(%d)" % (0 if (nofl or FP) else 4 * NF))
    for q in range(NF):
        A(f"v_lshlrev_b32 v{PF+q}, 16, v{PF+q}")
    normalize([PF + q for q in range(NF)])
    if FB:
        prod_mfma_narrow(4 * NF, PF)
    else:
        prod_mfma(4 * NF, PF)
    stamp(15)
    A("L_common:")
    srd(56, 20, 1728 * 1280)
    srd(60, 12, 4096 * 1280)
    srd(68, 22, 4 * 1280)
    A(f"v_mul_u32_u24 v{VW}, 1280, v3")
    A(f"v_lshl_add_u32 v{VW}, v2, 4, v{VW}")
    for r in range(20):
        A(f"v_mov_b32 v{Y+r}, 0")
    A("s_mul_i32 s35, s28, 1280")
    if FY:
        A("s_min_u32 s36, s31, 19")
        A("s_lshl_b32 s36, s36, 6")
        A("s_add_u32 s35, s35, s36")
        A("v_and_b32 v10, 7, v0")
        A("v_lshlrev_b32 v10, 3, v10")
        A(f"buffer_load_dwordx2 v[{VXR2}:{VXR2+1}], v10, s[40:43], s35 offen")
    else:
        A("s_lshl_b32 s36, s31, 5")
        A("s_add_u32 s35, s35, s36")
        A("v_lshlrev_b32 v10, 2, v0")
        A(f"buffer_load_dword v{VXR}, v10, s[40:43], s35 offen")

    def mkA(setidx, preg, j):
        for r in range(4):
            A(f"v_and_b32_dpp v{AR+4*setidx+r}, v{preg}, v{4+r} row_newbcast:{j} row_mask:0xf bank_mask:0xf")

    def wd_first():
        A("s_mul_i32 s37, s31, 28")
        A("s_mul_i32 s36, s31, 24")
        A("s_add_u32 s36, s36, 192")
        A("s_cmp_lt_u32 s31, 48")
        A("s_cselect_b32 s37, s37, s36")

    def wd_loads():
        if FF:
            wd_first()
            A("s_mul_i32 s35, s37, 1280")
        else:
            A(f"s_mul_i32 s35, s31, {27*1280}")
        for kap in range(7):
            if FF and kap == 6:
                A(f"s_sub_u32 s36, s35, {4*1280}")
                A("s_cmp_lt_u32 s31, 48")
                A("s_cselect_b32 s35, s35, s36")
            for t in range(5):
                r = BUF + 4 * (kap * 5 + t)
                if WOP and kap * 5 + t >= WOP:
                    A(f"s_waitcnt vmcnt({WOP-1})")
                if not nowd:
                    A(f"buffer_load_dwordx4 v[{r}:{r+3}], v{VW}, s[56:59], s35 offen offset:{t*256} {dpol}")
            if kap != 6:
                A(f"s_add_u32 s35, s35, {4*1280}")

    def wo_loads():
        A("s_lshl_b32 s35, s29, 7")
        A("s_lshl_b32 s36, s34, 5")
        A("s_add_u32 s35, s35, s36")
        A("s_mul_i32 s35, s35, 1280")
        for kap in range(8):
            for t in range(5):
                r = BUF + 4 * (kap * 5 + t)
                if not nowo:
                    if WOP and kap * 5 + t >= WOP:
                        A(f"s_waitcnt vmcnt({WOP-1})")
                    A(f"buffer_load_dwordx4 v[{r}:{r+3}], v{VW}, s[60:63], s35 offen offset:{t*256} {wpol}")
            if kap != 7:
                A(f"s_add_u32 s35, s35, {4*1280}")

    EW = 240
    PS = 236

    def wg_stats(ew):
        A("v_mov_b32 v8, 0")
        A(f"ds_read_b128 v[{T}:{T+3}], v8 offset:{L_ST}")
        A(f"ds_read_b128 v[{T+4}:{T+7}], v8 offset:{L_ST+16}")
        A(f"s_mov_b32 s73, {hex(LOG2E)}")
        A("s_waitcnt lgkmcnt(0)")
        A(f"v_max3_f32 v{T+8}, v{T}, v{T+2}, v{T+4}")
        A(f"v_max_f32 v{T+8}, v{T+8}, v{T+6}")
        for w in range(4):
            A(f"v_sub_f32 v{ew+w}, v{T+2*w}, v{T+8}")
        for w in range(4):
            A(f"v_mul_f32 v{ew+w}, s73, v{ew+w}")
        for w in range(4):
            A(f"v_exp_f32 v{ew+w}, v{ew+w}")
        nop(1)
        A(f"v_mul_f32 v{T+10}, v{ew}, v{T+1}")
        for w in range(1, 4):
            A(f"v_fma_f32 v{T+10}, v{ew+w}, v{T+2*w+1}, v{T+10}")

    A("s_cmp_eq_u32 s34, 1")
    A("s_cbranch_scc1 L_k1")
    if WOAT == 0:
        wo_loads()
    A("s_branch L_kdone")
    A("L_k1:")
    if WDAT == 0 and not noffn:
        wd_loads()
    A("L_kdone:")
    stamp(3)
    A("s_barrier")
    A("s_cmp_eq_u32 s34, 1")
    A("s_cbranch_scc1 L_v1")
    A("s_cmp_eq_u32 s34, 0")
    A("s_cbranch_scc0 L_nostat")
    wg_stats(G)
    A(f"v_mov_b32 v{T+9}, s72")
    A(f"v_mov_b32 v{T+11}, s72")
    A("s_lshl_b32 s35, s30, 7")
    A(f"s_add_u32 s35, s35, {WS_ST}")
    A("s_mov_b64 exec, 1")
    A(f"buffer_store_dwordx4 v[{T+8}:{T+11}], off, s[64:67], s35 {ppol}")
    A("s_mov_b64 exec, -1")
    A("L_nostat:")
    A("s_cmp_lg_u32 s34, 2")
    A("s_cbranch_scc1 L_nofpub")
    ftask("L_nofpub")
    if FB and not (noffn or nopub):
        A("s_lshl_b32 s81, s99, 10")
        A(f"s_add_u32 s81, s81, {WS_GP}")
        A("v_lshlrev_b32 v11, 4, v0")
        A(f"v_mov_b32 v{G+8}, s72")
        for r in range(4):
            A(f"v_add_f32 v{G+r}, v{DQ+r}, v{DQ+4+r}")
        embed(G + 4, G, G + 8, 4)
        A(f"buffer_store_dwordx4 v[{G+4}:{G+7}], v11, s[64:67], s81 offen {ppol}")
    elif not (noffn or nopub):
        A(f"s_cmp_ge_u32 s99, {NTM}")
        A(f"s_cselect_b32 s36, {NTM}, 0")
        A("s_sub_u32 s37, s99, s36")
        A("s_mul_i32 s78, s37, 4682")
        A("s_lshr_b32 s78, s78, 16")
        A("s_mul_i32 s79, s78, 14")
        A("s_sub_u32 s79, s37, s79")
        A(f"s_lshl_b32 s81, s79, {2 if F4 else 3}")
        A("s_add_u32 s81, s81, s78")
        A("s_add_u32 s81, s81, s36")
        A(f"s_lshl_b32 s81, s81, {11 if FF else 12}")
        A(f"s_add_u32 s81, s81, {WS_GP}")
        publish(ppol, npub, FF)
    A("L_nofpub:")
    if WOAT == 1:
        wo_loads()
    A("s_branch L_vdone")

    A("L_v1:")
    if WDAT == 1 and not noffn:
        wd_loads()
    wg_stats(EW)
    if FF:
        wd_first()
        A("v_and_b32 v8, 7, v2")
        if FB:
            A("s_cmp_lt_u32 s31, 48")
            A("s_cselect_b32 s36, 6, 5")
            A("v_min_u32 v8, s36, v8")
        else:
            A("v_min_u32 v8, 6, v8")
        A("v_lshlrev_b32 v8, 2, v8")
        A("v_add_u32 v8, s37, v8")
        A(f"v_lshrrev_b32 v9, {6 if FB else 7}, v8")
        if FB:
            A("v_lshrrev_b32 v10, 3, v2")
            A("v_mul_u32_u24 v10, 27, v10")
            A("v_add_u32 v9, v9, v10")
            A("v_lshl_add_u32 v9, v9, 2, v3")
            A("v_lshlrev_b32 v9, 10, v9")
            A("v_bfe_u32 v10, v8, 2, 4")
            A("v_lshl_add_u32 v9, v10, 4, v9")
        elif F4:
            A("v_lshrrev_b32 v10, 3, v2")
            A("v_mul_u32_u24 v10, 14, v10")
            A("v_add_u32 v9, v9, v10")
            A("v_lshl_add_u32 v9, v9, 2, v3")
            A("v_lshlrev_b32 v9, 11, v9")
        else:
            A("v_lshlrev_b32 v9, 14, v9")
            A("v_lshrrev_b32 v10, 3, v2")
            A("v_lshl_add_u32 v10, v3, 1, v10")
            A("v_lshl_add_u32 v9, v10, 11, v9")
        if not FB:
            A("v_bfe_u32 v10, v8, 2, 1")
            A("v_lshl_add_u32 v9, v10, 10, v9")
            A("v_bfe_u32 v10, v8, 3, 4")
            A("v_lshl_add_u32 v9, v10, 4, v9")
        A("s_lshl_b32 s82, s28, 8")
        A(f"s_add_u32 s82, s82, {WS_GP}")
        A("s_lshl_b32 s83, s30, 7")
        A(f"s_add_u32 s83, s83, {WS_ST}")
        A("s_xor_b32 s83, s83, 128")
        A(f"s_mov_b32 s36, {SPIN}")
        A("L_pollg:")
        A(f"buffer_load_dwordx4 v[{PS}:{PS+3}], off, s[64:67], s83 {gpol}")
        chk = not (noffn or nog or nopub or nofl)
        if not (noffn or nog):
            A(f"s_add_u32 s35, s82, {112*2048}")
            A(f"buffer_load_dwordx4 v[{G}:{G+3}], v9, s[64:67], s82 offen {gpol}")
            if not F4:
                A(f"buffer_load_dwordx4 v[{G+4}:{G+7}], v9, s[64:67], s35 offen {gpol}")
        A("s_waitcnt vmcnt(0)")
        if chk and F4:
            extract(G + 8, G)
            A(f"v_min3_u32 v8, v{PS+1}, v{PS+3}, v{G+8}")
            A(f"v_max3_u32 v10, v{PS+1}, v{PS+3}, v{G+8}")
        elif chk:
            extract(G + 8, G)
            extract(G + 9, G + 4)
            A(f"v_min3_u32 v8, v{PS+1}, v{PS+3}, v{G+8}")
            A(f"v_max3_u32 v10, v{PS+1}, v{PS+3}, v{G+8}")
            A(f"v_min_u32 v8, v8, v{G+9}")
            A(f"v_max_u32 v10, v10, v{G+9}")
        else:
            A(f"v_min_u32 v8, v{PS+1}, v{PS+3}")
            A(f"v_max_u32 v10, v{PS+1}, v{PS+3}")
        A("v_cmp_ne_u32 vcc, s72, v8")
        A("v_cmp_ne_u32_e64 s[74:75], s72, v10")
        nop(2)
        A("s_or_b64 s[74:75], vcc, s[74:75]")
        A("s_cbranch_scc0 L_pollg_done")
        A("s_sub_u32 s36, s36, 1")
        A("s_cmp_lg_u32 s36, 0")
        A("s_cbranch_scc1 L_pollg")
        A("L_pollg_done:")
    else:
        A("v_and_b32 v8, 7, v2")
        A("v_lshl_add_u32 v8, v8, 2, v3")
        A("v_min_u32 v8, 26, v8")
        A("s_mul_i32 s35, s31, 27")
        A("v_add_u32 v8, s35, v8")
        A("v_lshrrev_b32 v9, 7, v8")
        A("v_lshlrev_b32 v9, 15, v9")
        A("v_lshrrev_b32 v10, 3, v2")
        A(f"v_mul_u32_u24 v10, {112*4096}, v10")
        A("v_add_u32 v9, v9, v10")
        A("v_bfe_u32 v10, v8, 1, 2")
        A("v_lshl_add_u32 v9, v10, 10, v9")
        A("v_bfe_u32 v10, v8, 3, 4")
        A("v_lshl_add_u32 v9, v10, 4, v9")
        A("v_and_b32 v10, 1, v8")
        A("v_lshl_add_u32 v9, v10, 3, v9")
        A("s_lshl_b32 s82, s28, 8")
        A(f"s_add_u32 s82, s82, {WS_GP}")
        A("s_lshl_b32 s83, s30, 7")
        A(f"s_add_u32 s83, s83, {WS_ST}")
        A("s_xor_b32 s83, s83, 128")
        A(f"s_mov_b32 s36, {SPIN}")
        A("L_pollg:")
        A("s_mov_b32 s35, s82")
        A(f"buffer_load_dwordx4 v[{PS}:{PS+3}], off, s[64:67], s83 {gpol}")
        nf = 0 if (noffn or nog) else 8
        for n in range(nf):
            r = G + 2 * n
            A(f"buffer_load_dwordx2 v[{r}:{r+1}], v9, s[64:67], s35 offen {gpol}")
            if n != 7:
                A("s_add_u32 s35, s35, 4096")
        A("s_waitcnt vmcnt(0)")
        if nf and not nopub and npub == 4 and not nofl:
            A(f"v_min3_u32 v8, v{PS+1}, v{PS+3}, v{G+1}")
            A(f"v_max3_u32 v10, v{PS+1}, v{PS+3}, v{G+1}")
            for q in range(3, 15, 4):
                A(f"v_min3_u32 v8, v8, v{G+q}, v{G+q+2}")
                A(f"v_max3_u32 v10, v10, v{G+q}, v{G+q+2}")
            A(f"v_min_u32 v8, v8, v{G+15}")
            A(f"v_max_u32 v10, v10, v{G+15}")
        else:
            A(f"v_min_u32 v8, v{PS+1}, v{PS+3}")
            A(f"v_max_u32 v10, v{PS+1}, v{PS+3}")
        A("v_cmp_ne_u32 vcc, s72, v8")
        A("v_cmp_ne_u32_e64 s[74:75], s72, v10")
        nop(2)
        A("s_or_b64 s[74:75], vcc, s[74:75]")
        A("s_cbranch_scc0 L_pollg_done")
        A("s_sub_u32 s36, s36, 1")
        A("s_cmp_lg_u32 s36, 0")
        A("s_cbranch_scc1 L_pollg")
        A("L_pollg_done:")
    stamp(9)
    A(f"v_max_f32 v{T}, v{T+8}, v{PS}")
    A(f"v_sub_f32 v{T+1}, v{T+8}, v{T}")
    A(f"v_sub_f32 v{T+2}, v{PS}, v{T}")
    A(f"v_mul_f32 v{T+1}, s73, v{T+1}")
    A(f"v_mul_f32 v{T+2}, s73, v{T+2}")
    A(f"v_exp_f32 v{T+1}, v{T+1}")
    A(f"v_exp_f32 v{T+2}, v{T+2}")
    nop(1)
    A(f"v_mul_f32 v{T+3}, v{T+1}, v{T+10}")
    A(f"v_fma_f32 v{T+3}, v{T+2}, v{PS+2}, v{T+3}")
    A(f"v_rcp_f32 v{T+2}, v{T+3}")
    nop(1)
    A(f"v_fma_f32 v{T}, -v{T+3}, v{T+2}, 1.0")
    A(f"v_fma_f32 v{T+2}, v{T}, v{T+2}, v{T+2}")
    A(f"v_mul_f32 v{T+1}, v{T+1}, v{T+2}")
    for w in range(4):
        A(f"v_mul_f32 v{EW+w}, v{EW+w}, v{T+1}")
    A(f"v_mov_b32 v8, {L_F}")
    A(f"ds_write_b128 v8, v[{EW}:{EW+3}]")
    if F4 and not noffn:
        strip(G, 4)
        xsum([G + r for r in range(4)], [G + 8 + r for r in range(4)], ["s16", "s32"])
        A("s_mov_b32 s74, 0xffff0000")
        A("s_mov_b32 s75, 0xffff0000")
        A("s_mov_b32 s76, 0")
        A("s_mov_b32 s77, -1")
        A(f"v_cndmask_b32_e64 v{G}, v{G}, v{G+1}, s[74:75]")
        A(f"v_cndmask_b32_e64 v{G+2}, v{G+2}, v{G+3}, s[74:75]")
        A(f"v_cndmask_b32_e64 v{G}, v{G}, v{G+2}, s[76:77]")
        A(f"v_cvt_pk_bf16_f32 v{G}, v{G}, v{G}")
        A(f"v_lshlrev_b32 v{G}, 16, v{G}")
        A("v_cmp_ne_u32 vcc, 6, v2")
        A("s_cmp_lt_u32 s31, 48")
        A("s_cselect_b64 s[74:75], -1, 0")
        A(f"v_mov_b32_dpp v{G+1}, v{G} row_ror:8 row_mask:0xf bank_mask:0xf")
        A(f"v_max_f32 v{G}, 0, v{G}")
        A("s_or_b64 vcc, vcc, s[74:75]")
        A(f"v_mul_f32 v{G}, v{G}, v{G+1}")
        A(f"v_cvt_pk_bf16_f32 v{G}, v{G}, v{G}")
        A(f"v_cndmask_b32 v{G}, 0, v{G}, vcc")
        nop(2)
        mkA(0, G, 0)
        for kap in range(7):
            if kap + 1 < 7:
                mkA((kap + 1) & 1, G, kap + 1)
            else:
                nop(2)
            a = AR + 4 * (kap & 1)
            for t in range(5):
                b = BUF + 4 * (kap * 5 + t)
                A(f"v_mfma_f32_16x16x32_bf16 v[{Y+4*t}:{Y+4*t+3}], v[{a}:{a+3}], v[{b}:{b+3}], v[{Y+4*t}:{Y+4*t+3}]")
    elif FF and not noffn:
        strip(G, 8)
        xsum([G + r for r in range(8)], [G + 8 + r for r in range(8)], ["r8", "s16", "s32"])
        A("s_mov_b32 s74, 0xffff0000")
        A("s_mov_b32 s75, 0xffff0000")
        A("s_mov_b32 s76, 0")
        A("s_mov_b32 s77, -1")
        for q in (G, G + 4):
            A(f"v_cndmask_b32_e64 v{q}, v{q}, v{q+1}, s[74:75]")
            A(f"v_cndmask_b32_e64 v{q+2}, v{q+2}, v{q+3}, s[74:75]")
        for q in (G, G + 4):
            A(f"v_cndmask_b32_e64 v{q}, v{q}, v{q+2}, s[76:77]")
        A(f"v_cvt_pk_bf16_f32 v{G}, v{G}, v{G}")
        A(f"v_cvt_pk_bf16_f32 v{G+4}, v{G+4}, v{G+4}")
        A(f"v_lshlrev_b32 v{G}, 16, v{G}")
        A(f"v_lshlrev_b32 v{G+4}, 16, v{G+4}")
        A("v_cmp_ne_u32 vcc, 6, v2")
        A("s_cmp_lt_u32 s31, 48")
        A("s_cselect_b64 s[74:75], -1, 0")
        A(f"v_max_f32 v{G}, 0, v{G}")
        A(f"v_mul_f32 v{G}, v{G}, v{G+4}")
        A("s_or_b64 vcc, vcc, s[74:75]")
        A(f"v_cvt_pk_bf16_f32 v{G}, v{G}, v{G}")
        A(f"v_cndmask_b32 v{G}, 0, v{G}, vcc")
        nop(2)
        mkA(0, G, 0)
        for kap in range(7):
            if kap + 1 < 7:
                mkA((kap + 1) & 1, G, kap + 1)
            else:
                nop(2)
            a = AR + 4 * (kap & 1)
            for t in range(5):
                b = BUF + 4 * (kap * 5 + t)
                A(f"v_mfma_f32_16x16x32_bf16 v[{Y+4*t}:{Y+4*t+3}], v[{a}:{a+3}], v[{b}:{b+3}], v[{Y+4*t}:{Y+4*t+3}]")
    elif not noffn:
        for a in range(4):
            A(f"v_add_f32 v{G+4*a}, v{G+4*a}, v{G+4*a+2}")
        for a in range(2):
            A(f"v_add_f32 v{G+8*a}, v{G+8*a}, v{G+8*a+4}")
        A(f"v_add_f32 v{G}, v{G}, v{G+8}")
        A(f"v_cvt_pk_bf16_f32 v{G}, v{G}, v{G}")
        A(f"v_lshlrev_b32 v{G}, 16, v{G}")
        A("v_cmp_ne_u32 vcc, 54, v0")
        nop(1)
        A(f"v_mov_b32_dpp v{G+1}, v{G} row_ror:8 row_mask:0xf bank_mask:0xf")
        A(f"v_max_f32 v{G}, 0, v{G}")
        A(f"v_mul_f32 v{G}, v{G}, v{G+1}")
        A(f"v_cvt_pk_bf16_f32 v{G}, v{G}, v{G}")
        A(f"v_cndmask_b32 v{G}, 0, v{G}, vcc")
        nop(2)
        mkA(0, G, 0)
        for kap in range(7):
            if kap + 1 < 7:
                mkA((kap + 1) & 1, G, kap + 1)
            else:
                nop(2)
            a = AR + 4 * (kap & 1)
            for t in range(5):
                b = BUF + 4 * (kap * 5 + t)
                A(f"v_mfma_f32_16x16x32_bf16 v[{Y+4*t}:{Y+4*t+3}], v[{a}:{a+3}], v[{b}:{b+3}], v[{Y+4*t}:{Y+4*t+3}]")
    stamp(11)
    A("s_waitcnt lgkmcnt(0)")
    wo_loads()
    A("L_vdone:")
    A("v_and_b32 v9, 7, v2")
    A("v_lshl_add_u32 v9, v9, 2, v3")
    A("s_lshl_b32 s35, s34, 5")
    A("v_add_u32 v9, s35, v9")
    A("v_lshlrev_b32 v9, 2, v9")
    A("v_lshlrev_b32 v8, 5, v2")
    A("v_lshl_add_u32 v8, v3, 4, v8")
    A("s_mul_i32 s35, s34, 2560")
    A("v_add_u32 v8, s35, v8")
    if FY:
        A("s_mul_i32 s35, s34, 40")
        A("v_add_u32 v10, s35, v0")
        A(f"v_lshlrev_b32 v{T+12}, 4, v10")
        A(f"v_lshrrev_b32 v{T+14}, 3, v10")
        A(f"v_lshlrev_b32 v{T+14}, 13, v{T+14}")
        A("v_and_b32 v10, 7, v10")
        A(f"v_lshl_add_u32 v{T+14}, v10, 4, v{T+14}")
        A(f"s_mul_i32 s76, s28, {20*8192}")
        A(f"s_add_u32 s76, s76, {WS_Y}")
        A("s_lshl_b32 s77, s31, 7")
        A("s_add_u32 s77, s77, s76")
    else:
        A("s_lshl_b32 s35, s34, 6")
        A("v_add_u32 v10, s35, v0")
        A("s_lshl_b32 s35, s34, 4")
        A("s_add_u32 s35, s35, 256")
        A("v_add_u32 v11, s35, v2")
        A(f"v_lshlrev_b32 v{T+12}, 3, v10")
        A(f"v_lshlrev_b32 v{T+13}, 3, v11")
        for (src, dst) in ((10, T + 14), (11, T + 15)):
            A(f"v_lshrrev_b32 v{dst}, 3, v{src}")
            A(f"v_lshlrev_b32 v{dst}, 13, v{dst}")
            A(f"v_and_b32 v{src}, 7, v{src}")
            A(f"v_lshl_add_u32 v{dst}, v{src}, 4, v{dst}")
        A("v_cmp_gt_u32 vcc, 16, v0")
        A(f"v_mov_b32 v10, 0x7ffffff0")
        nop(1)
        A(f"v_cndmask_b32 v{T+15}, v10, v{T+15}, vcc")
        A(f"s_mul_i32 s76, s28, {40*8192}")
        A(f"s_add_u32 s76, s76, {WS_Y}")
        A("s_lshl_b32 s77, s31, 7")
        A("s_add_u32 s77, s77, s76")
    A("s_waitcnt vmcnt(0)")
    stamp(4)
    A("s_barrier")
    stamp(5)
    A(f"v_mov_b32 v10, {L_F}")
    A(f"ds_read_b128 v[{G}:{G+3}], v10")
    for w in range(4):
        A(f"ds_read_b32 v{T+w}, v9 offset:{L_OP+w*512}")
    A("s_waitcnt lgkmcnt(0)")
    A(f"v_mul_f32 v{T}, v{T}, v{G}")
    for w in range(1, 4):
        A(f"v_fma_f32 v{T}, v{T+w}, v{G+w}, v{T}")
    A(f"v_cvt_pk_bf16_f32 v{T}, v{T}, v{T}")
    nop(2)
    mkA(0, T, 0)
    for kap in range(8):
        if kap + 1 < 8:
            mkA((kap + 1) & 1, T, kap + 1)
        else:
            nop(2)
        a = AR + 4 * (kap & 1)
        for t in range(5):
            b = BUF + 4 * (kap * 5 + t)
            A(f"v_mfma_f32_16x16x32_bf16 v[{Y+4*t}:{Y+4*t+3}], v[{a}:{a+3}], v[{b}:{b+3}], v[{Y+4*t}:{Y+4*t+3}]")
    A("s_mov_b32 exec_hi, 0")
    nop(5)
    for t in range(5):
        A(f"ds_write_b128 v8, v[{Y+4*t}:{Y+4*t+3}] offset:{L_YP+t*512}")
    A("s_mov_b64 exec, -1")
    A("s_waitcnt lgkmcnt(0)")
    A("s_barrier")
    if FY:
        A("s_mov_b32 exec_lo, -1")
        A("s_mov_b32 exec_hi, 0xff")
        for vv in range(4):
            A(f"ds_read_b128 v[{G+4*vv}:{G+4*vv+3}], v{T+12} offset:{L_YP+vv*2560}")
        A(f"v_mov_b32 v{T+8}, s72")
        A("s_waitcnt lgkmcnt(0)")
        for j in range(4):
            A(f"v_add_f32 v{G+j}, v{G+j}, v{G+4+j}")
            A(f"v_add_f32 v{G+8+j}, v{G+8+j}, v{G+12+j}")
        for j in range(4):
            A(f"v_add_f32 v{G+j}, v{G+j}, v{G+8+j}")
        embed(T, G, T + 8, 4)
        A(f"buffer_store_dwordx4 v[{T}:{T+3}], v{T+14}, s[64:67], s77 offen {yppol}")
        A("s_mov_b64 exec, -1")
    else:
        for vv in range(4):
            A(f"ds_read_b64 v[{G+2*vv}:{G+2*vv+1}], v{T+12} offset:{L_YP+vv*2560}")
            A(f"ds_read_b64 v[{G+8+2*vv}:{G+8+2*vv+1}], v{T+13} offset:{L_YP+vv*2560}")
        A(f"v_mov_b32 v{T+1}, s72")
        A(f"v_mov_b32 v{T+3}, s72")
        A(f"v_mov_b32 v{T+5}, s72")
        A(f"v_mov_b32 v{T+7}, s72")
        A("s_waitcnt lgkmcnt(0)")
        for (base, dst) in ((G, T), (G + 8, T + 4)):
            A(f"v_add_f32 v{base}, v{base}, v{base+2}")
            A(f"v_add_f32 v{base+1}, v{base+1}, v{base+3}")
            A(f"v_add_f32 v{base+4}, v{base+4}, v{base+6}")
            A(f"v_add_f32 v{base+5}, v{base+5}, v{base+7}")
            A(f"v_add_f32 v{dst}, v{base}, v{base+4}")
            A(f"v_add_f32 v{dst+2}, v{base+1}, v{base+5}")
        A(f"buffer_store_dwordx4 v[{T}:{T+3}], v{T+14}, s[64:67], s77 offen {yppol}")
        A(f"buffer_store_dwordx4 v[{T+4}:{T+7}], v{T+15}, s[64:67], s77 offen {yppol}")
    stamp(6)
    A("s_cmp_lg_u32 s34, 0")
    A("s_cbranch_scc1 L_flush")
    A(f"s_cmp_ge_u32 s31, {20 if FY else 40}")
    A("s_cbranch_scc1 L_flush")
    A("s_lshl_b32 s35, s31, 13")
    A("s_add_u32 s35, s35, s76")
    A("v_lshlrev_b32 v9, 4, v0")
    A("v_add_u32 v10, 0x1000, v9")
    A(f"s_mov_b32 s36, {SPIN}")
    multi = FY and NS > 1
    if multi:
        CB = BUF + 128

        def yloads(k):
            for n in range(8):
                r = BUF + 32 * k + 4 * n
                A(f"buffer_load_dwordx4 v[{r}:{r+3}], v{9 + (n >> 2)}, s[64:67], s35 offen offset:{(n&3)*1024} {ygpol}")
        for k in range(NS):
            yloads(k)
        A("L_poll2:")
        for k in range(NS):
            A(f"s_waitcnt vmcnt({8*(NS-1)})")
            for n in range(8):
                extract(G + n, BUF + 32 * k + 4 * n)
            A(f"v_min3_u32 v{T}, v{G}, v{G+1}, v{G+2}")
            A(f"v_max3_u32 v{T+1}, v{G}, v{G+1}, v{G+2}")
            for q in (3, 5):
                A(f"v_min3_u32 v{T}, v{T}, v{G+q}, v{G+q+1}")
                A(f"v_max3_u32 v{T+1}, v{T+1}, v{G+q}, v{G+q+1}")
            A(f"v_min_u32 v{T}, v{T}, v{G+7}")
            A(f"v_max_u32 v{T+1}, v{T+1}, v{G+7}")
            A(f"v_cmp_ne_u32 vcc, s72, v{T}")
            A(f"v_cmp_ne_u32_e64 s[74:75], s72, v{T+1}")
            nop(2)
            A("s_or_b64 s[74:75], vcc, s[74:75]")
            A(f"s_cbranch_scc0 L_ydone{k}")
            yloads(k)
        A("s_sub_u32 s36, s36, 1")
        A("s_cmp_lg_u32 s36, 0")
        A("s_cbranch_scc1 L_poll2")
        A("s_waitcnt vmcnt(0)")
        for k in range(NS):
            A(f"L_ydone{k}:")
            for r in range(32):
                A(f"v_and_b32 v{CB+r}, 0xffffff00, v{BUF+32*k+r}")
            if k != NS - 1:
                A("s_branch L_poll2_done")
        A("L_poll2_done:")
    else:
        if EXPNP:
            A("s_branch L_flush")
        A("L_poll2:")
        for n in range(8):
            r = BUF + 4 * n
            A(f"buffer_load_dwordx4 v[{r}:{r+3}], v{9 + (n >> 2)}, s[64:67], s35 offen offset:{(n&3)*1024} {ygpol}")
        A("s_waitcnt vmcnt(0)")
        if FY:
            for n in range(8):
                extract(G + n, BUF + 4 * n)
            A(f"v_min3_u32 v{T}, v{G}, v{G+1}, v{G+2}")
            A(f"v_max3_u32 v{T+1}, v{G}, v{G+1}, v{G+2}")
            for q in (3, 5):
                A(f"v_min3_u32 v{T}, v{T}, v{G+q}, v{G+q+1}")
                A(f"v_max3_u32 v{T+1}, v{T+1}, v{G+q}, v{G+q+1}")
            A(f"v_min_u32 v{T}, v{T}, v{G+7}")
            A(f"v_max_u32 v{T+1}, v{T+1}, v{G+7}")
        else:
            A(f"v_min3_u32 v{T}, v{BUF+1}, v{BUF+3}, v{BUF+5}")
            A(f"v_max3_u32 v{T+1}, v{BUF+1}, v{BUF+3}, v{BUF+5}")
            for q in range(7, 31, 4):
                A(f"v_min3_u32 v{T}, v{T}, v{BUF+q}, v{BUF+q+2}")
                A(f"v_max3_u32 v{T+1}, v{T+1}, v{BUF+q}, v{BUF+q+2}")
            A(f"v_min_u32 v{T}, v{T}, v{BUF+31}")
            A(f"v_max_u32 v{T+1}, v{T+1}, v{BUF+31}")
        A(f"v_cmp_ne_u32 vcc, s72, v{T}")
        A(f"v_cmp_ne_u32_e64 s[74:75], s72, v{T+1}")
        nop(2)
        A("s_or_b64 s[74:75], vcc, s[74:75]")
        A("s_cbranch_scc0 L_poll2_done")
        if EXPSL:
            A(f"s_sleep {EXPSL}")
        A("s_sub_u32 s36, s36, 1")
        A("s_cmp_lg_u32 s36, 0")
        A("s_cbranch_scc1 L_poll2")
        A("L_poll2_done:")
    if FY:
        YB = BUF + 128 if multi else BUF
        if not multi:
            strip(BUF, 32)
        for j in range(4):
            for n in range(4):
                A(f"v_add_f32 v{YB+8*n+j}, v{YB+8*n+j}, v{YB+8*n+4+j}")
        for j in range(4):
            A(f"v_add_f32 v{YB+j}, v{YB+j}, v{YB+8+j}")
            A(f"v_add_f32 v{YB+16+j}, v{YB+16+j}, v{YB+24+j}")
        for j in range(4):
            A(f"v_add_f32 v{T+j}, v{YB+j}, v{YB+16+j}")
        xsum([T + j for j in range(4)], [T + 4 + j for j in range(4)], ["r8", "s16", "s32"])
        A(f"v_lshlrev_b32 v{T+4}, 16, v{VXR2}")
        A(f"v_and_b32 v{T+5}, 0xffff0000, v{VXR2}")
        A(f"v_lshlrev_b32 v{T+6}, 16, v{VXR2+1}")
        A(f"v_and_b32 v{T+7}, 0xffff0000, v{VXR2+1}")
        for j in range(4):
            A(f"v_add_f32 v{T+j}, v{T+j}, v{T+4+j}")
        A(f"v_cvt_pk_bf16_f32 v{T}, v{T}, v{T+1}")
        A(f"v_cvt_pk_bf16_f32 v{T+1}, v{T+2}, v{T+3}")
        A("s_mul_i32 s35, s28, 1280")
        A("s_lshl_b32 s36, s31, 6")
        A("s_add_u32 s35, s35, s36")
        A("v_lshlrev_b32 v9, 3, v0")
        A("s_mov_b64 exec, 0xff")
        A(f"buffer_store_dwordx2 v[{T}:{T+1}], v9, s[68:71], s35 offen")
    else:
        A(f"v_add_f32 v{T}, v{BUF}, v{BUF+4}")
        A(f"v_add_f32 v{T+1}, v{BUF+2}, v{BUF+6}")
        A(f"v_add_f32 v{T+2}, v{BUF+8}, v{BUF+12}")
        A(f"v_add_f32 v{T+3}, v{BUF+10}, v{BUF+14}")
        A(f"v_add_f32 v{T+4}, v{BUF+16}, v{BUF+20}")
        A(f"v_add_f32 v{T+5}, v{BUF+18}, v{BUF+22}")
        A(f"v_add_f32 v{T+6}, v{BUF+24}, v{BUF+28}")
        A(f"v_add_f32 v{T+7}, v{BUF+26}, v{BUF+30}")
        A(f"v_add_f32 v{T}, v{T}, v{T+2}")
        A(f"v_add_f32 v{T+1}, v{T+1}, v{T+3}")
        A(f"v_add_f32 v{T+4}, v{T+4}, v{T+6}")
        A(f"v_add_f32 v{T+5}, v{T+5}, v{T+7}")
        A(f"v_add_f32 v{T}, v{T}, v{T+4}")
        A(f"v_add_f32 v{T+1}, v{T+1}, v{T+5}")
        nop(2)
        A(f"v_permlane32_swap_b32 v{T}, v{T+1}")
        nop(1)
        A(f"v_add_f32 v{T}, v{T}, v{T+1}")
        A(f"v_mov_b32 v{T+1}, v{T}")
        nop(2)
        A(f"v_permlane16_swap_b32 v{T}, v{T+1}")
        nop(1)
        A(f"v_add_f32 v{T}, v{T}, v{T+1}")
        nop(2)
        A(f"v_add_f32_dpp v{T}, v{T}, v{T} row_ror:8 row_mask:0xf bank_mask:0xf")
        A(f"v_mov_b32 v{T+1}, v{T}")
        nop(2)
        A(f"v_permlane32_swap_b32 v{T}, v{T+1}")
        A(f"v_lshlrev_b32 v{T+2}, 16, v{VXR}")
        A(f"v_and_b32 v{T+3}, 0xffff0000, v{VXR}")
        A(f"v_add_f32 v{T}, v{T}, v{T+2}")
        A(f"v_add_f32 v{T+1}, v{T+1}, v{T+3}")
        A(f"v_cvt_pk_bf16_f32 v{T}, v{T}, v{T+1}")
        A("s_mul_i32 s35, s28, 1280")
        A("s_lshl_b32 s36, s31, 5")
        A("s_add_u32 s35, s35, s36")
        A("v_lshlrev_b32 v9, 2, v0")
        A("s_mov_b64 exec, 0xff")
        A(f"buffer_store_dword v{T}, v9, s[68:71], s35 offen")
    A("s_or_b32 s36, s31, s28")
    A("s_cmp_lg_u32 s36, 0")
    A("s_cbranch_scc1 L_fin")
    A("s_mov_b64 exec, 1")
    A(f"v_mov_b32 v{T+1}, s72")
    A(f"buffer_store_dword v{T+1}, off, s[64:67], 0 offset:{WS_E} sc1")
    A("L_fin:")
    if FY and NS > 1:
        A("s_mov_b64 exec, -1")
        A("s_waitcnt vmcnt(0)")
    stamp(7)
    A("L_flush:")
    stamp_flush()
    A("L_end:")
    A("s_endpgm")

    body = "\n".join(("    " + l) if not l.endswith(":") else l for l in L) + "\n"
    return (HEADER % (LDS_SIZE, NAME, NAME, NAME)) + body + (FOOTER % NAME)


if __name__ == "__main__":
    kw = {}
    out = f"cdna_kernels/{NAME}.s"
    for a in sys.argv[1:]:
        if a.startswith("out="):
            out = a[4:]
            continue
        k, v = a.split("=")
        try:
            v = int(v)
        except ValueError:
            pass
        kw[k] = v
    open(out, "w").write(gen(**kw))
    print("wrote", out)
```

```python
import sys

NAME = "parallel_sum__gqa_block_cached__glu_gated_reglu__decode"

HEADER = """; Fused LN -> {GQA decode attention, ReGLU FFN} -> residual sum.  Generated by gen_kernel.py (hand-designed schedule).
; @launch grid=(256,1,1) block=(512,1,1) lds=%d
.amdgcn_target "amdgcn-amd-amdhsa--gfx950"
.text
.globl %s_kernel
.p2align 8
.type %s_kernel,@function
%s_kernel:
"""

FOOTER = """.section .rodata,"a"
.p2align 6
.amdhsa_kernel %s_kernel
  .amdhsa_next_free_vgpr 256
  .amdhsa_next_free_sgpr 102
  .amdhsa_accum_offset 256
  .amdhsa_group_segment_fixed_size 0
  .amdhsa_kernarg_size 96
  .amdhsa_user_sgpr_count 2
  .amdhsa_user_sgpr_kernarg_segment_ptr 1
  .amdhsa_system_sgpr_workgroup_id_x 1
.end_amdhsa_kernel
"""

L_Q = 0
L_TAG = 256
L_F = 384
L_ST = 2048
L_OP = 2560
L_YP = 4608
LDS_SIZE = 4608 + 4 * 2560

WS_E = 0
WS_ST = 4096
WS_Y = 65536
WS_QP = 0x160000
WS_GP = 0x260000
WS_DBG = 0x480000
WS_SIZE = 0x500000

TAG_A = 1664525
TAG_C = 1013904223
LOG2E = 0x3FB8AA3B
SCALE = 0x3DB504F3
SPIN = 20000


def gen(rot=0, LAL=6, GS=2, PRE=32, PREV=8, prio=0, NPRE=0, stamps=False, kpol="nt", wpol="", apol="nt", dpol="nt", LAL2=0, NT1=6, WOAT=0, WOP=4, WDAT=1, FP=0, B0=1, ACK=1, noffn=0, nowo=0, nowq=0, nofl=0, ppol="sc1 nt", gpol="sc1 nt", qgpol="sc1 nt", qppol="sc1", ygpol="sc1", yppol="sc1", npub=4, nopub=0, nowd=0, nog=0, FQ=1, FF=1, FY=1, RND=1, F4=1, Q4=0, EXPSL=0, EXPNP=0, NS=1, FB=1, QB=1, LAY=0, SADD=0, B0P=99, B0W=0, HW=0, opol="", perm=0, pxor=0, newmap=0, hmap=0, BLK=4096, STG=0, sidx=0, ssh=0, smask=0, ATS=0, atpol="sc0 sc1", ATW=4):
    L = []
    A = L.append

    def nop(n):
        assert 1 <= n <= 16
        A(f"s_nop {n-1}")

    def stamp(idx):
        if not stamps:
            return
        A("s_memrealtime s[90:91]")
        A("s_waitcnt lgkmcnt(0)")
        A(f"v_writelane_b32 v62, s90, {idx}")

    def stamp_flush():
        if not stamps:
            return
        A("s_mov_b64 exec, 0xffff")
        A("v_lshlrev_b32 v61, 2, v63")
        A("buffer_store_dword v62, v61, s[84:87], s88 offen")

    A("s_cmp_ge_u32 s2, 256")
    A("s_cbranch_scc1 L_end")
    A("s_load_dwordx16 s[4:19], s[0:1], 0")
    A("s_load_dwordx8 s[20:27], s[0:1], 64")
    A("v_lshrrev_b32 v1, 6, v0")
    A("v_and_b32 v0, 63, v0")
    A("v_readfirstlane_b32 s3, v1")
    if perm:
        A("s_mov_b32 s30, 0")
        for j, ch in enumerate(str(perm)[1:]):
            A(f"s_bfe_u32 s35, s2, {hex((1 << 16) | int(ch))}")
            A(f"s_lshl_b32 s35, s35, {j}")
            A("s_or_b32 s30, s30, s35")
        if pxor:
            d_, s_ = int(str(pxor)[1]), int(str(pxor)[2])
            A(f"s_bfe_u32 s35, s30, {hex((1 << 16) | s_)}")
            A(f"s_lshl_b32 s35, s35, {d_}")
            A("s_xor_b32 s30, s30, s35")
        A("s_and_b32 s38, s30, 1")
        A("s_bfe_u32 s29, s30, 0x50001")
        A("s_lshr_b32 s28, s30, 6")
        A("s_lshl_b32 s33, s28, 1")
        A("s_add_u32 s33, s33, s38")
        A("s_and_b32 s31, s30, 63")
    elif newmap:
        A("s_and_b32 s32, s2, 7")
        A("s_lshr_b32 s35, s2, 3")
        A("s_bfe_u32 s38, s32, 0x10001")
        A("s_mul_i32 s36, s38, 3")
        A("s_xor_b32 s36, s36, s32")
        A("s_and_b32 s37, s36, 1")
        A("s_lshr_b32 s36, s36, 1")
        A("s_or_b32 s36, s36, s37")
        A("s_and_b32 s28, s35, 3")
        A("s_lshr_b32 s35, s35, 2")
        A("s_lshl_b32 s36, s36, 3")
        A("s_add_u32 s29, s36, s35")
        A("s_lshl_b32 s39, s28, 5")
        A("s_add_u32 s39, s39, s29")
        A("s_lshl_b32 s39, s39, 1")
        A("s_add_u32 s30, s39, s38")
        A("s_lshl_b32 s33, s28, 1")
        A("s_add_u32 s33, s33, s38")
        A("s_lshl_b32 s31, s29, 1")
        A("s_add_u32 s31, s31, s38")
    else:
        if rot:
            A(f"s_add_u32 s32, s2, {rot}")
            A("s_and_b32 s32, s32, 7")
        else:
            A("s_and_b32 s32, s2, 7")
        A("s_lshr_b32 s35, s2, 3")
        A("s_lshr_b32 s36, s35, 3")
        A("s_and_b32 s37, s35, 7")
        A("s_lshr_b32 s28, s37, 1")
        A("s_and_b32 s38, s37, 1")
        if hmap == 0:
            A("s_lshl_b32 s39, s36, 3")
            A("s_add_u32 s29, s32, s39")
        elif hmap == 1:
            A("s_lshl_b32 s39, s32, 2")
            A("s_add_u32 s29, s36, s39")
        elif hmap == 2:
            A("s_lshl_b32 s39, s32, 1")
            A("s_and_b32 s29, s36, 1")
            A("s_add_u32 s29, s29, s39")
            A("s_lshr_b32 s39, s36, 1")
            A("s_lshl_b32 s39, s39, 4")
            A("s_add_u32 s29, s29, s39")
        elif hmap == 3:
            A("s_lshl_b32 s39, s36, 3")
            A("s_lshl_b32 s29, s36, 1")
            A("s_xor_b32 s29, s29, s32")
            A("s_add_u32 s29, s29, s39")
        A("s_lshl_b32 s39, s28, 5")
        A("s_add_u32 s39, s39, s29")
        A("s_lshl_b32 s39, s39, 1")
        A("s_add_u32 s30, s39, s38")
        A("s_lshl_b32 s33, s36, 1")
        A("s_add_u32 s33, s33, s38")
        A("s_lshl_b32 s31, s33, 3")
        A("s_add_u32 s31, s31, s32")
    A("v_and_b32 v2, 15, v0")
    A("v_lshrrev_b32 v3, 4, v0")
    A("v_and_b32 v8, 1, v2")
    A("v_lshlrev_b32 v8, 4, v8")
    A("v_mov_b32 v9, 0xffff")
    A("v_lshlrev_b32 v9, v8, v9")
    A("v_lshrrev_b32 v10, 1, v2")
    for r in range(4):
        A(f"v_cmp_eq_u32 vcc, {r}, v10")
        nop(2)
        A(f"v_cndmask_b32 v{4+r}, 0, v9, vcc")
    A("s_waitcnt lgkmcnt(0)")
    if stamps:
        A("s_mov_b32 s84, s26")
        A("s_and_b32 s85, s27, 0xffff")
        A(f"s_mov_b32 s86, {WS_SIZE}")
        A("s_mov_b32 s87, 0x20000")
        A("s_lshl_b32 s88, s2, 3")
        A("s_add_u32 s88, s88, s3")
        A("s_lshl_b32 s88, s88, 6")
        A(f"s_add_u32 s88, s88, {WS_DBG}")
        A("v_mov_b32 v62, 0")
        A("v_mov_b32 v63, v0")
    stamp(0)
    A("s_cmp_ge_u32 s3, 4")
    A("s_cbranch_scc1 L_service")

    RING = 128
    Q = 12
    S = 16
    SC = 32
    AR = 64
    D = 80
    T = 84
    A("s_lshl_b32 s35, s30, 20")
    A("s_lshr_b32 s36, s30, 12")
    A("s_add_u32 s40, s6, s35")
    A("s_addc_u32 s41, s7, s36")
    A("s_and_b32 s41, s41, 0xffff")
    A("s_mov_b32 s42, 0x100000")
    A("s_mov_b32 s43, 0x20000")
    A("s_add_u32 s44, s8, s35")
    A("s_addc_u32 s45, s9, s36")
    A("s_and_b32 s45, s45, 0xffff")
    A(f"s_mul_i32 s35, s3, {BLK}")
    A("v_lshlrev_b32 v11, 4, v0")
    A("v_add_u32 v11, s35, v11")
    if STG:
        if sidx:
            A("s_lshr_b32 s55, s30, 4")
            A("s_and_b32 s35, s30, 1")
            if sidx == 1:
                A("s_lshl_b32 s55, s55, 1")
            else:
                A("s_lshl_b32 s35, s35, 4")
            A("s_add_u32 s55, s55, s35")
            A(f"s_mul_i32 s55, s55, {STG * 4 * BLK}")
        elif smask:
            A(f"s_lshr_b32 s55, s30, {ssh}")
            A(f"s_and_b32 s55, s55, {smask}")
            A(f"s_mul_i32 s55, s55, {STG * 4 * BLK}")
        else:
            A(f"s_mul_i32 s55, s30, {STG * 4 * BLK}")
        A("s_and_b32 s55, s55, 0xfffff")
        A("s_mov_b32 s46, s55")
    else:
        A("s_mov_b32 s46, 0")

    assert PREV % GS == 0 and LAL <= PREV <= 32 and LAL % GS == 0 and PRE % GS == 0 and LAL <= PRE <= 32 and LAL + GS <= 32 and 16 % GS == 0

    def issue_load(m):
        r = RING + (m % 32) * 4
        per = min(BLK // 1024, 4)
        A(f"buffer_load_dwordx4 v[{r}:{r+3}], v11, s[40:43], s46 offen offset:{(m % per)*1024} {kpol}")
        if m % per == per - 1:
            if BLK <= 4096:
                inc = 4 * BLK
            elif BLK == 262144:
                inc = 4096
            else:
                nb = BLK // 1024
                assert nb <= 32
                inc = 4096 if (m % nb) != nb - 1 else 4 * BLK - (BLK - 4096)
            A(f"s_add_u32 s46, s46, {inc}")
            if STG:
                A("s_and_b32 s46, s46, 0xfffff")

    for m in range(LAL):
        if B0 and m == NPRE:
            A("s_barrier")
        issue_load(m)
    if B0 and NPRE >= LAL:
        A("s_barrier")
    for m0 in range(LAL, PRE, GS):
        A(f"s_waitcnt vmcnt({LAL - GS})")
        for m in range(m0, m0 + GS):
            issue_load(m)
    A("s_mov_b32 s48, 0xaaaaaaaa")
    A("s_mov_b32 s49, 0xaaaaaaaa")
    A("s_mov_b32 s50, 0xcccccccc")
    A("s_mov_b32 s51, 0xcccccccc")
    A(f"s_mov_b32 s52, {hex(SCALE)}")
    A(f"s_mov_b32 s53, {hex(LOG2E)}")
    A("v_lshlrev_b32 v10, 5, v2")
    for r in range(4):
        A(f"v_mov_b32 v{D+r}, 0")
    stamp(1)
    A("s_barrier")
    stamp(2)
    A("v_lshlrev_b32 v9, 4, v2")
    A(f"ds_read_b128 v[{Q}:{Q+3}], v9 offset:{L_Q}")
    A("s_waitcnt lgkmcnt(0)")
    A("s_mov_b32 s47, 0")
    nop(2)

    A("s_mov_b64 vcc, -1")
    A("L_ktrip:")
    for half in range(2):
        for n in range(16 * half, 16 * half + 16, GS):
            if n == 32 - LAL:
                A("s_cmp_lg_u32 s47, 7")
                A("s_cbranch_scc1 L_knosw")
                A("s_mov_b32 s40, s44")
                A("s_mov_b32 s41, s45")
                A("s_mov_b32 s46, s55" if STG else "s_mov_b32 s46, 0")
                A("L_knosw:")
            A(f"s_waitcnt vmcnt({LAL - GS})")
            skip = n + LAL < PRE
            if skip:
                A(f"s_cbranch_vccnz L_kskip{n}")
            for m in range(n + LAL, n + LAL + GS):
                issue_load(m)
            if skip:
                A(f"L_kskip{n}:")
            for r in range(4):
                for i in range(GS):
                    src = RING + (n + i) * 4 + r
                    d = S + (n + i) % 16
                    c = "0" if r == 0 else f"v{d}"
                    A(f"v_dot2_f32_bf16 v{d}, v{src}, v{Q+r}, {c}")
        nop(3)
        for j in range(8):
            A(f"v_add_f32_dpp v{S+j}, v{S+j}, v{S+j} row_ror:8 row_mask:0xf bank_mask:0x3")
        for j in range(8):
            A(f"v_add_f32_dpp v{S+j}, v{S+j+8}, v{S+j+8} row_ror:8 row_mask:0xf bank_mask:0xc")
        for j in range(4):
            A(f"v_add_f32_dpp v{S+j}, v{S+j}, v{S+j} row_half_mirror row_mask:0xf bank_mask:0x5")
        for j in range(4):
            A(f"v_add_f32_dpp v{S+j}, v{S+j+4}, v{S+j+4} row_half_mirror row_mask:0xf bank_mask:0xa")
        A(f"v_cndmask_b32_e64 v{T+0}, v{S+2}, v{S+0}, s[50:51]")
        A(f"v_cndmask_b32_e64 v{T+2}, v{S+0}, v{S+2}, s[50:51]")
        A(f"v_cndmask_b32_e64 v{T+1}, v{S+3}, v{S+1}, s[50:51]")
        A(f"v_cndmask_b32_e64 v{T+3}, v{S+1}, v{S+3}, s[50:51]")
        nop(1)
        A(f"v_add_f32_dpp v{T+2}, v{T+0}, v{T+2} quad_perm:[2,3,0,1] row_mask:0xf bank_mask:0xf")
        A(f"v_add_f32_dpp v{T+3}, v{T+1}, v{T+3} quad_perm:[2,3,0,1] row_mask:0xf bank_mask:0xf")
        A(f"v_cndmask_b32_e64 v{T+0}, v{T+3}, v{T+2}, s[48:49]")
        A(f"v_cndmask_b32_e64 v{T+1}, v{T+2}, v{T+3}, s[48:49]")
        nop(2)
        A(f"v_add_f32_dpp v{T+1}, v{T+0}, v{T+1} quad_perm:[1,0,3,2] row_mask:0xf bank_mask:0xf")
        A(f"v_cvt_pk_bf16_f32 v{T+1}, v{T+1}, v{T+1}")
        A(f"v_lshlrev_b32 v{T+1}, 16, v{T+1}")
        A(f"v_mul_f32 v{T+1}, s52, v{T+1}")
        A(f"v_cvt_pk_bf16_f32 v{T+1}, v{T+1}, v{T+1}")
        if half == 0:
            A(f"v_lshlrev_b32 v{T+4}, 16, v{T+1}")
        else:
            for kk in range(14):
                A(f"v_mov_b32 v{SC+kk}, v{SC+kk+2}")
            A(f"v_mov_b32 v{SC+14}, v{T+4}")
            A(f"v_lshlrev_b32 v{SC+15}, 16, v{T+1}")
    if stamps:
        for tt, idx in ((0, 7), (1, 8), (2, 9)):
            A(f"s_cmp_lg_u32 s47, {tt}")
            A(f"s_cbranch_scc1 L_nos{tt}")
            stamp(idx)
            A(f"L_nos{tt}:")
    A("s_mov_b64 vcc, 0")
    A("s_add_u32 s47, s47, 1")
    A("s_cmp_lt_u32 s47, 8")
    A("s_cbranch_scc1 L_ktrip")
    stamp(3)
    for m in range(LAL, PREV):
        issue_load(m)

    def allreduce(op, reg, tmp):
        for sh in (8, 4, 2, 1):
            nop(2)
            A(f"{op}_dpp v{reg}, v{reg}, v{reg} row_ror:{sh} row_mask:0xf bank_mask:0xf")
        A(f"v_mov_b32 v{tmp}, v{reg}")
        nop(2)
        A(f"v_permlane16_swap_b32 v{reg}, v{tmp}")
        nop(1)
        A(f"{op} v{reg}, v{reg}, v{tmp}")
        A(f"v_mov_b32 v{tmp}, v{reg}")
        nop(2)
        A(f"v_permlane32_swap_b32 v{reg}, v{tmp}")
        nop(1)
        A(f"{op} v{reg}, v{reg}, v{tmp}")

    M = T
    A(f"v_max3_f32 v{M}, v{SC}, v{SC+1}, v{SC+2}")
    for kk in range(3, 15, 2):
        A(f"v_max3_f32 v{M}, v{M}, v{SC+kk}, v{SC+kk+1}")
    A(f"v_max_f32 v{M}, v{M}, v{SC+15}")
    allreduce("v_max_f32", M, T + 2)
    for kk in range(16):
        A(f"v_sub_f32 v{SC+kk}, v{SC+kk}, v{M}")
    for kk in range(16):
        A(f"v_mul_f32 v{SC+kk}, s53, v{SC+kk}")
    for kk in range(16):
        A(f"v_exp_f32 v{SC+kk}, v{SC+kk}")
    nop(1)
    LS = T + 1
    A(f"v_add_f32 v{LS}, v{SC}, v{SC+1}")
    for kk in range(2, 16):
        A(f"v_add_f32 v{LS}, v{LS}, v{SC+kk}")
    for kk in range(16):
        A(f"v_cvt_pk_bf16_f32 v{SC+kk}, v{SC+kk}, v{SC+kk}")
    allreduce("v_add_f32", LS, T + 2)
    A("s_lshl_b32 s35, s3, 3")
    A(f"v_mov_b32 v{T+3}, s35")
    A(f"ds_write_b64 v{T+3}, v[{M}:{M+1}] offset:{L_ST}")
    A("s_waitcnt lgkmcnt(0)")
    A("s_barrier")
    stamp(4)

    A("s_mov_b32 s47, 0")
    A("s_mov_b64 vcc, -1")
    if ATS:
        A("s_mov_b32 s56, s26")
        A("s_and_b32 s57, s27, 0xffff")
        A(f"s_mov_b32 s58, {WS_SIZE}")
        A("s_mov_b32 s59, 0x20000")
        A("s_lshr_b32 s54, s30, 1")
        A("s_lshl_b32 s54, s54, 2")
        A("s_add_u32 s54, s54, s3")
        A("s_lshl_b32 s54, s54, 7")
        A("s_add_u32 s54, s54, 0x400000")
        A("v_mov_b32 v48, 0x12345")
    def vloop(label, lal, end, first):
        A(f"{label}:")
        for n in range(0, 32, GS):
            for i in range(GS):
                pr = SC + ((n + i) >> 4)
                j = (n + i) & 15
                for r in range(4):
                    A(f"v_and_b32_dpp v{AR+4*i+r}, v{pr}, v{4+r} row_newbcast:{j} row_mask:0xf bank_mask:0xf")
            if n + GS == 32:
                for kk in range(14):
                    A(f"v_mov_b32 v{SC+kk}, v{SC+kk+2}")
            A(f"s_waitcnt vmcnt({lal - GS})")
            skip = first and n + lal < PREV
            if skip:
                A(f"s_cbranch_vccnz {label}_skip{n}")
            for m in range(n + lal, n + lal + GS):
                issue_load(m)
            if skip:
                A(f"{label}_skip{n}:")
                nop(1)
            if ATS and n % 8 == 2:
                A(f"s_cmp_lt_u32 s47, {8 - ATS}")
                A(f"s_cbranch_scc1 {label}_noat{n}")
                A(f"s_cmp_ge_u32 s3, {ATW}")
                A(f"s_cbranch_scc1 {label}_noat{n}")
                A("s_mov_b64 exec, 1")
                A(f"buffer_atomic_swap v48, off, s[56:59], s54 {atpol}")
                A("s_mov_b64 exec, -1")
                A("s_add_u32 s54, s54, 4")
                A(f"{label}_noat{n}:")
            for i in range(GS):
                src = RING + (n + i) * 4
                A(f"v_mfma_f32_16x16x32_bf16 v[{D}:{D+3}], v[{AR+4*i}:{AR+4*i+3}], v[{src}:{src+3}], v[{D}:{D+3}]")
        if first:
            A("s_mov_b64 vcc, 0")
        A("s_add_u32 s47, s47, 1")
        A(f"s_cmp_lt_u32 s47, {end}")
        A(f"s_cbranch_scc1 {label}")
    if LAL2:
        assert LAL2 % GS == 0 and LAL2 + GS <= 32 and LAL2 >= LAL
        vloop("L_vtrip", LAL, NT1, True)
        for m in range(LAL, LAL2):
            issue_load(m)
        vloop("L_vtripb", LAL2, 8, False)
    else:
        vloop("L_vtrip", LAL, 8, True)
    stamp(5)
    A("s_lshl_b32 s35, s3, 9")
    A("v_lshlrev_b32 v8, 4, v3")
    A("v_add3_u32 v8, v8, v10, s35")
    A("s_mov_b32 exec_hi, 0")
    nop(4)
    A(f"ds_write_b128 v8, v[{D}:{D+3}] offset:{L_OP}")
    A("s_waitcnt lgkmcnt(0)")
    A("s_barrier")
    stamp(6)
    stamp_flush()
    A("s_endpgm")

    A("L_service:")
    if prio:
        A(f"s_setprio {prio}")
    VW = 1
    M2 = 12
    PC = 14
    VE = 19
    DQ = 20
    A2 = 28
    Y = 32
    AR = 52
    VXR = 60
    VXR2 = 60
    G = 64
    T = 80
    BUF = 96
    XU = 176
    XS = 216
    A("s_sub_u32 s34, s3, 4")
    def srd(base, ptr, size):
        A(f"s_mov_b32 s{base}, s{ptr}")
        A(f"s_and_b32 s{base+1}, s{ptr+1}, 0xffff")
        A(f"s_mov_b32 s{base+2}, {size}")
        A(f"s_mov_b32 s{base+3}, 0x20000")
    srd(64, 26, WS_SIZE)
    srd(40, 4, 4 * 1280)
    for j in range(4):
        A(f"s_mov_b32 s{92+j}, {hex(0x07060500 + j)}")
    A("s_mov_b32 s96, 0x0c0c0400")
    A("s_mov_b32 s97, 0x0c040100")
    A("s_mov_b32 s98, 0x04020100")

    def embed(dst, src, vtag, n):
        if RND:
            for r in range(n):
                A(f"v_add_u32 v{dst+r}, 0x80, v{src+r}")
            src = dst
        for r in range(n):
            A(f"v_perm_b32 v{dst+r}, v{src+r}, v{vtag}, s{92 + (r & 3)}")

    def extract(dst, w):
        A(f"v_perm_b32 v{dst}, v{w+1}, v{w}, s96")
        A(f"v_perm_b32 v{dst}, v{w+2}, v{dst}, s97")
        A(f"v_perm_b32 v{dst}, v{w+3}, v{dst}, s98")

    def strip(w, n):
        for r in range(n):
            A(f"v_and_b32 v{w+r}, 0xffffff00, v{w+r}")

    def xsum(regs, tmps, steps):
        for st_ in steps:
            if st_ == "r8":
                nop(2)
                for r in regs:
                    A(f"v_add_f32_dpp v{r}, v{r}, v{r} row_ror:8 row_mask:0xf bank_mask:0xf")
            else:
                for r, t_ in zip(regs, tmps):
                    A(f"v_mov_b32 v{t_}, v{r}")
                nop(2)
                for r, t_ in zip(regs, tmps):
                    A(f"v_permlane{st_[1:]}_swap_b32 v{r}, v{t_}")
                nop(1)
                for r, t_ in zip(regs, tmps):
                    A(f"v_add_f32 v{r}, v{r}, v{t_}")
    A("s_cmp_eq_u32 s34, 0")
    A("s_cbranch_scc0 L_idle")
    A(f"buffer_load_dword v{VE}, off, s[64:67], 0 offset:{WS_E} sc1")
    A("v_lshrrev_b32 v8, 2, v2")
    A("v_mul_u32_u24 v8, 1280, v8")
    A("v_and_b32 v10, 3, v2")
    A("v_lshl_add_u32 v11, v10, 2, v3")
    A("v_lshl_add_u32 v9, v11, 1, v8")
    A("v_lshl_add_u32 v11, v3, 2, v10")
    A("v_lshl_add_u32 v8, v11, 4, v8")
    if newmap or perm:
        A("s_mov_b32 s80, s33")
    else:
        A("s_lshr_b32 s80, s2, 3")
        A("s_and_b32 s80, s80, 7")
    Q4 = Q4 and FQ
    QB = QB and FQ and not Q4
    NQ = 10 if (Q4 or QB) else 5
    PQ = Y if (Q4 or QB) else PC
    if QB:
        A("s_and_b32 s78, s80, 1")
        A("s_lshr_b32 s80, s80, 1")
    if Q4:
        A("s_lshr_b32 s80, s80, 1")
    A(f"s_mul_i32 s36, s80, {32*NQ}")
    XG = [44, 48, 52, 56, 72] if Q4 else [XS + 4 * i for i in range(5)]
    for i in range(5):
        A(f"buffer_load_dwordx4 v[{XG[i]}:{XG[i]+3}], v8, s[40:43], 0 offen offset:{i*256}")
    if Q4:
        A("s_bitcmp1_b32 s2, 3")
        A("s_cbranch_scc0 L_noq1")
    for q in range(NQ):
        A(f"buffer_load_ushort v{PQ+q}, v9, s[40:43], s36 offen offset:{q*32}")
    srd(44, 10, 640 * 8192)
    A("v_lshlrev_b32 v10, 13, v3")
    A(f"v_lshl_add_u32 v10, v2, {3 if QB else 4}, v10")
    A(f"s_mul_i32 s35, s80, {16*NQ*8192}")
    A("s_lshl_b32 s36, s29, 8")
    A("s_add_u32 s35, s35, s36")
    if QB:
        A("s_lshl_b32 s36, s78, 7")
        A("s_add_u32 s35, s35, s36")
    if SADD:
        A(f"s_mov_b32 s37, {4*8192}")
    for n in range(4 * NQ):
        r = BUF + 4 * n
        if B0 and n == B0P:
            A("s_barrier")
        if QB:
            A(f"buffer_load_dwordx2 v[{BUF+2*n}:{BUF+2*n+1}], v10, s[44:47], s35 offen {apol}")
        elif not nowq:
            A(f"buffer_load_dwordx4 v[{r}:{r+3}], v10, s[44:47], s35 offen {apol}")
        if n != 4 * NQ - 1:
            A("s_add_u32 s35, s35, s37" if SADD else f"s_add_u32 s35, s35, {4*8192}")
    if Q4:
        A("L_noq1:")
    if B0 and B0P >= 4 * NQ and not B0W:
        A("s_barrier")
    stamp(12)
    A(f"s_lshl_b32 s81, s29, {13 if (Q4 or QB) else 14 if FQ else 15}")
    A(f"s_lshl_b32 s36, s80, {10 if QB else 11 if FQ else 12}")
    A("s_add_u32 s81, s81, s36")
    if QB:
        A("s_lshl_b32 s36, s78, 12")
        A("s_add_u32 s81, s81, s36")
    A(f"s_add_u32 s81, s81, {WS_QP}")
    def masks2():
        A("v_and_b32 v8, 1, v2")
        A("v_lshlrev_b32 v8, 4, v8")
        A("v_mov_b32 v9, 0xffff")
        A("v_lshlrev_b32 v9, v8, v9")
        A("v_and_b32 v10, 2, v2")
        A("v_cmp_eq_u32 vcc, 0, v10")
        for r in range(8):
            A(f"v_mov_b32 v{DQ+r}, 0")
        A(f"v_cndmask_b32 v{M2}, 0, v9, vcc")
        A("v_cmp_ne_u32 vcc, 0, v10")
        nop(2)
        A(f"v_cndmask_b32 v{M2+1}, 0, v9, vcc")
    masks2()
    if Q4:
        A("s_bitcmp1_b32 s2, 3")
        A("s_cbranch_scc1 L_qw")
        A("s_waitcnt vmcnt(0)")
        A("L_qw:")
    A("s_waitcnt vmcnt(%d)" % (0 if nowq else 4 * NQ))
    if B0 and B0W:
        A("s_barrier")
    stamp(1)
    def unpack(dst, r):
        A(f"v_lshlrev_b32 v{dst}, 16, v{XG[r >> 2] + (r & 3)}")
        A(f"v_and_b32 v{dst+1}, 0xffff0000, v{XG[r >> 2] + (r & 3)}")
    if Q4:
        A(f"v_readfirstlane_b32 s72, v{VE}")
        for r in range(4):
            unpack(G + 2 * r, r)
        for r0 in range(4, 20, 4):
            for a in range(4):
                unpack(T + 8 + 2 * a, r0 + a)
            for a in range(4):
                A(f"v_pk_add_f32 v[{G+2*a}:{G+2*a+1}], v[{G+2*a}:{G+2*a+1}], v[{T+8+2*a}:{T+9+2*a}]")
    else:
        for r in range(20):
            unpack(XU + 2 * r, r)
        A(f"v_readfirstlane_b32 s72, v{VE}")
        for a in range(4):
            A(f"v_pk_add_f32 v[{G+2*a}:{G+2*a+1}], v[{XU+2*a}:{XU+2*a+1}], v[{XU+8+2*a}:{XU+8+2*a+1}]")
        for r in range(8, 20):
            a = r & 3
            A(f"v_pk_add_f32 v[{G+2*a}:{G+2*a+1}], v[{G+2*a}:{G+2*a+1}], v[{XU+2*r}:{XU+2*r+1}]")
    A(f"v_pk_add_f32 v[{G}:{G+1}], v[{G}:{G+1}], v[{G+2}:{G+3}]")
    A(f"v_pk_add_f32 v[{G+4}:{G+5}], v[{G+4}:{G+5}], v[{G+6}:{G+7}]")
    A(f"s_mul_i32 s72, s72, {TAG_A}")
    A(f"v_pk_add_f32 v[{G}:{G+1}], v[{G}:{G+1}], v[{G+4}:{G+5}]")
    A(f"s_add_u32 s72, s72, {TAG_C}")
    A(f"v_add_f32 v{T}, v{G}, v{G+1}")

    def breduce(reg, tmp):
        nop(2)
        A(f"v_add_f32_dpp v{reg}, v{reg}, v{reg} quad_perm:[1,0,3,2] row_mask:0xf bank_mask:0xf")
        nop(2)
        A(f"v_add_f32_dpp v{reg}, v{reg}, v{reg} quad_perm:[2,3,0,1] row_mask:0xf bank_mask:0xf")
        A(f"v_mov_b32 v{tmp}, v{reg}")
        nop(2)
        A(f"v_permlane16_swap_b32 v{reg}, v{tmp}")
        nop(1)
        A(f"v_add_f32 v{reg}, v{reg}, v{tmp}")
        A(f"v_mov_b32 v{tmp}, v{reg}")
        nop(2)
        A(f"v_permlane32_swap_b32 v{reg}, v{tmp}")
        nop(1)
        A(f"v_add_f32 v{reg}, v{reg}, v{tmp}")

    breduce(T, T + 1)
    A(f"v_mul_f32 v{T}, 0x3acccccd, v{T}")
    A(f"v_mov_b32 v{T+1}, v{T}")
    if Q4:
        for r0 in range(0, 20, 4):
            for a in range(4):
                unpack(T + 8 + 2 * a, r0 + a)
            for a in range(4):
                t_ = T + 8 + 2 * a
                A(f"v_pk_add_f32 v[{t_}:{t_+1}], v[{t_}:{t_+1}], v[{T}:{T+1}] neg_lo:[0,1] neg_hi:[0,1]")
            for a in range(4):
                t_ = T + 8 + 2 * a
                if r0 == 0:
                    A(f"v_pk_mul_f32 v[{G+2*a}:{G+2*a+1}], v[{t_}:{t_+1}], v[{t_}:{t_+1}]")
                else:
                    A(f"v_pk_fma_f32 v[{G+2*a}:{G+2*a+1}], v[{t_}:{t_+1}], v[{t_}:{t_+1}], v[{G+2*a}:{G+2*a+1}]")
    else:
        for r in range(20):
            A(f"v_pk_add_f32 v[{XU+2*r}:{XU+2*r+1}], v[{XU+2*r}:{XU+2*r+1}], v[{T}:{T+1}] neg_lo:[0,1] neg_hi:[0,1]")
        for a in range(4):
            A(f"v_pk_mul_f32 v[{G+2*a}:{G+2*a+1}], v[{XU+2*a}:{XU+2*a+1}], v[{XU+2*a}:{XU+2*a+1}]")
        for r in range(4, 20):
            a = r & 3
            A(f"v_pk_fma_f32 v[{G+2*a}:{G+2*a+1}], v[{XU+2*r}:{XU+2*r+1}], v[{XU+2*r}:{XU+2*r+1}], v[{G+2*a}:{G+2*a+1}]")
    A(f"v_pk_add_f32 v[{G}:{G+1}], v[{G}:{G+1}], v[{G+2}:{G+3}]")
    A(f"v_pk_add_f32 v[{G+4}:{G+5}], v[{G+4}:{G+5}], v[{G+6}:{G+7}]")
    A(f"v_pk_add_f32 v[{G}:{G+1}], v[{G}:{G+1}], v[{G+4}:{G+5}]")
    A(f"v_add_f32 v{T+1}, v{G}, v{G+1}")
    breduce(T + 1, T + 2)
    A(f"v_mul_f32 v{T+1}, 0x3acccccd, v{T+1}")
    A(f"v_cvt_pk_bf16_f32 v{T}, v{T}, v{T}")
    A(f"v_cvt_pk_bf16_f32 v{T+1}, v{T+1}, v{T+1}")
    A(f"v_lshlrev_b32 v{T}, 16, v{T}")
    A(f"v_lshlrev_b32 v{T+1}, 16, v{T+1}")
    A(f"v_add_f32 v{T+1}, 0x3727c5ac, v{T+1}")
    A(f"v_cvt_pk_bf16_f32 v{T+1}, v{T+1}, v{T+1}")
    A(f"v_lshlrev_b32 v{T+1}, 16, v{T+1}")
    A(f"v_sqrt_f32 v{T+1}, v{T+1}")
    for q in range(NQ):
        A(f"v_lshlrev_b32 v{PQ+q}, 16, v{PQ+q}")
    A(f"v_cvt_pk_bf16_f32 v{T+1}, v{T+1}, v{T+1}")
    A(f"v_lshlrev_b32 v{T+1}, 16, v{T+1}")
    A(f"v_rcp_f32 v{T+2}, v{T+1}")

    def normalize(regs):
        for r in regs:
            A(f"v_sub_f32 v{r}, v{r}, v{T}")
        for r in regs:
            A(f"v_cvt_pk_bf16_f32 v{r}, v{r}, v{r}")
        for r in regs:
            A(f"v_lshlrev_b32 v{r}, 16, v{r}")
        for k, r in enumerate(regs):
            A(f"v_mul_f32 v{T+4+k}, v{r}, v{T+2}")
        for k, r in enumerate(regs):
            A(f"v_fma_f32 v{r}, -v{T+4+k}, v{T+1}, v{r}")
        for k, r in enumerate(regs):
            A(f"v_fma_f32 v{r}, v{r}, v{T+2}, v{T+4+k}")
        for r in regs:
            A(f"v_cvt_pk_bf16_f32 v{r}, v{r}, v{r}")
    if not Q4:
        normalize([PQ + q for q in range(NQ)])
    A(f"v_mov_b32 v{T+3}, s72")
    A("v_lshrrev_b32 v8, 2, v2")
    A("v_lshlrev_b32 v8, 4, v8")
    A(f"ds_write_b128 v8, v[{T}:{T+3}] offset:{L_TAG}")
    if Q4:
        A("s_bitcmp1_b32 s2, 3")
        A("s_cbranch_scc0 L_noq2")
        normalize([PQ + q for q in range(NQ)])
    stamp(14)

    def mkA2(setidx, n, pc):
        q, jj = n >> 2, n & 3
        for r in range(2):
            A(f"v_and_b32_dpp v{A2+2*setidx+r}, v{pc+q}, v{M2+r} quad_perm:[{jj},{jj},{jj},{jj}] row_mask:0xf bank_mask:0xf")

    def prod_mfma(NW, pc=PC):
        nop(2)
        mkA2(0, 0, pc)
        for n in range(NW):
            if n + 1 < NW:
                mkA2((n + 1) & 1, n + 1, pc)
            else:
                nop(2)
            if (n & 1) == 0:
                A(f"s_waitcnt vmcnt({NW - 2 - n})")
            b = BUF + 4 * n
            a = A2 + 2 * (n & 1)
            A(f"v_mfma_f32_16x16x16_bf16 v[{DQ}:{DQ+3}], v[{a}:{a+1}], v[{b}:{b+1}], v[{DQ}:{DQ+3}]")
            A(f"v_mfma_f32_16x16x16_bf16 v[{DQ+4}:{DQ+7}], v[{a}:{a+1}], v[{b+2}:{b+3}], v[{DQ+4}:{DQ+7}]")

    def prod_mfma_narrow(NW, pc):
        nop(2)
        mkA2(0, 0, pc)
        for n in range(NW):
            if n + 1 < NW:
                mkA2((n + 1) & 1, n + 1, pc)
            else:
                nop(2)
            if (n & 1) == 0:
                A(f"s_waitcnt vmcnt({NW - 2 - n})")
            b = BUF + 2 * n
            a = A2 + 2 * (n & 1)
            d = DQ + 4 * (n & 1)
            A(f"v_mfma_f32_16x16x16_bf16 v[{d}:{d+3}], v[{a}:{a+1}], v[{b}:{b+1}], v[{d}:{d+3}]")

    def publish(pol="sc1", nst=4, fmt=0):
        A("v_lshlrev_b32 v11, 4, v0")
        if fmt:
            A(f"v_mov_b32 v{G+8}, s72")
            nop(10)
            embed(G, DQ, G + 8, 8)
            for st_ in range(2):
                A(f"buffer_store_dwordx4 v[{G+4*st_}:{G+4*st_+3}], v11, s[64:67], s81 offen offset:{st_*1024} {pol}")
            return
        for r in range(8):
            A(f"v_mov_b32 v{G+2*r+1}, s72")
        for r in range(8):
            A(f"v_mov_b32 v{G+2*r}, v{DQ+r}")
        for st_ in range(nst):
            A(f"buffer_store_dwordx4 v[{G+4*st_}:{G+4*st_+3}], v11, s[64:67], s81 offen offset:{st_*1024} {pol}")

    HW = HW and B0
    if HW:
        A("L_qm:")
    if QB:
        prod_mfma_narrow(4 * NQ, PQ)
    else:
        prod_mfma(4 * NQ, PQ)
    if HW:
        A("s_cmp_eq_u32 s34, 3")
        A("s_cbranch_scc1 L_b1")
    stamp(15)
    if QB:
        A("v_lshlrev_b32 v11, 4, v0")
        A(f"v_mov_b32 v{G+8}, s72")
        nop(10)
        for r in range(4):
            A(f"v_add_f32 v{G+r}, v{DQ+r}, v{DQ+4+r}")
        embed(G + 4, G, G + 8, 4)
        A(f"buffer_store_dwordx4 v[{G+4}:{G+7}], v11, s[64:67], s81 offen {qppol}")
    else:
        publish(qppol, 4, FQ)
    if Q4:
        A("L_noq2:")
    if QB:
        A("v_lshlrev_b32 v10, 10, v3")
        A("v_lshl_add_u32 v10, v2, 4, v10")
        A("s_lshl_b32 s82, s29, 13")
        A("s_lshl_b32 s36, s28, 8")
        A("s_add_u32 s82, s82, s36")
        A(f"s_add_u32 s82, s82, {WS_QP}")
        A("s_add_u32 s35, s82, 4096")
        A(f"s_mov_b32 s36, {SPIN}")
        if ACK:
            A("s_waitcnt vmcnt(0)")
        stamp(10)
        A("L_pollq:")
        A(f"buffer_load_dwordx4 v[{BUF}:{BUF+3}], v10, s[64:67], s82 offen {qgpol}")
        A(f"buffer_load_dwordx4 v[{BUF+4}:{BUF+7}], v10, s[64:67], s35 offen {qgpol}")
        A("s_waitcnt vmcnt(0)")
        extract(T, BUF)
        extract(T + 1, BUF + 4)
        A(f"v_cmp_ne_u32 vcc, s72, v{T}")
        A(f"v_cmp_ne_u32_e64 s[74:75], s72, v{T+1}")
        nop(2)
        A("s_or_b64 s[74:75], vcc, s[74:75]")
        A("s_cbranch_scc0 L_pollq_done")
        A("s_sub_u32 s36, s36, 1")
        A("s_cmp_lg_u32 s36, 0")
        A("s_cbranch_scc1 L_pollq")
        A("L_pollq_done:")
        strip(BUF, 8)
        xsum([BUF + j for j in range(8)], [T + j for j in range(8)], ["s16", "s32"])
        A("v_lshlrev_b32 v9, 3, v2")
        for j in range(4):
            A(f"v_cvt_pk_bf16_f32 v{T+j}, v{BUF+2*j}, v{BUF+2*j+1}")
        A(f"ds_write_b64 v9, v[{T}:{T+1}] offset:{L_Q}")
        A(f"ds_write_b64 v9, v[{T+2}:{T+3}] offset:{L_Q+128}")
    elif FQ:
        A("v_and_b32 v10, 1, v3")
        A("v_lshlrev_b32 v10, 10, v10")
        A("v_lshrrev_b32 v9, 1, v3")
        A("v_lshl_add_u32 v10, v9, 11, v10")
        A("v_lshl_add_u32 v10, v2, 4, v10")
        A(f"s_lshl_b32 s82, s29, {13 if Q4 else 14}")
        A("s_lshl_b32 s36, s28, 8")
        A("s_add_u32 s82, s82, s36")
        A(f"s_add_u32 s82, s82, {WS_QP}")
        A(f"s_mov_b32 s36, {SPIN}")
        if ACK:
            A("s_waitcnt vmcnt(0)")
        stamp(10)
        A("L_pollq:")
        A("s_mov_b32 s35, s82")
        NG = 2 if Q4 else 4
        for n in range(NG):
            r = BUF + 4 * n
            A(f"buffer_load_dwordx4 v[{r}:{r+3}], v10, s[64:67], s35 offen {qgpol}")
            if n != NG - 1:
                A("s_add_u32 s35, s35, 4096")
        A("s_waitcnt vmcnt(0)")
        for n in range(NG):
            extract(T + n, BUF + 4 * n)
        if Q4:
            A(f"v_min_u32 v{T+4}, v{T}, v{T+1}")
            A(f"v_max_u32 v{T+5}, v{T}, v{T+1}")
        else:
            A(f"v_min3_u32 v{T+4}, v{T}, v{T+1}, v{T+2}")
            A(f"v_max3_u32 v{T+5}, v{T}, v{T+1}, v{T+2}")
            A(f"v_min_u32 v{T+4}, v{T+4}, v{T+3}")
            A(f"v_max_u32 v{T+5}, v{T+5}, v{T+3}")
        A(f"v_cmp_ne_u32 vcc, s72, v{T+4}")
        A(f"v_cmp_ne_u32_e64 s[74:75], s72, v{T+5}")
        nop(2)
        A("s_or_b64 s[74:75], vcc, s[74:75]")
        A("s_cbranch_scc0 L_pollq_done")
        A("s_sub_u32 s36, s36, 1")
        A("s_cmp_lg_u32 s36, 0")
        A("s_cbranch_scc1 L_pollq")
        A("L_pollq_done:")
        strip(BUF, 4 * NG)
        for j in range(4):
            A(f"v_add_f32 v{T+j}, v{BUF+j}, v{BUF+4+j}")
            if not Q4:
                A(f"v_add_f32 v{T+4+j}, v{BUF+8+j}, v{BUF+12+j}")
        if not Q4:
            for j in range(4):
                A(f"v_add_f32 v{T+j}, v{T+j}, v{T+4+j}")
        xsum([T + j for j in range(4)], [T + 4 + j for j in range(4)], ["s32"])
        A("v_and_b32 v9, 1, v3")
        A("v_lshlrev_b32 v9, 3, v9")
        A(f"v_cvt_pk_bf16_f32 v{T}, v{T}, v{T+1}")
        A(f"v_cvt_pk_bf16_f32 v{T+1}, v{T+2}, v{T+3}")
        A("v_lshl_add_u32 v9, v2, 4, v9")
        A(f"ds_write_b64 v9, v[{T}:{T+1}] offset:{L_Q}")
    else:
        A("v_lshlrev_b32 v10, 10, v3")
        A("v_lshl_add_u32 v10, v2, 4, v10")
        A("s_lshl_b32 s82, s29, 15")
        A("s_lshl_b32 s36, s28, 8")
        A("s_add_u32 s82, s82, s36")
        A(f"s_add_u32 s82, s82, {WS_QP}")
        A(f"s_mov_b32 s36, {SPIN}")
        if ACK:
            A("s_waitcnt vmcnt(0)")
        stamp(10)
        A("L_pollq:")
        A("s_mov_b32 s35, s82")
        for n in range(8):
            r = BUF + 4 * n
            A(f"buffer_load_dwordx4 v[{r}:{r+3}], v10, s[64:67], s35 offen {qgpol}")
            if n != 7:
                A("s_add_u32 s35, s35, 4096")
        A("s_waitcnt vmcnt(0)")
        A(f"v_min3_u32 v{T}, v{BUF+1}, v{BUF+3}, v{BUF+5}")
        A(f"v_max3_u32 v{T+1}, v{BUF+1}, v{BUF+3}, v{BUF+5}")
        for q in range(7, 31, 4):
            A(f"v_min3_u32 v{T}, v{T}, v{BUF+q}, v{BUF+q+2}")
            A(f"v_max3_u32 v{T+1}, v{T+1}, v{BUF+q}, v{BUF+q+2}")
        A(f"v_min_u32 v{T}, v{T}, v{BUF+31}")
        A(f"v_max_u32 v{T+1}, v{T+1}, v{BUF+31}")
        A(f"v_cmp_ne_u32 vcc, s72, v{T}")
        A(f"v_cmp_ne_u32_e64 s[74:75], s72, v{T+1}")
        nop(2)
        A("s_or_b64 s[74:75], vcc, s[74:75]")
        A("s_cbranch_scc0 L_pollq_done")
        A("s_sub_u32 s36, s36, 1")
        A("s_cmp_lg_u32 s36, 0")
        A("s_cbranch_scc1 L_pollq")
        A("L_pollq_done:")
        for a in range(4):
            A(f"v_add_f32 v{T+2*a}, v{BUF+8*a}, v{BUF+8*a+4}")
            A(f"v_add_f32 v{T+2*a+1}, v{BUF+8*a+2}, v{BUF+8*a+6}")
        for a in range(2):
            A(f"v_add_f32 v{T+4*a}, v{T+4*a}, v{T+4*a+2}")
            A(f"v_add_f32 v{T+4*a+1}, v{T+4*a+1}, v{T+4*a+3}")
        A(f"v_add_f32 v{T}, v{T}, v{T+4}")
        A(f"v_add_f32 v{T+1}, v{T+1}, v{T+5}")
        A("v_lshlrev_b32 v9, 2, v3")
        A(f"v_cvt_pk_bf16_f32 v{T}, v{T}, v{T+1}")
        A("v_lshl_add_u32 v9, v2, 4, v9")
        A(f"ds_write_b32 v9, v{T} offset:{L_Q}")
    A("s_waitcnt lgkmcnt(0)")
    stamp(13)
    A("s_branch L_b1")
    A("L_idle:")
    if B0:
        A("s_barrier")
    if HW:
        A("s_cmp_eq_u32 s34, 3")
        A("s_cbranch_scc1 L_qm")
    A("L_b1:")
    A("s_barrier")
    stamp(2)
    A("v_lshrrev_b32 v8, 2, v2")
    A("v_lshlrev_b32 v9, 4, v8")
    A(f"ds_read_b128 v[{T}:{T+3}], v9 offset:{L_TAG}")
    A("s_waitcnt lgkmcnt(0)")
    A(f"v_readfirstlane_b32 s72, v{T+3}")
    F4 = F4 and FF
    FB = FB and F4
    NF = 10 if F4 else 5
    PF = Y if F4 else PC
    NTM = 56 if F4 else 112

    def ftask(skip):
        if FB:
            A("s_mov_b32 s99, s2")
            A("s_cmp_ge_u32 s99, 216")
            A(f"s_cbranch_scc1 {skip}")
            return
        if F4:
            A("s_bitcmp1_b32 s2, 3")
            A(f"s_cbranch_scc1 {skip}")
            A("s_lshr_b32 s99, s2, 4")
            A("s_lshl_b32 s99, s99, 3")
            A("s_and_b32 s36, s2, 7")
            A("s_or_b32 s99, s99, s36")
        else:
            A("s_mov_b32 s99, s2")
        A(f"s_cmp_ge_u32 s99, {2*NTM}")
        A(f"s_cbranch_scc1 {skip}")

    A("s_cmp_lg_u32 s34, 2")
    A("s_cbranch_scc1 L_common")
    ftask("L_common")
    if noffn:
        A("s_branch L_common")
    if FB:
        NTM = 108
    A(f"s_cmp_ge_u32 s99, {NTM}")
    A(f"s_cselect_b32 s36, {NTM}, 0")
    A("s_sub_u32 s36, s99, s36")
    if FB:
        A("s_and_b32 s78, s36, 3")
        A("s_lshr_b32 s79, s36, 2")
    else:
        A("s_mul_i32 s78, s36, 4682")
        A("s_lshr_b32 s78, s78, 16")
        A("s_mul_i32 s79, s78, 14")
        A("s_sub_u32 s79, s36, s79")
    A("v_mul_u32_u24 v8, 1280, v8")
    A("v_and_b32 v10, 3, v2")
    A("v_lshl_add_u32 v11, v10, 2, v3")
    A("v_lshl_add_u32 v9, v11, 1, v8")
    A(f"s_mul_i32 s36, s78, {32*NF}")
    for q in range(NF):
        A(f"buffer_load_ushort v{PF+q}, v9, s[40:43], s36 offen offset:{q*32}")
    A(f"s_cmp_ge_u32 s99, {NTM}")
    A("s_cbranch_scc1 L_ldU")
    srd(44, 16, 640 * 3456)
    A("s_branch L_ldF2")
    A("L_ldU:")
    srd(44, 18, 640 * 3456)
    A("L_ldF2:")
    A("v_mul_u32_u24 v1, 3456, v3")
    A(f"v_lshl_add_u32 v1, v2, {3 if FB else 4}, v1")
    A(f"s_mul_i32 s83, s78, {16*NF*3456}")
    A(f"s_lshl_b32 s36, s79, {7 if FB else 8}")
    A("s_add_u32 s83, s83, s36")
    for n in range(4 * NF):
        r = BUF + 4 * n
        if FP and n >= FP:
            A(f"s_waitcnt vmcnt({FP-1})")
        if FB:
            A(f"buffer_load_dwordx2 v[{BUF+2*n}:{BUF+2*n+1}], v1, s[44:47], s83 offen {apol}")
        elif not nofl:
            A(f"buffer_load_dwordx4 v[{r}:{r+3}], v1, s[44:47], s83 offen {apol}")
        if n != 4 * NF - 1:
            A(f"s_add_u32 s83, s83, {4*3456}")
    masks2()
    A("s_waitcnt vmcnt(%d)" % (0 if (nofl or FP) else 4 * NF))
    for q in range(NF):
        A(f"v_lshlrev_b32 v{PF+q}, 16, v{PF+q}")
    normalize([PF + q for q in range(NF)])
    if FB:
        prod_mfma_narrow(4 * NF, PF)
    else:
        prod_mfma(4 * NF, PF)
    stamp(15)
    A("L_common:")
    srd(56, 20, 1728 * 1280)
    srd(60, 12, 4096 * 1280)
    srd(68, 22, 4 * 1280)
    A(f"v_mul_u32_u24 v{VW}, 1280, v3")
    A(f"v_lshl_add_u32 v{VW}, v2, 4, v{VW}")
    for r in range(20):
        A(f"v_mov_b32 v{Y+r}, 0")
    A("s_mul_i32 s35, s28, 1280")
    if FY:
        A("s_min_u32 s36, s31, 19")
        A("s_lshl_b32 s36, s36, 6")
        A("s_add_u32 s35, s35, s36")
        A("v_and_b32 v10, 7, v0")
        A("v_lshlrev_b32 v10, 3, v10")
        A(f"buffer_load_dwordx2 v[{VXR2}:{VXR2+1}], v10, s[40:43], s35 offen")
    else:
        A("s_lshl_b32 s36, s31, 5")
        A("s_add_u32 s35, s35, s36")
        A("v_lshlrev_b32 v10, 2, v0")
        A(f"buffer_load_dword v{VXR}, v10, s[40:43], s35 offen")

    def mkA(setidx, preg, j):
        for r in range(4):
            A(f"v_and_b32_dpp v{AR+4*setidx+r}, v{preg}, v{4+r} row_newbcast:{j} row_mask:0xf bank_mask:0xf")

    def wd_first():
        A("s_mul_i32 s37, s31, 28")
        A("s_mul_i32 s36, s31, 24")
        A("s_add_u32 s36, s36, 192")
        A("s_cmp_lt_u32 s31, 48")
        A("s_cselect_b32 s37, s37, s36")

    def wd_loads():
        if FF:
            wd_first()
            A("s_mul_i32 s35, s37, 1280")
        else:
            A(f"s_mul_i32 s35, s31, {27*1280}")
        for kap in range(7):
            if FF and kap == 6:
                A(f"s_sub_u32 s36, s35, {4*1280}")
                A("s_cmp_lt_u32 s31, 48")
                A("s_cselect_b32 s35, s35, s36")
            for t in range(5):
                r = BUF + 4 * (kap * 5 + t)
                if WOP and kap * 5 + t >= WOP:
                    A(f"s_waitcnt vmcnt({WOP-1})")
                if not nowd:
                    A(f"buffer_load_dwordx4 v[{r}:{r+3}], v{VW}, s[56:59], s35 offen offset:{t*256} {dpol}")
            if kap != 6:
                A(f"s_add_u32 s35, s35, {4*1280}")

    def wo_loads():
        A("s_lshl_b32 s35, s29, 7")
        A("s_lshl_b32 s36, s34, 5")
        A("s_add_u32 s35, s35, s36")
        A("s_mul_i32 s35, s35, 1280")
        for kap in range(8):
            for t in range(5):
                r = BUF + 4 * (kap * 5 + t)
                if not nowo:
                    if WOP and kap * 5 + t >= WOP:
                        A(f"s_waitcnt vmcnt({WOP-1})")
                    A(f"buffer_load_dwordx4 v[{r}:{r+3}], v{VW}, s[60:63], s35 offen offset:{t*256} {wpol}")
            if kap != 7:
                A(f"s_add_u32 s35, s35, {4*1280}")

    EW = 240
    PS = 236

    def wg_stats(ew):
        A("v_mov_b32 v8, 0")
        A(f"ds_read_b128 v[{T}:{T+3}], v8 offset:{L_ST}")
        A(f"ds_read_b128 v[{T+4}:{T+7}], v8 offset:{L_ST+16}")
        A(f"s_mov_b32 s73, {hex(LOG2E)}")
        A("s_waitcnt lgkmcnt(0)")
        A(f"v_max3_f32 v{T+8}, v{T}, v{T+2}, v{T+4}")
        A(f"v_max_f32 v{T+8}, v{T+8}, v{T+6}")
        for w in range(4):
            A(f"v_sub_f32 v{ew+w}, v{T+2*w}, v{T+8}")
        for w in range(4):
            A(f"v_mul_f32 v{ew+w}, s73, v{ew+w}")
        for w in range(4):
            A(f"v_exp_f32 v{ew+w}, v{ew+w}")
        nop(1)
        A(f"v_mul_f32 v{T+10}, v{ew}, v{T+1}")
        for w in range(1, 4):
            A(f"v_fma_f32 v{T+10}, v{ew+w}, v{T+2*w+1}, v{T+10}")

    A("s_cmp_eq_u32 s34, 1")
    A("s_cbranch_scc1 L_k1")
    if WOAT == 0:
        wo_loads()
    A("s_branch L_kdone")
    A("L_k1:")
    if WDAT == 0 and not noffn:
        wd_loads()
    A("L_kdone:")
    stamp(3)
    A("s_barrier")
    A("s_cmp_eq_u32 s34, 1")
    A("s_cbranch_scc1 L_v1")
    A("s_cmp_eq_u32 s34, 0")
    A("s_cbranch_scc0 L_nostat")
    wg_stats(G)
    A(f"v_mov_b32 v{T+9}, s72")
    A(f"v_mov_b32 v{T+11}, s72")
    A("s_lshl_b32 s35, s30, 7")
    A(f"s_add_u32 s35, s35, {WS_ST}")
    A("s_mov_b64 exec, 1")
    A(f"buffer_store_dwordx4 v[{T+8}:{T+11}], off, s[64:67], s35 {ppol}")
    A("s_mov_b64 exec, -1")
    A("L_nostat:")
    A("s_cmp_lg_u32 s34, 2")
    A("s_cbranch_scc1 L_nofpub")
    ftask("L_nofpub")
    if FB and not (noffn or nopub):
        A("s_lshl_b32 s81, s99, 10")
        A(f"s_add_u32 s81, s81, {WS_GP}")
        A("v_lshlrev_b32 v11, 4, v0")
        A(f"v_mov_b32 v{G+8}, s72")
        for r in range(4):
            A(f"v_add_f32 v{G+r}, v{DQ+r}, v{DQ+4+r}")
        embed(G + 4, G, G + 8, 4)
        A(f"buffer_store_dwordx4 v[{G+4}:{G+7}], v11, s[64:67], s81 offen {ppol}")
    elif not (noffn or nopub):
        A(f"s_cmp_ge_u32 s99, {NTM}")
        A(f"s_cselect_b32 s36, {NTM}, 0")
        A("s_sub_u32 s37, s99, s36")
        A("s_mul_i32 s78, s37, 4682")
        A("s_lshr_b32 s78, s78, 16")
        A("s_mul_i32 s79, s78, 14")
        A("s_sub_u32 s79, s37, s79")
        A(f"s_lshl_b32 s81, s79, {2 if F4 else 3}")
        A("s_add_u32 s81, s81, s78")
        A("s_add_u32 s81, s81, s36")
        A(f"s_lshl_b32 s81, s81, {11 if FF else 12}")
        A(f"s_add_u32 s81, s81, {WS_GP}")
        publish(ppol, npub, FF)
    A("L_nofpub:")
    if WOAT == 1:
        wo_loads()
    A("s_branch L_vdone")

    A("L_v1:")
    if WDAT == 1 and not noffn:
        wd_loads()
    wg_stats(EW)
    if FF:
        wd_first()
        A("v_and_b32 v8, 7, v2")
        if FB:
            A("s_cmp_lt_u32 s31, 48")
            A("s_cselect_b32 s36, 6, 5")
            A("v_min_u32 v8, s36, v8")
        else:
            A("v_min_u32 v8, 6, v8")
        A("v_lshlrev_b32 v8, 2, v8")
        A("v_add_u32 v8, s37, v8")
        A(f"v_lshrrev_b32 v9, {6 if FB else 7}, v8")
        if FB:
            A("v_lshrrev_b32 v10, 3, v2")
            A("v_mul_u32_u24 v10, 27, v10")
            A("v_add_u32 v9, v9, v10")
            A("v_lshl_add_u32 v9, v9, 2, v3")
            A("v_lshlrev_b32 v9, 10, v9")
            A("v_bfe_u32 v10, v8, 2, 4")
            A("v_lshl_add_u32 v9, v10, 4, v9")
        elif F4:
            A("v_lshrrev_b32 v10, 3, v2")
            A("v_mul_u32_u24 v10, 14, v10")
            A("v_add_u32 v9, v9, v10")
            A("v_lshl_add_u32 v9, v9, 2, v3")
            A("v_lshlrev_b32 v9, 11, v9")
        else:
            A("v_lshlrev_b32 v9, 14, v9")
            A("v_lshrrev_b32 v10, 3, v2")
            A("v_lshl_add_u32 v10, v3, 1, v10")
            A("v_lshl_add_u32 v9, v10, 11, v9")
        if not FB:
            A("v_bfe_u32 v10, v8, 2, 1")
            A("v_lshl_add_u32 v9, v10, 10, v9")
            A("v_bfe_u32 v10, v8, 3, 4")
            A("v_lshl_add_u32 v9, v10, 4, v9")
        A("s_lshl_b32 s82, s28, 8")
        A(f"s_add_u32 s82, s82, {WS_GP}")
        A("s_lshl_b32 s83, s30, 7")
        A(f"s_add_u32 s83, s83, {WS_ST}")
        A("s_xor_b32 s83, s83, 128")
        A(f"s_mov_b32 s36, {SPIN}")
        A("L_pollg:")
        A(f"buffer_load_dwordx4 v[{PS}:{PS+3}], off, s[64:67], s83 {gpol}")
        chk = not (noffn or nog or nopub or nofl)
        if not (noffn or nog):
            A(f"s_add_u32 s35, s82, {112*2048}")
            A(f"buffer_load_dwordx4 v[{G}:{G+3}], v9, s[64:67], s82 offen {gpol}")
            if not F4:
                A(f"buffer_load_dwordx4 v[{G+4}:{G+7}], v9, s[64:67], s35 offen {gpol}")
        A("s_waitcnt vmcnt(0)")
        if chk and F4:
            extract(G + 8, G)
            A(f"v_min3_u32 v8, v{PS+1}, v{PS+3}, v{G+8}")
            A(f"v_max3_u32 v10, v{PS+1}, v{PS+3}, v{G+8}")
        elif chk:
            extract(G + 8, G)
            extract(G + 9, G + 4)
            A(f"v_min3_u32 v8, v{PS+1}, v{PS+3}, v{G+8}")
            A(f"v_max3_u32 v10, v{PS+1}, v{PS+3}, v{G+8}")
            A(f"v_min_u32 v8, v8, v{G+9}")
            A(f"v_max_u32 v10, v10, v{G+9}")
        else:
            A(f"v_min_u32 v8, v{PS+1}, v{PS+3}")
            A(f"v_max_u32 v10, v{PS+1}, v{PS+3}")
        A("v_cmp_ne_u32 vcc, s72, v8")
        A("v_cmp_ne_u32_e64 s[74:75], s72, v10")
        nop(2)
        A("s_or_b64 s[74:75], vcc, s[74:75]")
        A("s_cbranch_scc0 L_pollg_done")
        A("s_sub_u32 s36, s36, 1")
        A("s_cmp_lg_u32 s36, 0")
        A("s_cbranch_scc1 L_pollg")
        A("L_pollg_done:")
    else:
        A("v_and_b32 v8, 7, v2")
        A("v_lshl_add_u32 v8, v8, 2, v3")
        A("v_min_u32 v8, 26, v8")
        A("s_mul_i32 s35, s31, 27")
        A("v_add_u32 v8, s35, v8")
        A("v_lshrrev_b32 v9, 7, v8")
        A("v_lshlrev_b32 v9, 15, v9")
        A("v_lshrrev_b32 v10, 3, v2")
        A(f"v_mul_u32_u24 v10, {112*4096}, v10")
        A("v_add_u32 v9, v9, v10")
        A("v_bfe_u32 v10, v8, 1, 2")
        A("v_lshl_add_u32 v9, v10, 10, v9")
        A("v_bfe_u32 v10, v8, 3, 4")
        A("v_lshl_add_u32 v9, v10, 4, v9")
        A("v_and_b32 v10, 1, v8")
        A("v_lshl_add_u32 v9, v10, 3, v9")
        A("s_lshl_b32 s82, s28, 8")
        A(f"s_add_u32 s82, s82, {WS_GP}")
        A("s_lshl_b32 s83, s30, 7")
        A(f"s_add_u32 s83, s83, {WS_ST}")
        A("s_xor_b32 s83, s83, 128")
        A(f"s_mov_b32 s36, {SPIN}")
        A("L_pollg:")
        A("s_mov_b32 s35, s82")
        A(f"buffer_load_dwordx4 v[{PS}:{PS+3}], off, s[64:67], s83 {gpol}")
        nf = 0 if (noffn or nog) else 8
        for n in range(nf):
            r = G + 2 * n
            A(f"buffer_load_dwordx2 v[{r}:{r+1}], v9, s[64:67], s35 offen {gpol}")
            if n != 7:
                A("s_add_u32 s35, s35, 4096")
        A("s_waitcnt vmcnt(0)")
        if nf and not nopub and npub == 4 and not nofl:
            A(f"v_min3_u32 v8, v{PS+1}, v{PS+3}, v{G+1}")
            A(f"v_max3_u32 v10, v{PS+1}, v{PS+3}, v{G+1}")
            for q in range(3, 15, 4):
                A(f"v_min3_u32 v8, v8, v{G+q}, v{G+q+2}")
                A(f"v_max3_u32 v10, v10, v{G+q}, v{G+q+2}")
            A(f"v_min_u32 v8, v8, v{G+15}")
            A(f"v_max_u32 v10, v10, v{G+15}")
        else:
            A(f"v_min_u32 v8, v{PS+1}, v{PS+3}")
            A(f"v_max_u32 v10, v{PS+1}, v{PS+3}")
        A("v_cmp_ne_u32 vcc, s72, v8")
        A("v_cmp_ne_u32_e64 s[74:75], s72, v10")
        nop(2)
        A("s_or_b64 s[74:75], vcc, s[74:75]")
        A("s_cbranch_scc0 L_pollg_done")
        A("s_sub_u32 s36, s36, 1")
        A("s_cmp_lg_u32 s36, 0")
        A("s_cbranch_scc1 L_pollg")
        A("L_pollg_done:")
    stamp(9)
    A(f"v_max_f32 v{T}, v{T+8}, v{PS}")
    A(f"v_sub_f32 v{T+1}, v{T+8}, v{T}")
    A(f"v_sub_f32 v{T+2}, v{PS}, v{T}")
    A(f"v_mul_f32 v{T+1}, s73, v{T+1}")
    A(f"v_mul_f32 v{T+2}, s73, v{T+2}")
    A(f"v_exp_f32 v{T+1}, v{T+1}")
    A(f"v_exp_f32 v{T+2}, v{T+2}")
    nop(1)
    A(f"v_mul_f32 v{T+3}, v{T+1}, v{T+10}")
    A(f"v_fma_f32 v{T+3}, v{T+2}, v{PS+2}, v{T+3}")
    A(f"v_rcp_f32 v{T+2}, v{T+3}")
    nop(1)
    A(f"v_fma_f32 v{T}, -v{T+3}, v{T+2}, 1.0")
    A(f"v_fma_f32 v{T+2}, v{T}, v{T+2}, v{T+2}")
    A(f"v_mul_f32 v{T+1}, v{T+1}, v{T+2}")
    for w in range(4):
        A(f"v_mul_f32 v{EW+w}, v{EW+w}, v{T+1}")
    A(f"v_mov_b32 v8, {L_F}")
    A(f"ds_write_b128 v8, v[{EW}:{EW+3}]")
    if F4 and not noffn:
        strip(G, 4)
        xsum([G + r for r in range(4)], [G + 8 + r for r in range(4)], ["s16", "s32"])
        A("s_mov_b32 s74, 0xffff0000")
        A("s_mov_b32 s75, 0xffff0000")
        A("s_mov_b32 s76, 0")
        A("s_mov_b32 s77, -1")
        A(f"v_cndmask_b32_e64 v{G}, v{G}, v{G+1}, s[74:75]")
        A(f"v_cndmask_b32_e64 v{G+2}, v{G+2}, v{G+3}, s[74:75]")
        A(f"v_cndmask_b32_e64 v{G}, v{G}, v{G+2}, s[76:77]")
        A(f"v_cvt_pk_bf16_f32 v{G}, v{G}, v{G}")
        A(f"v_lshlrev_b32 v{G}, 16, v{G}")
        A("v_cmp_ne_u32 vcc, 6, v2")
        A("s_cmp_lt_u32 s31, 48")
        A("s_cselect_b64 s[74:75], -1, 0")
        A(f"v_mov_b32_dpp v{G+1}, v{G} row_ror:8 row_mask:0xf bank_mask:0xf")
        A(f"v_max_f32 v{G}, 0, v{G}")
        A("s_or_b64 vcc, vcc, s[74:75]")
        A(f"v_mul_f32 v{G}, v{G}, v{G+1}")
        A(f"v_cvt_pk_bf16_f32 v{G}, v{G}, v{G}")
        A(f"v_cndmask_b32 v{G}, 0, v{G}, vcc")
        nop(2)
        mkA(0, G, 0)
        for kap in range(7):
            if kap + 1 < 7:
                mkA((kap + 1) & 1, G, kap + 1)
            else:
                nop(2)
            a = AR + 4 * (kap & 1)
            for t in range(5):
                b = BUF + 4 * (kap * 5 + t)
                A(f"v_mfma_f32_16x16x32_bf16 v[{Y+4*t}:{Y+4*t+3}], v[{a}:{a+3}], v[{b}:{b+3}], v[{Y+4*t}:{Y+4*t+3}]")
    elif FF and not noffn:
        strip(G, 8)
        xsum([G + r for r in range(8)], [G + 8 + r for r in range(8)], ["r8", "s16", "s32"])
        A("s_mov_b32 s74, 0xffff0000")
        A("s_mov_b32 s75, 0xffff0000")
        A("s_mov_b32 s76, 0")
        A("s_mov_b32 s77, -1")
        for q in (G, G + 4):
            A(f"v_cndmask_b32_e64 v{q}, v{q}, v{q+1}, s[74:75]")
            A(f"v_cndmask_b32_e64 v{q+2}, v{q+2}, v{q+3}, s[74:75]")
        for q in (G, G + 4):
            A(f"v_cndmask_b32_e64 v{q}, v{q}, v{q+2}, s[76:77]")
        A(f"v_cvt_pk_bf16_f32 v{G}, v{G}, v{G}")
        A(f"v_cvt_pk_bf16_f32 v{G+4}, v{G+4}, v{G+4}")
        A(f"v_lshlrev_b32 v{G}, 16, v{G}")
        A(f"v_lshlrev_b32 v{G+4}, 16, v{G+4}")
        A("v_cmp_ne_u32 vcc, 6, v2")
        A("s_cmp_lt_u32 s31, 48")
        A("s_cselect_b64 s[74:75], -1, 0")
        A(f"v_max_f32 v{G}, 0, v{G}")
        A(f"v_mul_f32 v{G}, v{G}, v{G+4}")
        A("s_or_b64 vcc, vcc, s[74:75]")
        A(f"v_cvt_pk_bf16_f32 v{G}, v{G}, v{G}")
        A(f"v_cndmask_b32 v{G}, 0, v{G}, vcc")
        nop(2)
        mkA(0, G, 0)
        for kap in range(7):
            if kap + 1 < 7:
                mkA((kap + 1) & 1, G, kap + 1)
            else:
                nop(2)
            a = AR + 4 * (kap & 1)
            for t in range(5):
                b = BUF + 4 * (kap * 5 + t)
                A(f"v_mfma_f32_16x16x32_bf16 v[{Y+4*t}:{Y+4*t+3}], v[{a}:{a+3}], v[{b}:{b+3}], v[{Y+4*t}:{Y+4*t+3}]")
    elif not noffn:
        for a in range(4):
            A(f"v_add_f32 v{G+4*a}, v{G+4*a}, v{G+4*a+2}")
        for a in range(2):
            A(f"v_add_f32 v{G+8*a}, v{G+8*a}, v{G+8*a+4}")
        A(f"v_add_f32 v{G}, v{G}, v{G+8}")
        A(f"v_cvt_pk_bf16_f32 v{G}, v{G}, v{G}")
        A(f"v_lshlrev_b32 v{G}, 16, v{G}")
        A("v_cmp_ne_u32 vcc, 54, v0")
        nop(1)
        A(f"v_mov_b32_dpp v{G+1}, v{G} row_ror:8 row_mask:0xf bank_mask:0xf")
        A(f"v_max_f32 v{G}, 0, v{G}")
        A(f"v_mul_f32 v{G}, v{G}, v{G+1}")
        A(f"v_cvt_pk_bf16_f32 v{G}, v{G}, v{G}")
        A(f"v_cndmask_b32 v{G}, 0, v{G}, vcc")
        nop(2)
        mkA(0, G, 0)
        for kap in range(7):
            if kap + 1 < 7:
                mkA((kap + 1) & 1, G, kap + 1)
            else:
                nop(2)
            a = AR + 4 * (kap & 1)
            for t in range(5):
                b = BUF + 4 * (kap * 5 + t)
                A(f"v_mfma_f32_16x16x32_bf16 v[{Y+4*t}:{Y+4*t+3}], v[{a}:{a+3}], v[{b}:{b+3}], v[{Y+4*t}:{Y+4*t+3}]")
    stamp(11)
    A("s_waitcnt lgkmcnt(0)")
    wo_loads()
    A("L_vdone:")
    A("v_and_b32 v9, 7, v2")
    A("v_lshl_add_u32 v9, v9, 2, v3")
    A("s_lshl_b32 s35, s34, 5")
    A("v_add_u32 v9, s35, v9")
    A("v_lshlrev_b32 v9, 2, v9")
    A("v_lshlrev_b32 v8, 5, v2")
    A("v_lshl_add_u32 v8, v3, 4, v8")
    A("s_mul_i32 s35, s34, 2560")
    A("v_add_u32 v8, s35, v8")
    if FY:
        A("s_mul_i32 s35, s34, 40")
        A("v_add_u32 v10, s35, v0")
        A(f"v_lshlrev_b32 v{T+12}, 4, v10")
        A(f"v_lshrrev_b32 v{T+14}, 3, v10")
        A(f"v_lshlrev_b32 v{T+14}, 13, v{T+14}")
        A("v_and_b32 v10, 7, v10")
        A(f"v_lshl_add_u32 v{T+14}, v10, 4, v{T+14}")
        A(f"s_mul_i32 s76, s28, {20*8192}")
        A(f"s_add_u32 s76, s76, {WS_Y}")
        A("s_lshl_b32 s77, s31, 7")
        A("s_add_u32 s77, s77, s76")
    else:
        A("s_lshl_b32 s35, s34, 6")
        A("v_add_u32 v10, s35, v0")
        A("s_lshl_b32 s35, s34, 4")
        A("s_add_u32 s35, s35, 256")
        A("v_add_u32 v11, s35, v2")
        A(f"v_lshlrev_b32 v{T+12}, 3, v10")
        A(f"v_lshlrev_b32 v{T+13}, 3, v11")
        for (src, dst) in ((10, T + 14), (11, T + 15)):
            A(f"v_lshrrev_b32 v{dst}, 3, v{src}")
            A(f"v_lshlrev_b32 v{dst}, 13, v{dst}")
            A(f"v_and_b32 v{src}, 7, v{src}")
            A(f"v_lshl_add_u32 v{dst}, v{src}, 4, v{dst}")
        A("v_cmp_gt_u32 vcc, 16, v0")
        A(f"v_mov_b32 v10, 0x7ffffff0")
        nop(1)
        A(f"v_cndmask_b32 v{T+15}, v10, v{T+15}, vcc")
        A(f"s_mul_i32 s76, s28, {40*8192}")
        A(f"s_add_u32 s76, s76, {WS_Y}")
        A("s_lshl_b32 s77, s31, 7")
        A("s_add_u32 s77, s77, s76")
    A("s_waitcnt vmcnt(0)")
    stamp(4)
    A("s_barrier")
    stamp(5)
    A(f"v_mov_b32 v10, {L_F}")
    A(f"ds_read_b128 v[{G}:{G+3}], v10")
    for w in range(4):
        A(f"ds_read_b32 v{T+w}, v9 offset:{L_OP+w*512}")
    A("s_waitcnt lgkmcnt(0)")
    A(f"v_mul_f32 v{T}, v{T}, v{G}")
    for w in range(1, 4):
        A(f"v_fma_f32 v{T}, v{T+w}, v{G+w}, v{T}")
    A(f"v_cvt_pk_bf16_f32 v{T}, v{T}, v{T}")
    nop(2)
    mkA(0, T, 0)
    for kap in range(8):
        if kap + 1 < 8:
            mkA((kap + 1) & 1, T, kap + 1)
        else:
            nop(2)
        a = AR + 4 * (kap & 1)
        for t in range(5):
            b = BUF + 4 * (kap * 5 + t)
            A(f"v_mfma_f32_16x16x32_bf16 v[{Y+4*t}:{Y+4*t+3}], v[{a}:{a+3}], v[{b}:{b+3}], v[{Y+4*t}:{Y+4*t+3}]")
    A("s_mov_b32 exec_hi, 0")
    nop(5)
    for t in range(5):
        A(f"ds_write_b128 v8, v[{Y+4*t}:{Y+4*t+3}] offset:{L_YP+t*512}")
    A("s_mov_b64 exec, -1")
    A("s_waitcnt lgkmcnt(0)")
    A("s_barrier")
    if FY:
        A("s_mov_b32 exec_lo, -1")
        A("s_mov_b32 exec_hi, 0xff")
        for vv in range(4):
            A(f"ds_read_b128 v[{G+4*vv}:{G+4*vv+3}], v{T+12} offset:{L_YP+vv*2560}")
        A(f"v_mov_b32 v{T+8}, s72")
        A("s_waitcnt lgkmcnt(0)")
        for j in range(4):
            A(f"v_add_f32 v{G+j}, v{G+j}, v{G+4+j}")
            A(f"v_add_f32 v{G+8+j}, v{G+8+j}, v{G+12+j}")
        for j in range(4):
            A(f"v_add_f32 v{G+j}, v{G+j}, v{G+8+j}")
        embed(T, G, T + 8, 4)
        A(f"buffer_store_dwordx4 v[{T}:{T+3}], v{T+14}, s[64:67], s77 offen {yppol}")
        A("s_mov_b64 exec, -1")
    else:
        for vv in range(4):
            A(f"ds_read_b64 v[{G+2*vv}:{G+2*vv+1}], v{T+12} offset:{L_YP+vv*2560}")
            A(f"ds_read_b64 v[{G+8+2*vv}:{G+8+2*vv+1}], v{T+13} offset:{L_YP+vv*2560}")
        A(f"v_mov_b32 v{T+1}, s72")
        A(f"v_mov_b32 v{T+3}, s72")
        A(f"v_mov_b32 v{T+5}, s72")
        A(f"v_mov_b32 v{T+7}, s72")
        A("s_waitcnt lgkmcnt(0)")
        for (base, dst) in ((G, T), (G + 8, T + 4)):
            A(f"v_add_f32 v{base}, v{base}, v{base+2}")
            A(f"v_add_f32 v{base+1}, v{base+1}, v{base+3}")
            A(f"v_add_f32 v{base+4}, v{base+4}, v{base+6}")
            A(f"v_add_f32 v{base+5}, v{base+5}, v{base+7}")
            A(f"v_add_f32 v{dst}, v{base}, v{base+4}")
            A(f"v_add_f32 v{dst+2}, v{base+1}, v{base+5}")
        A(f"buffer_store_dwordx4 v[{T}:{T+3}], v{T+14}, s[64:67], s77 offen {yppol}")
        A(f"buffer_store_dwordx4 v[{T+4}:{T+7}], v{T+15}, s[64:67], s77 offen {yppol}")
    stamp(6)
    A("s_cmp_lg_u32 s34, 0")
    A("s_cbranch_scc1 L_flush")
    A(f"s_cmp_ge_u32 s31, {20 if FY else 40}")
    A("s_cbranch_scc1 L_flush")
    A("s_lshl_b32 s35, s31, 13")
    A("s_add_u32 s35, s35, s76")
    A("v_lshlrev_b32 v9, 4, v0")
    A("v_add_u32 v10, 0x1000, v9")
    A(f"s_mov_b32 s36, {SPIN}")
    multi = FY and NS > 1
    if multi:
        CB = BUF + 128

        def yloads(k):
            for n in range(8):
                r = BUF + 32 * k + 4 * n
                A(f"buffer_load_dwordx4 v[{r}:{r+3}], v{9 + (n >> 2)}, s[64:67], s35 offen offset:{(n&3)*1024} {ygpol}")
        for k in range(NS):
            yloads(k)
        A("L_poll2:")
        for k in range(NS):
            A(f"s_waitcnt vmcnt({8*(NS-1)})")
            for n in range(8):
                extract(G + n, BUF + 32 * k + 4 * n)
            A(f"v_min3_u32 v{T}, v{G}, v{G+1}, v{G+2}")
            A(f"v_max3_u32 v{T+1}, v{G}, v{G+1}, v{G+2}")
            for q in (3, 5):
                A(f"v_min3_u32 v{T}, v{T}, v{G+q}, v{G+q+1}")
                A(f"v_max3_u32 v{T+1}, v{T+1}, v{G+q}, v{G+q+1}")
            A(f"v_min_u32 v{T}, v{T}, v{G+7}")
            A(f"v_max_u32 v{T+1}, v{T+1}, v{G+7}")
            A(f"v_cmp_ne_u32 vcc, s72, v{T}")
            A(f"v_cmp_ne_u32_e64 s[74:75], s72, v{T+1}")
            nop(2)
            A("s_or_b64 s[74:75], vcc, s[74:75]")
            A(f"s_cbranch_scc0 L_ydone{k}")
            yloads(k)
        A("s_sub_u32 s36, s36, 1")
        A("s_cmp_lg_u32 s36, 0")
        A("s_cbranch_scc1 L_poll2")
        A("s_waitcnt vmcnt(0)")
        for k in range(NS):
            A(f"L_ydone{k}:")
            for r in range(32):
                A(f"v_and_b32 v{CB+r}, 0xffffff00, v{BUF+32*k+r}")
            if k != NS - 1:
                A("s_branch L_poll2_done")
        A("L_poll2_done:")
    else:
        if EXPNP:
            A("s_branch L_flush")
        A("L_poll2:")
        for n in range(8):
            r = BUF + 4 * n
            A(f"buffer_load_dwordx4 v[{r}:{r+3}], v{9 + (n >> 2)}, s[64:67], s35 offen offset:{(n&3)*1024} {ygpol}")
        A("s_waitcnt vmcnt(0)")
        if FY:
            for n in range(8):
                extract(G + n, BUF + 4 * n)
            A(f"v_min3_u32 v{T}, v{G}, v{G+1}, v{G+2}")
            A(f"v_max3_u32 v{T+1}, v{G}, v{G+1}, v{G+2}")
            for q in (3, 5):
                A(f"v_min3_u32 v{T}, v{T}, v{G+q}, v{G+q+1}")
                A(f"v_max3_u32 v{T+1}, v{T+1}, v{G+q}, v{G+q+1}")
            A(f"v_min_u32 v{T}, v{T}, v{G+7}")
            A(f"v_max_u32 v{T+1}, v{T+1}, v{G+7}")
        else:
            A(f"v_min3_u32 v{T}, v{BUF+1}, v{BUF+3}, v{BUF+5}")
            A(f"v_max3_u32 v{T+1}, v{BUF+1}, v{BUF+3}, v{BUF+5}")
            for q in range(7, 31, 4):
                A(f"v_min3_u32 v{T}, v{T}, v{BUF+q}, v{BUF+q+2}")
                A(f"v_max3_u32 v{T+1}, v{T+1}, v{BUF+q}, v{BUF+q+2}")
            A(f"v_min_u32 v{T}, v{T}, v{BUF+31}")
            A(f"v_max_u32 v{T+1}, v{T+1}, v{BUF+31}")
        A(f"v_cmp_ne_u32 vcc, s72, v{T}")
        A(f"v_cmp_ne_u32_e64 s[74:75], s72, v{T+1}")
        nop(2)
        A("s_or_b64 s[74:75], vcc, s[74:75]")
        A("s_cbranch_scc0 L_poll2_done")
        if EXPSL:
            A(f"s_sleep {EXPSL}")
        A("s_sub_u32 s36, s36, 1")
        A("s_cmp_lg_u32 s36, 0")
        A("s_cbranch_scc1 L_poll2")
        A("L_poll2_done:")
    if FY:
        YB = BUF + 128 if multi else BUF
        if not multi:
            strip(BUF, 32)
        for j in range(4):
            for n in range(4):
                A(f"v_add_f32 v{YB+8*n+j}, v{YB+8*n+j}, v{YB+8*n+4+j}")
        for j in range(4):
            A(f"v_add_f32 v{YB+j}, v{YB+j}, v{YB+8+j}")
            A(f"v_add_f32 v{YB+16+j}, v{YB+16+j}, v{YB+24+j}")
        for j in range(4):
            A(f"v_add_f32 v{T+j}, v{YB+j}, v{YB+16+j}")
        xsum([T + j for j in range(4)], [T + 4 + j for j in range(4)], ["r8", "s16", "s32"])
        A(f"v_lshlrev_b32 v{T+4}, 16, v{VXR2}")
        A(f"v_and_b32 v{T+5}, 0xffff0000, v{VXR2}")
        A(f"v_lshlrev_b32 v{T+6}, 16, v{VXR2+1}")
        A(f"v_and_b32 v{T+7}, 0xffff0000, v{VXR2+1}")
        for j in range(4):
            A(f"v_add_f32 v{T+j}, v{T+j}, v{T+4+j}")
        A(f"v_cvt_pk_bf16_f32 v{T}, v{T}, v{T+1}")
        A(f"v_cvt_pk_bf16_f32 v{T+1}, v{T+2}, v{T+3}")
        A("s_mul_i32 s35, s28, 1280")
        A("s_lshl_b32 s36, s31, 6")
        A("s_add_u32 s35, s35, s36")
        A("v_lshlrev_b32 v9, 3, v0")
        A("s_mov_b64 exec, 0xff")
        A(f"buffer_store_dwordx2 v[{T}:{T+1}], v9, s[68:71], s35 offen {opol}".rstrip())
    else:
        A(f"v_add_f32 v{T}, v{BUF}, v{BUF+4}")
        A(f"v_add_f32 v{T+1}, v{BUF+2}, v{BUF+6}")
        A(f"v_add_f32 v{T+2}, v{BUF+8}, v{BUF+12}")
        A(f"v_add_f32 v{T+3}, v{BUF+10}, v{BUF+14}")
        A(f"v_add_f32 v{T+4}, v{BUF+16}, v{BUF+20}")
        A(f"v_add_f32 v{T+5}, v{BUF+18}, v{BUF+22}")
        A(f"v_add_f32 v{T+6}, v{BUF+24}, v{BUF+28}")
        A(f"v_add_f32 v{T+7}, v{BUF+26}, v{BUF+30}")
        A(f"v_add_f32 v{T}, v{T}, v{T+2}")
        A(f"v_add_f32 v{T+1}, v{T+1}, v{T+3}")
        A(f"v_add_f32 v{T+4}, v{T+4}, v{T+6}")
        A(f"v_add_f32 v{T+5}, v{T+5}, v{T+7}")
        A(f"v_add_f32 v{T}, v{T}, v{T+4}")
        A(f"v_add_f32 v{T+1}, v{T+1}, v{T+5}")
        nop(2)
        A(f"v_permlane32_swap_b32 v{T}, v{T+1}")
        nop(1)
        A(f"v_add_f32 v{T}, v{T}, v{T+1}")
        A(f"v_mov_b32 v{T+1}, v{T}")
        nop(2)
        A(f"v_permlane16_swap_b32 v{T}, v{T+1}")
        nop(1)
        A(f"v_add_f32 v{T}, v{T}, v{T+1}")
        nop(2)
        A(f"v_add_f32_dpp v{T}, v{T}, v{T} row_ror:8 row_mask:0xf bank_mask:0xf")
        A(f"v_mov_b32 v{T+1}, v{T}")
        nop(2)
        A(f"v_permlane32_swap_b32 v{T}, v{T+1}")
        A(f"v_lshlrev_b32 v{T+2}, 16, v{VXR}")
        A(f"v_and_b32 v{T+3}, 0xffff0000, v{VXR}")
        A(f"v_add_f32 v{T}, v{T}, v{T+2}")
        A(f"v_add_f32 v{T+1}, v{T+1}, v{T+3}")
        A(f"v_cvt_pk_bf16_f32 v{T}, v{T}, v{T+1}")
        A("s_mul_i32 s35, s28, 1280")
        A("s_lshl_b32 s36, s31, 5")
        A("s_add_u32 s35, s35, s36")
        A("v_lshlrev_b32 v9, 2, v0")
        A("s_mov_b64 exec, 0xff")
        A(f"buffer_store_dword v{T}, v9, s[68:71], s35 offen")
    A("s_or_b32 s36, s31, s28")
    A("s_cmp_lg_u32 s36, 0")
    A("s_cbranch_scc1 L_fin")
    A("s_mov_b64 exec, 1")
    A(f"v_mov_b32 v{T+1}, s72")
    A(f"buffer_store_dword v{T+1}, off, s[64:67], 0 offset:{WS_E} sc1")
    A("L_fin:")
    if FY and NS > 1:
        A("s_mov_b64 exec, -1")
        A("s_waitcnt vmcnt(0)")
    stamp(7)
    A("L_flush:")
    stamp_flush()
    A("L_end:")
    A("s_endpgm")

    if LAY:
        ia = L.index("s_cbranch_scc1 L_service")
        ib = L.index("L_service:")
        ik = L.index("L_idle:")
        assert L[ib - 1] == "s_endpgm" and L[ik - 1] == "s_branch L_b1"
        L[:] = L[:ia] + ["s_cbranch_scc0 L_stream"] + L[ib:ik] + ["L_stream:"] + L[ia + 1:ib] + L[ik:]
    body = "\n".join(("    " + l) if not l.endswith(":") else l for l in L) + "\n"
    return (HEADER % (LDS_SIZE, NAME, NAME, NAME)) + body + (FOOTER % NAME)


if __name__ == "__main__":
    kw = {}
    out = f"cdna_kernels/{NAME}.s"
    for a in sys.argv[1:]:
        if a.startswith("out="):
            out = a[4:]
            continue
        k, v = a.split("=")
        try:
            v = int(v)
        except ValueError:
            pass
        kw[k] = v
    open(out, "w").write(gen(**kw))
    print("wrote", out)
```
